```python
import torch

def _softmax(x, axis=-1):
    return torch.softmax(x, dim=axis)

def _gelu(x):
    return torch.nn.functional.gelu(x, approximate='tanh')

def _silu(x):
    return torch.nn.functional.silu(x)

def _sigmoid(x):
    return torch.sigmoid(x)

def _layernorm(x, axis=-1, eps=1e-05):
    m = x.mean(dim=axis, keepdim=True)
    v = x.var(dim=axis, keepdim=True, unbiased=False)
    return (x - m) / torch.sqrt(v + eps)

def _scatter_add(tgt, idx, src, axis=0):
    return tgt.clone().index_add_(axis, idx, src)

def _segment_sum(src, seg, n):
    out = torch.zeros((n,) + src.shape[1:], dtype=src.dtype)
    return out.index_add_(0, seg, src)

def _pad(x, pw):
    flat = tuple((v for pair in reversed(pw) for v in pair))
    return torch.nn.functional.pad(x, flat)
kernel_name = 'adaLN_cond__sliding_local_dilated__dense_activation_silu__prompt'

def setup_inputs():

    _w = lambda a: (lambda t: t.to(torch.bfloat16) if t.is_floating_point() else t)(torch.as_tensor(a))

    def _A_setup():
        B, S, D = (1, 2048, 640)
        return {'x': _w((lambda *s: torch.randn(*s, dtype=torch.bfloat16) * 0.05)(B, S, D)), 'wqkv': _w((lambda *s: torch.randn(*s, dtype=torch.bfloat16) * 0.05)(D, 3 * D)), 'wo': _w((lambda *s: torch.randn(*s, dtype=torch.bfloat16) * 0.05)(D, D))}
    _A_in = _A_setup()

    def _B_setup():
        B, S, D, F = (1, 2048, 640, 1536)
        return {'x': _w((lambda *s: torch.randn(*s, dtype=torch.bfloat16) * 0.05)(B, S, D)), 'w1': _w((lambda *s: torch.randn(*s, dtype=torch.bfloat16) * 3.2)(D, F) * D ** (-0.5)), 'w2': _w((lambda *s: torch.randn(*s, dtype=torch.bfloat16) * 0.4)(F, D) * F ** (-0.5))}
    _B_in = _B_setup()
    return {'A_x': _A_in['x'], 'A_wqkv': _A_in['wqkv'], 'A_wo': _A_in['wo'], 'B_x': _B_in['x'], 'B_w1': _B_in['w1'], 'B_w2': _B_in['w2'], 'c': _w((lambda *s: torch.randn(*s, dtype=torch.bfloat16) * 0.1)(1, 640) * 8.0), 'w_mod': _w((lambda *s: torch.randn(*s, dtype=torch.bfloat16) * 0.1)(640, 6 * 640) * 640 ** (-0.5) * 8.0)}

def reference(A_x, A_wqkv, A_wo, B_x, B_w1, B_w2, c, w_mod):

    def _A_ref(x, wqkv, wo):
        B, S, D = x.shape
        H = 32
        Dh = D // H
        W, dil = (8, 2)
        qkv = (lambda x, *d: x.permute(*d))((x @ wqkv).reshape(B, S, 3, H, Dh), 2, 0, 3, 1, 4)
        q, k, v = (qkv[0], qkv[1], qkv[2])
        scale = Dh ** (-0.5)
        pos = torch.arange(S)
        off = torch.arange(W) * dil
        idx = pos[:, None] - off[None, :]
        mask = idx >= 0
        idx_c = torch.where(mask, idx, 0).reshape(-1)
        kg = k[:, :, idx_c, :].reshape(B, H, S, W, Dh)
        vg = v[:, :, idx_c, :].reshape(B, H, S, W, Dh)
        logits = torch.einsum('bhsd,bhswd->bhsw', q, kg) * scale
        logits = torch.where(mask[None, None, :, :], logits, -1000000000.0)
        attn = _softmax(logits, axis=-1)
        o = torch.einsum('bhsw,bhswd->bhsd', attn, vg)
        return (lambda x, *d: x.permute(*d))(o, 0, 2, 1, 3).reshape(B, S, D) @ wo

    def _B_ref(x, w1, w2):
        h = torch.einsum('bsd,df->bsf', x, w1)
        h = _silu(h)
        out = torch.einsum('bsf,fd->bsd', h, w2)
        return out
    x = A_x
    mod = (_silu(c) @ w_mod).reshape(c.shape[0], 6, 1, -1)
    sa, ca, ga, sb, cb, gb = (mod[:, 0].clone(), mod[:, 1].clone(), mod[:, 2].clone(), mod[:, 3].clone(), mod[:, 4].clone(), mod[:, 5].clone())
    h = _layernorm(x, axis=-1) * (1 + ca) + sa
    x = x + ga * _A_ref(h, A_wqkv, A_wo)
    h = _layernorm(x, axis=-1) * (1 + cb) + sb
    x = x + gb * _B_ref(h, B_w1, B_w2)
    return x
```

```python
import re

def V(i, n=1):
    return "v%d" % i if n == 1 else "v[%d:%d]" % (i, i + n - 1)
def A(i, n=1):
    return "a%d" % i if n == 1 else "a[%d:%d]" % (i, i + n - 1)
def S(i, n=1):
    return "s%d" % i if n == 1 else "s[%d:%d]" % (i, i + n - 1)
def R(i, n=1):
    return V(i, n) if i < 256 else A(i - 256, n)

_reg_re = re.compile(r'^(-|abs\()?([vas])(?:(\d+)|\[(\d+):(\d+)\])\)?$')

def regs_of(tok):
    tok = tok.strip()
    if tok in ('vcc',):
        return {('s', 106), ('s', 107)}
    if tok == 'exec':
        return {('s', 126), ('s', 127)}
    if tok == 'm0':
        return {('s', 124)}
    m = _reg_re.match(tok)
    if not m:
        return set()
    k = m.group(2)
    if m.group(3) is not None:
        lo = hi = int(m.group(3))
    else:
        lo, hi = int(m.group(4)), int(m.group(5))
    return {(k, i) for i in range(lo, hi + 1)}

TRANS = ('v_exp_f32', 'v_log_f32', 'v_rcp_f32', 'v_rsq_f32', 'v_sqrt_f32', 'v_sin_f32', 'v_cos_f32')

class Ins:
    def __init__(self, text):
        self.text = text
        t = text.split(';')[0].strip()
        parts = t.split(None, 1)
        self.op = parts[0]
        rest = parts[1] if len(parts) > 1 else ''
        ops, cur, depth = [], '', 0
        for ch in rest:
            if ch == '[': depth += 1
            if ch == ']': depth -= 1
            if ch == ',' and depth == 0:
                ops.append(cur.strip()); cur = ''
            else:
                cur += ch
        if cur.strip(): ops.append(cur.strip())
        self.mods = ''
        if ops:
            sp = ops[-1].split(None, 1)
            ops[-1] = sp[0]
            if len(sp) > 1: self.mods = sp[1]
        self.ops = ops
        op = self.op
        self.w, self.r = set(), set()
        self.kind = 'other'
        Rg = [regs_of(o) for o in ops]
        allr = lambda xs: set().union(*xs) if xs else set()
        if op.startswith('v_mfma'):
            self.kind = 'mfma'; self.w = Rg[0]; self.srcA, self.srcB, self.srcC = Rg[1], Rg[2], Rg[3]
            self.r = Rg[1] | Rg[2] | Rg[3]
            self.passes = 8 if '32x32' in op else 4
        elif op.startswith('v_'):
            self.kind = 'valu'
            if op.startswith('v_cmp'):
                self.w = Rg[0]; self.r = allr(Rg[1:])
                if op.startswith('v_cmpx'): self.w |= regs_of('exec')
            elif 'swap' in op:
                self.w = Rg[0] | Rg[1]; self.r = Rg[0] | Rg[1]
            elif op.startswith(('v_add_co', 'v_sub_co', 'v_addc_co', 'v_subb_co')):
                self.w = Rg[0] | Rg[1]; self.r = allr(Rg[2:])
            else:
                self.w = Rg[0]; self.r = allr(Rg[1:])
                if op.startswith(('v_fmac', 'v_dot2c', 'v_writelane', 'v_pk_fmac')) or 'dpp' in op or 'sdwa' in op:
                    self.r |= Rg[0]
                if op.startswith('v_cndmask') and len(ops) == 3:
                    self.r |= regs_of('vcc')
        elif op.startswith(('buffer_', 'global_')):
            self.kind = 'vmem'
            self.lds = ' lds' in (' ' + self.mods) or 'load_lds' in op
            if op.startswith(('buffer_wbl2', 'buffer_inv')):
                pass
            elif self.lds:
                self.r = allr(Rg) | regs_of('m0')
            elif 'load' in op:
                self.w = Rg[0]; self.r = allr(Rg[1:])
                if 'd16' in op: self.r |= Rg[0]
            elif op.startswith('buffer_'):
                self.r = allr(Rg); self.sdata = Rg[0]
            else:
                self.r = allr(Rg); self.sdata = Rg[1]
        elif op.startswith('ds_'):
            self.kind = 'ds'
            if 'read' in op or 'permute' in op or 'swizzle' in op:
                self.w = Rg[0]; self.r = allr(Rg[1:])
            else:
                self.r = allr(Rg)
            if 'addtid' in op: self.r |= regs_of('m0')
        elif op.startswith('s_'):
            self.kind = 'salu'
            if op.startswith(('s_load', 's_buffer_load', 's_memtime', 's_memrealtime')):
                self.kind = 'smem'; self.w = Rg[0]; self.r = allr(Rg[1:])
            elif op.startswith(('s_cmp', 's_bitcmp', 's_cbranch', 's_branch', 's_waitcnt', 's_nop', 's_barrier', 's_sleep', 's_endpgm', 's_setprio')):
                self.r = allr(Rg)
            else:
                self.w = Rg[0] if Rg else set(); self.r = allr(Rg[1:])
                if 'saveexec' in op: self.w |= regs_of('exec')
        self.is_trans = op.replace('_e32', '').replace('_e64', '') in TRANS
        self.is_dot = op.startswith('v_dot')
        self.is_dpp = 'dpp' in op
        self.states = 1
        if op == 's_nop':
            self.states = int(ops[0], 0) + 1

def need_states(p, c):
    n = 0
    vw = {x for x in p.w if x[0] in 'va'}
    sw = {x for x in p.w if x[0] == 's'}
    if p.kind == 'valu':
        if c.kind == 'mfma' and vw & c.r: n = max(n, 3 if p.is_dot else 2)
        if c.kind == 'vmem' and sw & c.r: n = max(n, 5)
        if c.kind == 'valu' and sw & c.r:
            n = max(n, 4 if c.op.startswith(('v_readlane', 'v_writelane')) else 2)
        if c.kind == 'salu' and sw & c.r: n = max(n, 1)
        if c.kind == 'valu' and c.op.startswith(('v_readlane', 'v_readfirstlane')) and vw & c.r: n = max(n, 1)
        if c.kind == 'valu' and (c.is_dpp or c.op.startswith('v_permlane')) and vw & c.r: n = max(n, 2)
        if p.is_trans and c.kind == 'valu' and vw & c.r: n = max(n, 1)
        if p.is_dot and vw & (c.r | c.w):
            if c.op == p.op and c.kind == 'valu':
                ab = set().union(*[regs_of(o) for o in c.ops[1:3]])
                if vw & ab: n = max(n, 3)
            elif c.kind in ('valu', 'vmem', 'ds', 'mfma'):
                n = max(n, 3)
        if ('s', 126) in sw and (c.kind == 'mfma' or c.is_dpp or c.op.startswith(('v_permlane', 'v_readlane', 'v_readfirstlane', 'v_writelane'))): n = max(n, 5)
        if ('op_sel' in p.mods or 'sdwa' in p.op) and not p.op.startswith('v_pk') and c.kind == 'valu' and vw & c.r: n = max(n, 1)
    if p.kind == 'mfma':
        big = {4: 8, 8: 12}[p.passes]
        if c.kind == 'mfma':
            if p.w & (c.srcA | c.srcB): n = max(n, big)
            if p.w & c.srcC and not (p.w == c.srcC and p.passes == c.passes): n = max(n, big - 2)
            if p.w & c.w and not (p.w == c.w): n = max(n, big)
        elif c.kind in ('valu', 'vmem', 'ds'):
            if p.w & (c.r | c.w): n = max(n, big)
            if c.kind == 'valu' and p.srcC & c.w: n = max(n, {4: 3, 8: 7}[p.passes])
    if p.kind == 'salu' and ('s', 124) in p.w and ('s', 124) in c.r and c.kind in ('vmem', 'ds'): n = max(n, 1)
    if p.kind == 'vmem' and hasattr(p, 'sdata') and len(p.sdata) >= 3 and p.sdata & c.w: n = max(n, 2)
    return n

class Asm:
    def __init__(self):
        self.items = []
        self.vm = []
        self.lg = []
        self.nlab = 0
    def raw(self, s): self.items.append(s)
    def c(self, s): self.items.append('; ' + s)
    def label(self, name): self.items.append(name + ':')
    def newlabel(self, p='L'):
        self.nlab += 1
        return '%s_%d' % (p, self.nlab)
    def __call__(self, text, tag=None):
        ins = Ins(text)
        self.items.append(ins)
        if ins.kind == 'vmem': self.vm.append(tag)
        elif ins.kind == 'ds': self.lg.append(tag)
        elif ins.kind == 'smem': self.lg.append('SMEM')
        return ins
    def _n(self, q, tag):
        tags = tag if isinstance(tag, (list, tuple, set)) else [tag]
        idx = [i for i, t in enumerate(q) if t in tags]
        if not idx: return None
        return len(q) - 1 - idx[-1]
    def wait_vm(self, tag=None):
        n = 0 if tag is None else self._n(self.vm, tag)
        if n is None: return
        n = min(n, 63)
        self.items.append(Ins('s_waitcnt vmcnt(%d)' % n))
        self.vm = self.vm[len(self.vm) - n:] if n else []
    def wait_lg(self, tag=None):
        n = 0 if tag is None else self._n(self.lg, tag)
        if n is None: return
        if 'SMEM' in self.lg: n = 0
        n = min(n, 15)
        self.items.append(Ins('s_waitcnt lgkmcnt(%d)' % n))
        self.lg = self.lg[len(self.lg) - n:] if n else []
    def finish(self):
        out, hist = [], []
        npad = 0
        for it in self.items:
            if isinstance(it, str):
                out.append(it); continue
            need, dist = 0, 0
            for p in reversed(hist):
                k = need_states(p, it)
                if k - dist > need: need = k - dist
                dist += p.states
                if dist >= 20: break
            if need > 0:
                nop = Ins('s_nop %d' % (need - 1)); out.append(nop); hist.append(nop); npad += 1
            out.append(it); hist.append(it)
            if len(hist) > 24: hist = hist[-24:]
        self.npad = npad
        return '\n'.join(x if isinstance(x, str) else '    ' + x.text for x in out)
```

```python
from asmlib import *

def add_phases(Gen, G):
    globals().update({k: v for k, v in G.items() if not k.startswith('__')})

    B2 = 256 + 156
    B4 = 256 + 16

    def ld(self, dst, off, soff, tag, srd=None):
        srd = SW if srd is None else srd
        va = 1 if off < 4096 else 5
        self.a('buffer_load_dwordx4 %s, v%d, s[%d:%d], s%d offen offset:%d sc1' % (R(dst, 4), va, srd, srd + 3, soff, off & 4095), tag)
    Gen.ld = ld

    def wfrag_issue(self, base, nks, dst, k0, k1, tag):
        a = self.a
        a('s_mul_i32 s%d, s%d, %d' % (sT[0], sW, nks * 40960))
        a('s_mul_i32 s%d, s%d, 5120' % (sT[1], sCG))
        a('s_add_u32 s%d, s%d, s%d' % (sT[0], sT[0], sT[1]))
        a('s_add_u32 s%d, s%d, 0x%x' % (sT[0], sT[0], base + k0 * 40960))
        for k in range(k0, k1):
            for T in range(5): self.ld(dst + 20 * k + 4 * T, 1024 * T, sT[0], tag)
            if k + 1 < k1: a('s_add_u32 s%d, s%d, 40960' % (sT[0], sT[0]))
    Gen.wfrag_issue = wfrag_issue

    def b3_issue(self, f0, f1):
        a = self.a
        assert f0 % 12 == 0 and f1 % 12 == 0
        a('s_lshr_b32 s%d, s%d, 1' % (sT[0], sW))
        a('s_mul_i32 s%d, s%d, 98304' % (sT[0], sT[0]))
        a('s_and_b32 s%d, s%d, 1' % (sT[1], sW))
        a('s_mul_i32 s%d, s%d, 3072' % (sT[1], sT[1]))
        a('s_add_u32 s%d, s%d, s%d' % (sT[0], sT[0], sT[1]))
        a('s_mul_i32 s%d, s%d, 6144' % (sT[1], sJ))
        a('s_add_u32 s%d, s%d, s%d' % (sT[0], sT[0], sT[1]))
        a('s_add_u32 s%d, s%d, 0x%x' % (sT[0], sT[0], W3T + (f0 // 12) * 196608))
        a('s_mul_i32 s%d, s%d, 3072' % (sT[1], sW))
        for blk in range(f0 // 12, f1 // 12):
            a('s_add_u32 m0, s%d, %d' % (sT[1], 12288 * blk))
            for e in range(3):
                a('buffer_load_dwordx4 v1, s[%d:%d], s%d offen offset:%d sc1 lds' % (SW, SW + 3, sT[0], 1024 * e), 'b3')
            a('s_add_u32 s%d, s%d, 196608' % (sT[0], sT[0]))
    Gen.b3_issue = b3_issue

    def jobs_wait(self):
        a = self.a
        L, D = a.newlabel('jpoll'), a.newlabel('jdone')
        a('v_min_u32 v20, 33, v0')
        a('v_lshlrev_b32 v20, 4, v20')
        a('s_mov_b32 s%d, 0x8000' % sCNT)
        a('s_mov_b32 s%d, 0x%x' % (sT[0], JF))
        a.label(L)
        a('buffer_load_dwordx4 v[16:19], v20, s[%d:%d], s%d offen sc1' % (SW, SW + 3, sT[0]))
        a.wait_vm()
        for e in range(4): a('v_xor_b32 v%d, s%d, v%d' % (16 + e, sTAG, 16 + e))
        a('v_or3_b32 v16, v16, v17, v18')
        a('v_or_b32 v16, v16, v19')
        a('v_cmp_ne_u32 vcc, 0, v16')
        a('s_cbranch_vccz %s' % D)
        a('s_sub_u32 s%d, s%d, 1' % (sCNT, sCNT))
        a('s_cmp_lg_u32 s%d, 0' % sCNT)
        a('s_cbranch_scc1 %s' % L)
        a.label(D)
    Gen.jobs_wait = jobs_wait

    def ksplit(self, nks, abase, rtstride, Bf, Ar, nA, ACC, flagbase, pre=None):
        a = self.a
        a('v_and_b32 v8, 3, v0')
        a('v_lshlrev_b32 v8, 7, v8')
        a('s_lshl_b32 s%d, s%d, 2' % (sT[0], sC))
        a('s_add_u32 s%d, s%d, s%d' % (sT[0], sT[0], sW))
        a('s_lshl_b32 s%d, s%d, 9' % (sT[0], sT[0]))
        a('s_add_u32 s%d, s%d, 0x%x' % (sT[0], sT[0], flagbase))
        a('s_lshl_b32 s%d, s%d, 1' % (sT[1], sC))
        a('s_add_u32 s%d, s%d, s%d' % (sT[1], sT[1], sRG))
        a('s_mul_i32 s%d, s%d, %d' % (sT[1], sT[1], 4 * rtstride))
        a('s_mul_i32 s%d, s%d, %d' % (sT[6], sW, nks * 1024))
        a('s_add_u32 s%d, s%d, s%d' % (sT[1], sT[1], sT[6]))
        a('s_add_u32 s%d, s%d, 0x%x' % (sT[1], sT[1], abase))
        for p in range(4):
            a('s_xor_b32 s%d, s%d, %d' % (sT[6], sW, p))
            a('s_mul_i32 s%d, s%d, %d' % (sT[2 + p], sT[6], rtstride))
            a('s_add_u32 s%d, s%d, s%d' % (sT[2 + p], sT[2 + p], sT[1]))
            if p:
                a('s_mul_i32 s%d, s%d, 15360' % (sT[6], sT[6]))
                a('s_add_u32 s%d, s%d, %d' % (sT[6], sT[6], RED + 5120 * (p - 1)))
                a('v_add_u32 v%d, s%d, v1' % (8 + p, sT[6]))
        a('s_mul_i32 s%d, s%d, 15360' % (sT[6], sW))
        a('s_add_u32 s%d, s%d, %d' % (sT[6], sT[6], RED))
        a('v_add_u32 v12, s%d, v1' % sT[6])
        self.poll(8, sT[0], 13)
        self.stamp('flag')
        order = [(p, k) for p in (1, 2, 3, 0) for k in range(nks)]
        areg = lambda idx: Ar + 4 * (idx % nA)
        def aload(idx):
            p, k = order[idx]
            if k == 8: a('s_add_u32 s%d, s%d, 8192' % (sT[2 + p], sT[2 + p]))
            self.ld(areg(idx), 1024 * (k & 7), sT[2 + p], 'A%d' % idx)
        for idx in range(min(nA, len(order))): aload(idx)
        if pre: pre()
        pend = []
        for idx, (p, k) in enumerate(order):
            a.wait_vm('A%d' % idx)
            for T in range(5):
                a(self.mfma(ACC + 20 * p + 4 * T, Bf + 20 * k + 4 * T, areg(idx), first=(k == 0)))
                if pend and k >= 1 and T in (1, 3): a(pend.pop(0))
            if idx + nA < len(order): aload(idx + nA)
            if k == nks - 1 and p:
                assert not pend
                pend = ['ds_write_b128 v%d, %s offset:%d' % (8 + p, R(ACC + 20 * p + 4 * T, 4), 1024 * T) for T in range(5)]
        assert not pend
        self.stamp('mfma')
        self.barrier()
        for i in range(3):
            for T in range(5):
                a('ds_read_b128 %s, v12 offset:%d' % (R(ACC + 20 * (i + 1) + 4 * T, 4), 5120 * i + 1024 * T), 'r%d' % i)
    Gen.ksplit = ksplit

    def kreduce(self, ACC):
        a = self.a
        for i in range(3):
            a.wait_lg('r%d' % i)
            for d in range(10):
                a('v_pk_add_f32 %s, %s, %s' % (V(ACC + 2 * d, 2), V(ACC + 2 * d, 2), V(ACC + 20 * (i + 1) + 2 * d, 2)))
    Gen.kreduce = kreduce

    def pack_store(self, src, P, vaddr, vaddr5, srd, soff, cstride, flags):
        a = self.a
        for d in range(10): a('v_cvt_pk_bf16_f32 v%d, v%d, v%d' % (P + d, src + 2 * d, src + 2 * d + 1))
        a('v_mov_b32 v%d, v%d' % (P + 10, P + 8))
        a('v_mov_b32 v%d, v%d' % (P + 11, P + 9))
        for p in range(3):
            a('v_permlane16_swap_b32 v%d, v%d' % (P + 4 * p, P + 4 * p + 2))
            a('v_permlane16_swap_b32 v%d, v%d' % (P + 4 * p + 1, P + 4 * p + 3))
        for p in range(2):
            a('buffer_store_dwordx4 %s, v%d, s[%d:%d], s%d offen offset:%d %s' % (V(P + 4 * p, 4), vaddr, srd, srd + 3, soff, 4 * p * cstride, flags))
        self.exec_('0xffff', '0xffff')
        a('buffer_store_dwordx4 %s, v%d, s[%d:%d], s%d offen offset:%d %s' % (V(P + 8, 4), vaddr, srd, srd + 3, soff, 8 * cstride, flags))
        self.exec_all()
    Gen.pack_store = pack_store

    def chunk_of_lane(self, d, t):
        a = self.a
        a('v_and_b32 v%d, 1, v3' % t)
        a('v_lshrrev_b32 v%d, 1, v3' % d)
        a('v_lshl_add_u32 v%d, v%d, 1, v%d' % (d, t, d))
    Gen.chunk_of_lane = chunk_of_lane

    def p2(self):
        a = self.a
        a('v_add_u32 v5, 4096, v1')
        self.mod_issue([2, 3, 4, 5], 32, 7, 'mod')
        a('s_lshl_b32 s%d, s%d, 1' % (sXO, sC))
        a('s_add_u32 s%d, s%d, s%d' % (sXO, sXO, sRG))
        a('s_lshl_b32 s%d, s%d, 2' % (sXO, sXO))
        a('s_add_u32 s%d, s%d, s%d' % (sXO, sXO, sW))
        a('s_mul_i32 s%d, s%d, %d' % (sB1, sXO, 16 * 1280))
        a('s_mul_i32 s%d, s%d, 160' % (sT[0], sCG))
        a('s_add_u32 s%d, s%d, s%d' % (sB1, sB1, sT[0]))
        a('v_mul_u32_u24 v6, 1280, v2')
        a('v_lshl_add_u32 v21, v3, 3, v6')
        for T in range(5):
            a('buffer_load_dwordx2 %s, v21, s[%d:%d], s%d offen offset:%d' % (V(64 + 2 * T, 2), SX, SX + 3, sB1, 32 * T), 'xv')
        self.jobs_wait()
        self.stamp('jobsok')
        self.wfrag_issue(W2T, 5, B2, 0, 5, 'b2')
        self.mod_check([2, 3, 4, 5], 32, 7, 'mod', 28)
        self.plus1(48)
        self.unpack4(36, 32); self.unpack4(52, 48); self.unpack4(60, 56)
        a('v_add_u32 v12, %d, v7' % SPARE)
        a('v_lshrrev_b32 v13, 1, v7')
        a('v_add_u32 v13, %d, v13' % SPARE)
        a('ds_write_b128 v12, v[36:39] offset:%d' % (GA_ - SPARE))
        a('ds_write_b128 v12, v[52:55] offset:%d' % (C2F - SPARE))
        a('ds_write_b128 v12, v[60:63] offset:%d' % (GB_ - SPARE))
        a('ds_write_b64 v13, v[48:49] offset:%d' % (C2B - SPARE))
        a('ds_write_b64 v13, v[40:41] offset:%d' % (S2B - SPARE))
        a('s_mul_i32 s%d, s%d, 320' % (sT[0], sCG))
        a('s_add_u32 s%d, s%d, %d' % (sT[0], sT[0], SPARE))
        a('v_lshl_add_u32 v4, v3, 4, s%d' % sT[0])
        ACC = 176
        def pre():
            self.b3_issue(0, 84)
        self.ksplit(5, WO_, 20480, B2, 96, 20, ACC, FO, pre)
        for T in range(5): a('ds_read_b128 %s, v4 offset:%d' % (V(96 + 4 * T, 4), GA_ - SPARE + 64 * T), 'ga')
        for T in range(5): a('ds_read_b128 %s, v4 offset:%d' % (V(116 + 4 * T, 4), C2F - SPARE + 64 * T), 'c2')
        for T in range(5): self.unpack4(136 + 4 * T, 64 + 2 * T)
        self.chunk_of_lane(16, 17)
        a('v_lshlrev_b32 v17, 4, v2')
        a('v_lshl_add_u32 v17, v16, 8, v17')
        a('s_mul_i32 s%d, s%d, 20480' % (sT[0], sXO))
        a('s_mul_i32 s%d, s%d, 2560' % (sT[1], sCG))
        a('s_add_u32 s%d, s%d, s%d' % (sT[0], sT[0], sT[1]))
        a('s_add_u32 s%d, s%d, 0x%x' % (sT[0], sT[0], WY))
        self.kreduce(ACC)
        a.wait_lg('ga')
        for d in range(10):
            a('v_pk_fma_f32 %s, %s, %s, %s' % (V(136 + 2 * d, 2), V(ACC + 2 * d, 2), V(96 + 2 * d, 2), V(136 + 2 * d, 2)))
        a.wait_lg('c2')
        for d in range(10):
            a('v_pk_mul_f32 %s, %s, %s' % (V(116 + 2 * d, 2), V(116 + 2 * d, 2), V(136 + 2 * d, 2)))
        self.pack_store(116, 20, 17, None, SW, sT[0], 256, 'sc1')
        a('v_pk_add_f32 v[32:33], v[136:137], v[138:139]')
        a('v_pk_mul_f32 v[34:35], v[136:137], v[136:137]')
        a('v_pk_fma_f32 v[34:35], v[138:139], v[138:139], v[34:35]')
        for d in range(2, 10):
            a('v_pk_add_f32 v[32:33], v[32:33], %s' % V(136 + 2 * d, 2))
            a('v_pk_fma_f32 v[34:35], %s, %s, v[34:35]' % (V(136 + 2 * d, 2), V(136 + 2 * d, 2)))
        a('v_add_f32 v32, v32, v33')
        a('v_add_f32 v33, v34, v35')
        self.rowsum([32, 33], 34)
        a('s_lshl_b32 s%d, s%d, 3' % (sT[0], sXO))
        a('s_add_u32 s%d, s%d, s%d' % (sT[0], sT[0], sCG))
        a('s_lshl_b32 s%d, s%d, 7' % (sT[0], sT[0]))
        a('s_add_u32 s%d, s%d, 0x%x' % (sT[0], sT[0], ST))
        a('v_lshlrev_b32 v18, 3, v2')
        self.exec_('0xffff', 0)
        a('buffer_store_dwordx2 v[32:33], v18, s[%d:%d], s%d offen sc1' % (SW, SW + 3, sT[0]))
        self.exec_all()
        self.stamp('p2epi')
        self.publish(FY)
        self.stamp('Ypub')
        self.b3_issue(84, 120)
        a('s_mul_i32 s%d, s%d, 5120' % (sT[0], sW))
        a('s_add_u32 s%d, s%d, %d' % (sT[0], sT[0], X1S))
        a('v_add_u32 v12, s%d, v1' % sT[0])
        for T in range(5): a('ds_write_b128 v12, %s offset:%d' % (V(136 + 4 * T, 4), 1024 * T))
    Gen.p2 = p2

    def p3(self):
        a = self.a
        self.wfrag_issue(W4T, 12, B4, 0, 6, 'b4')
        a('s_lshl_b32 s%d, s%d, 10' % (sT[0], sW))
        a('v_add_u32 v8, s%d, v1' % sT[0])
        a('s_add_u32 s%d, s%d, 4' % (sT[1], sW))
        a('s_min_u32 s%d, s%d, 5' % (sT[1], sT[1]))
        a('s_lshl_b32 s%d, s%d, 10' % (sT[0], sT[1]))
        a('v_add_u32 v9, s%d, v1' % sT[0])
        a('v_add_u32 v10, 61440, v8')
        a('v_add_u32 v11, 61440, v9')
        a('v_and_b32 v13, 1, v0')
        a('v_mul_u32_u24 v12, 1280, v13')
        a('v_lshl_add_u32 v12, v3, 4, v12')
        a('v_add_u32 v12, %d, v12' % C2B)
        a('v_mul_u32_u24 v13, 384, v13')
        a('v_lshl_add_u32 v13, v3, 4, v13')
        a('v_add_u32 v13, %d, v13' % UT)
        a('s_lshl_b32 s%d, s%d, 6' % (sT[0], sW))
        a('s_lshl_b32 s%d, s%d, 6' % (sT[1], sT[1]))
        a('v_add_u32 v14, s%d, v13' % sT[1])
        a('v_add_u32 v13, s%d, v13' % sT[0])
        a.wait_vm('b3')
        self.barrier()
        def rd(ks):
            b = 96 + 12 * (ks % 10)
            a('ds_read_b128 %s, v12 offset:%d' % (V(b, 4), 64 * ks), 'u%d' % ks)
            a('ds_read_b128 %s, v%d offset:%d' % (V(b + 4, 4), 8 + 2 * (ks // 10), 6144 * (ks % 10)), 'u%d' % ks)
            a('ds_read_b128 %s, v%d offset:%d' % (V(b + 8, 4), 9 + 2 * (ks // 10), 6144 * (ks % 10)), 'u%d' % ks)
        for ks in range(5): rd(ks)
        for ks in range(20):
            b = 96 + 12 * (ks % 10)
            a.wait_lg('u%d' % ks)
            a(self.mfma(48, b + 4, b, first=(ks == 0)))
            a(self.mfma(52, b + 8, b, first=(ks == 0)))
            if ks + 5 < 20: rd(ks + 5)
        self.exec_('0x00030003', '0x00030003')
        a('ds_write_b128 v13, v[48:51]')
        a('ds_write_b128 v14, v[52:55]')
        self.exec_all()
        self.stamp('ut')
        a('v_and_b32 v8, 7, v0')
        a('v_lshlrev_b32 v8, 7, v8')
        a('s_lshr_b32 s%d, s%d, 1' % (sT[1], sW))
        a('s_lshl_b32 s%d, s%d, 1' % (sT[0], sC))
        a('s_add_u32 s%d, s%d, s%d' % (sT[0], sT[0], sT[1]))
        a('s_lshl_b32 s%d, s%d, 10' % (sT[0], sT[0]))
        a('s_add_u32 s%d, s%d, 0x%x' % (sT[0], sT[0], FY))
        a('s_lshl_b32 s%d, s%d, 2' % (sT[5], sC))
        a('s_add_u32 s%d, s%d, s%d' % (sT[5], sT[5], sW))
        a('s_mul_i32 s%d, s%d, 40960' % (sT[2], sT[5]))
        a('s_add_u32 s%d, s%d, 0x%x' % (sT[2], sT[2], WY))
        a('s_add_u32 s%d, s%d, 20480' % (sT[3], sT[2]))
        a('s_lshl_b32 s%d, s%d, 11' % (sT[4], sT[5]))
        a('s_add_u32 s%d, s%d, 0x%x' % (sT[4], sT[4], ST))
        a('v_lshlrev_b32 v9, 3, v0')
        a('v_add_u32 v10, 61440, v1')
        BB, ACC = 24, 48
        def bread(ks, T):
            return ('ds_read_b128 %s, v%d offset:%d' % (V(BB + 4 * T, 4), 1 if ks < 10 else 10, 6144 * (ks % 10) + 1024 * T), 'B%d_%d' % (ks, T))
        for T in range(6): a(*bread(0, T))
        self.poll(8, sT[0], 13)
        self.stamp('flag')
        for ks in range(20):
            if ks in (8, 16):
                a('s_add_u32 s%d, s%d, 8192' % (sT[2], sT[2]))
                a('s_add_u32 s%d, s%d, 8192' % (sT[3], sT[3]))
            for t in range(2): self.ld(96 + 80 * t + 4 * ks, 1024 * (ks & 7), sT[2 + t], 'A%d' % ks)
        for t in range(2):
            for hh in range(2):
                a('buffer_load_dwordx2 %s, v9, s[%d:%d], s%d offen offset:%d sc1' % (V(16 + 4 * t + 2 * hh, 2), SW, SW + 3, sT[4], 1024 * t + 512 * hh), 'st')
        for ks in range(20):
            a.wait_vm('A%d' % ks)
            for T in range(6):
                a.wait_lg('B%d_%d' % (ks, T))
                for t in range(2): a(self.mfma(ACC + 24 * t + 4 * T, BB + 4 * T, 96 + 80 * t + 4 * ks, first=(ks == 0)))
                if ks + 1 < 20: a(*bread(ks + 1, T))
            if ks == 10:
                a('s_barrier')
        self.stamp('mfma')
        a('v_lshlrev_b32 v8, 4, v3')
        a('v_add_u32 v8, %d, v8' % UT)
        for T in range(6): a('ds_read_b128 %s, v8 offset:%d' % (V(96 + 4 * T, 4), 64 * T), 'U')
        for T in range(6): a('ds_read_b128 %s, v8 offset:%d' % (V(120 + 4 * T, 4), 384 + 64 * T), 'T')
        a.wait_vm('st')
        a('v_pk_add_f32 v[16:17], v[16:17], v[18:19]')
        a('v_pk_add_f32 v[20:21], v[20:21], v[22:23]')
        self.rowsum([16, 17, 20, 21], 24)
        a('s_mov_b32 s%d, 0x%x' % (sT[7], f2u(1 / 640)))
        self.finstats(16, 17, 18)
        self.finstats(20, 21, 22)
        self.chunk_of_lane(12, 13)
        a('v_lshlrev_b32 v13, 4, v2')
        a('v_lshl_add_u32 v13, v12, 8, v13')
        a('s_mul_i32 s%d, s%d, %d' % (sT[2], sT[5], 2 * 49152))
        a('s_mul_i32 s%d, s%d, 3072' % (sT[1], sJ))
        a('s_add_u32 s%d, s%d, s%d' % (sT[2], sT[2], sT[1]))
        a('s_add_u32 s%d, s%d, 0x%x' % (sT[2], sT[2], WH))
        a('s_add_u32 s%d, s%d, 49152' % (sT[3], sT[2]))
        a('s_mov_b32 s%d, 0x%x' % (sT[0], f2u(-LOG2E)))
        a('s_mov_b32 s%d, s%d' % (sT[1], sT[0]))
        a.wait_lg()
        for t in range(2):
            st = 16 + 4 * t
            for p in range(3):
                z = ACC + 24 * t + 8 * p
                e = 144 + 8 * ((3 * t + p) & 1)
                o = 160 + 4 * (3 * t + p)
                for d in range(4):
                    a('v_pk_fma_f32 %s, %s, %s, %s op_sel_hi:[1,0,1] neg_lo:[0,1,0] neg_hi:[0,1,0]' % (V(z + 2 * d, 2), V(96 + 8 * p + 2 * d, 2), V(st, 2), V(z + 2 * d, 2)))
                for d in range(4):
                    a('v_pk_fma_f32 %s, %s, %s, %s op_sel:[0,1,0] op_sel_hi:[1,1,1]' % (V(z + 2 * d, 2), V(z + 2 * d, 2), V(st, 2), V(120 + 8 * p + 2 * d, 2)))
                for d in range(4):
                    a('v_pk_mul_f32 %s, %s, s[%d:%d]' % (V(e + 2 * d, 2), V(z + 2 * d, 2), sT[0], sT[1]))
                for d in range(8): a('v_exp_f32 v%d, v%d' % (e + d, e + d))
                for d in range(4): a('v_pk_add_f32 %s, %s, 1.0 op_sel_hi:[1,0]' % (V(e + 2 * d, 2), V(e + 2 * d, 2)))
                for d in range(8): a('v_rcp_f32 v%d, v%d' % (e + d, e + d))
                for d in range(4): a('v_pk_mul_f32 %s, %s, %s' % (V(z + 2 * d, 2), V(z + 2 * d, 2), V(e + 2 * d, 2)))
                for d in range(4): a('v_cvt_pk_bf16_f32 v%d, v%d, v%d' % (o + d, z + 2 * d, z + 2 * d + 1))
                a('v_permlane16_swap_b32 v%d, v%d' % (o, o + 2))
                a('v_permlane16_swap_b32 v%d, v%d' % (o + 1, o + 3))
                a('buffer_store_dwordx4 %s, v13, s[%d:%d], s%d offen offset:%d sc1' % (V(o, 4), SW, SW + 3, sT[2 + t], 1024 * p))
        self.stamp('p3epi')
        self.publish(FH)
        self.stamp('Hpub')
    Gen.p3 = p3

    def p4(self):
        a = self.a
        self.wfrag_issue(W4T, 12, B4, 6, 12, 'b4')
        ACC = 16
        global RED
        save = RED
        RED = 0
        self.ksplit(12, WH, 49152, B4, 96, 40, ACC, FH)
        RED = save
        a('s_mul_i32 s%d, s%d, 5120' % (sT[0], sW))
        a('s_add_u32 s%d, s%d, %d' % (sT[0], sT[0], X1S))
        a('v_add_u32 v12, s%d, v1' % sT[0])
        for T in range(5): a('ds_read_b128 %s, v4 offset:%d' % (V(96 + 4 * T, 4), GB_ - SPARE + 64 * T), 'gb')
        for T in range(5): a('ds_read_b128 %s, v12 offset:%d' % (V(116 + 4 * T, 4), 1024 * T), 'gb')
        self.chunk_of_lane(8, 9)
        a('v_lshl_add_u32 v8, v8, 4, v6')
        self.kreduce(ACC)
        a.wait_lg()
        for d in range(10):
            a('v_pk_fma_f32 %s, %s, %s, %s' % (V(116 + 2 * d, 2), V(ACC + 2 * d, 2), V(96 + 2 * d, 2), V(116 + 2 * d, 2)))
        self.pack_store(116, 140, 8, None, SO, sB1, 16, '')
        self.stamp('p4epi')
    Gen.p4 = p4

    def run(self):
        self.prologue()
        self.stamp('issued')
        self.jobs()
        self.stamp('jobs')
        self.p1_pre()
        self.p1_gemm()
        self.p1_attn()
        self.p2()
        self.p3()
        self.p4()
        self.finish()
    Gen.run = run
```

```python
import sys, os, math
sys.path.insert(0, os.path.dirname(os.path.abspath(__file__)))
from asmlib import *

NAME = 'adaLN_cond__sliding_local_dilated__dense_activation_silu__prompt'

JF   = 0x1000
FO   = 0x2000
FY   = 0xA000
FH   = 0x12000
MODP = 0x20000
ST   = 0x30000
W2T  = 0x80000
W3T  = W2T + 819200
W4T  = W3T + 1966080
WO_  = W4T + 1966080
WY   = WO_ + 2621440
WH   = WY + 2621440
DBG  = WH + 6291456
WSZ  = DBG + 1024 * 256

RGN   = 38400
XST   = 17920
SPARE = 153600
MS    = SPARE
HST   = SPARE + 5120
MRED  = SPARE + 5632
SILU  = SPARE + 6656
QK    = 0
VV    = 38400
HP    = 76800
RS    = 176
RED   = 92160
X1S   = 122880
UT    = 143360
GA_, C2F, GB_, C2B, S2B = SPARE, SPARE + 2560, SPARE + 5120, SPARE + 7680, SPARE + 8960
CH0 = [0, 1, 2, 3, 8, 9, 10, 11]

sW, sC, sJ, sTAG, sCI = 3, 4, 5, 6, 7
pX, pQ, pWO, pW1, pW2, pC, pWM, pOUT, pWS = 8, 10, 12, 16, 18, 20, 22, 24, 28
SX, SQ, SW, SO, SC_, SJ = 32, 36, 40, 44, 48, 52
sRG, sCG = 30, 31
jB = [56, 58, 60]; jN = [62, 63, 64]; jP = [65, 66, 67]; jO = [68, 69, 70]
jL = [71, 72, 73]; jD = [74, 75, 76]; jS = [77, 78, 79]
sNM = 80
sMO = 81
sRB = 82
sXO = 83
sB1 = 84
sT = [86, 87, 88, 89, 90, 91, 92, 93]
sCNT = 94
sONE = 95
sHI = 96
sFAIL = 97

LOG2E = 1.4426950408889634
def f2u(x):
    import struct
    return struct.unpack('<I', struct.pack('<f', x))[0]

class Gen:
    def __init__(self, stamps=False, stop=99):
        self.a = Asm()
        self.stamps = stamps
        self.stop = stop
        self.nst = 0

    def stamp(self, name):
        if not self.stamps: return
        a = self.a
        a.c('stamp %d %s' % (self.nst, name))
        a('s_memrealtime s[98:99]')
        a.wait_lg()
        a('v_writelane_b32 v15, s98, %d' % self.nst)
        self.names = getattr(self, 'names', []) + [name]
        self.nst += 1

    def srd(self, d, p, n):
        a = self.a
        a('s_mov_b32 s%d, s%d' % (d, p))
        a('s_and_b32 s%d, s%d, 0xffff' % (d + 1, p + 1))
        a('s_mov_b32 s%d, %d' % (d + 2, n))
        a('s_mov_b32 s%d, 0x20000' % (d + 3))

    def exec_(self, lo, hi):
        self.a('s_mov_b32 exec_lo, %s' % lo)
        self.a('s_mov_b32 exec_hi, %s' % hi)
    def exec_all(self):
        self.a('s_mov_b64 exec, -1')

    def barrier(self):
        self.a.wait_lg()
        self.a('s_barrier')

    def rowsum(self, regs, tmp):
        a = self.a
        for sw in ('v_permlane32_swap_b32', 'v_permlane16_swap_b32'):
            for i, r in enumerate(regs): a('v_mov_b32 v%d, v%d' % (tmp + i, r))
            for i, r in enumerate(regs): a('%s v%d, v%d' % (sw, r, tmp + i))
            for i, r in enumerate(regs): a('v_add_f32 v%d, v%d, v%d' % (r, r, tmp + i))

    def finstats(self, s1, s2, t):
        a = self.a
        a('v_mul_f32 v%d, 0x%x, v%d' % (s1, f2u(1 / 640), s1))
        a('v_mul_f32 v%d, v%d, v%d' % (t, s1, s1))
        a('v_fma_f32 v%d, v%d, s%d, -v%d' % (s2, s2, sT[7], t))
        a('v_max_f32 v%d, 0, v%d' % (s2, s2))
        a('v_add_f32 v%d, 0x%x, v%d' % (s2, f2u(1e-5), s2))
        a('v_rsq_f32 v%d, v%d' % (s2, s2))

    def poll(self, vaddr, soff, vt):
        a = self.a
        L, D = a.newlabel('poll'), a.newlabel('pdone')
        a('s_mov_b32 s%d, 0x8000' % sCNT)
        a.label(L)
        a('buffer_load_dword v%d, v%d, s[%d:%d], s%d offen sc1' % (vt, vaddr, SW, SW + 3, soff))
        a.wait_vm()
        a('v_cmp_ne_u32 vcc, s%d, v%d' % (sTAG, vt))
        a('s_cbranch_vccz %s' % D)
        a('s_sub_u32 s%d, s%d, 1' % (sCNT, sCNT))
        a('s_cmp_lg_u32 s%d, 0' % sCNT)
        a('s_cbranch_scc1 %s' % L)
        a.label(D)

    def publish(self, base):
        a = self.a
        a.wait_vm()
        self.barrier()
        D = a.newlabel('pub')
        a('s_cmp_lg_u32 s%d, 0' % sW)
        a('s_cbranch_scc1 %s' % D)
        a('s_lshl_b32 s%d, s%d, 7' % (sT[0], sCI))
        a('s_add_u32 s%d, s%d, 0x%x' % (sT[0], sT[0], base))
        a('v_mov_b32 v14, s%d' % sTAG)
        self.exec_(1, 0)
        a.items.append(Ins('buffer_store_dword v14, off, s[%d:%d], s%d sc1' % (SW, SW + 3, sT[0])))
        self.exec_all()
        a.label(D)

    def mod_issue(self, vecs, r0, vaddr, tag):
        a = self.a
        for i, vec in enumerate(vecs):
            for p in range(2):
                a('s_mov_b32 s%d, 0x%x' % (sT[0], MODP + p * 15360 + vec * 2560))
                a('buffer_load_dwordx4 %s, v%d, s[%d:%d], s%d offen sc1' % (V(r0 + 8 * i + 4 * p, 4), vaddr, SW, SW + 3, sT[0]), tag)

    def mod_check(self, vecs, r0, vaddr, tag, t):
        a = self.a
        L, D = a.newlabel('mchk'), a.newlabel('mok')
        a.wait_vm(tag)
        a('s_mov_b32 s%d, 0x8000' % sCNT)
        a('s_mov_b32 s%d, 0x0c0c0400' % sT[1])
        a('s_mov_b32 s%d, 0x04000c0c' % sT[2])
        a.label(L)
        a('v_mov_b32 v%d, 0' % (t + 2))
        for gidx in range(2 * len(vecs)):
            r = r0 + 4 * gidx
            a('v_perm_b32 v%d, v%d, v%d, s%d' % (t, r + 1, r, sT[1]))
            a('v_perm_b32 v%d, v%d, v%d, s%d' % (t + 1, r + 3, r + 2, sT[2]))
            a('v_or_b32 v%d, v%d, v%d' % (t, t, t + 1))
            a('v_xor_b32 v%d, s%d, v%d' % (t, sTAG, t))
            a('v_or_b32 v%d, v%d, v%d' % (t + 2, t + 2, t))
        a('v_cmp_ne_u32 vcc, 0, v%d' % (t + 2))
        a('s_cbranch_vccz %s' % D)
        a('s_add_u32 s%d, s%d, 1' % (sFAIL, sFAIL))
        a('s_sub_u32 s%d, s%d, 1' % (sCNT, sCNT))
        a('s_cmp_eq_u32 s%d, 0' % sCNT)
        a('s_cbranch_scc1 %s' % D)
        save = list(a.vm)
        self.mod_issue(vecs, r0, vaddr, None)
        a('s_waitcnt vmcnt(0)')
        a.vm = save
        a('s_branch %s' % L)
        a.label(D)
        a('s_mov_b32 s%d, 0xffffff00' % sT[1])
        for i in range(len(vecs)):
            r = r0 + 8 * i
            for e in range(8): a('v_and_b32 v%d, s%d, v%d' % (r + e, sT[1], r + e))
            for e in range(4): a('v_add_f32 v%d, v%d, v%d' % (r + e, r + e, r + 4 + e))
            a('v_cvt_pk_bf16_f32 v%d, v%d, v%d' % (r, r, r + 1))
            a('v_cvt_pk_bf16_f32 v%d, v%d, v%d' % (r + 1, r + 2, r + 3))

    def unpack4(self, d, s):
        a = self.a
        a('v_lshlrev_b32 v%d, 16, v%d' % (d, s))
        a('v_and_b32 v%d, s%d, v%d' % (d + 1, sHI, s))
        a('v_lshlrev_b32 v%d, 16, v%d' % (d + 2, s + 1))
        a('v_and_b32 v%d, s%d, v%d' % (d + 3, sHI, s + 1))

    def plus1(self, r):
        a = self.a
        self.unpack4(r + 4, r)
        for e in range(4): a('v_add_f32 v%d, 1.0, v%d' % (r + 4 + e, r + 4 + e))
        a('v_cvt_pk_bf16_f32 v%d, v%d, v%d' % (r, r + 4, r + 5))
        a('v_cvt_pk_bf16_f32 v%d, v%d, v%d' % (r + 1, r + 6, r + 7))

    def mfma(self, d, wa, act, first=False):
        c = '0' if first else R(d, 4)
        return 'v_mfma_f32_16x16x32_bf16 %s, %s, %s, %s' % (R(d, 4), R(wa, 4), R(act, 4), c)

    def prologue(self):
        a = self.a
        a('s_cmp_ge_u32 s2, 256')
        a('s_cbranch_scc1 L_end')
        a('s_load_dwordx16 s[8:23], s[0:1], 0')
        a('s_load_dwordx4 s[24:27], s[0:1], 64')
        a('s_load_dwordx2 s[28:29], s[0:1], 80')
        a('v_lshrrev_b32 v1, 6, v0')
        a('v_and_b32 v0, 63, v0')
        a('v_readfirstlane_b32 s%d, v1' % sW)
        a('v_lshlrev_b32 v1, 4, v0')
        if self.stamps: a('v_mov_b32 v15, 0')
        a('s_mov_b32 s%d, 0' % sFAIL)
        a('s_and_b32 s%d, s2, 7' % sT[0])
        a('s_lshr_b32 s%d, s2, 7' % sT[1])
        a('s_lshl_b32 s%d, s%d, 1' % (sC, sT[0]))
        a('s_add_u32 s%d, s%d, s%d' % (sC, sC, sT[1]))
        a('s_bfe_u32 s%d, s2, 0x40003' % sJ)
        a('s_lshl_b32 s%d, s%d, 4' % (sCI, sC))
        a('s_add_u32 s%d, s%d, s%d' % (sCI, sCI, sJ))
        a('s_lshr_b32 s%d, s%d, 3' % (sRG, sJ))
        a('s_and_b32 s%d, s%d, 7' % (sCG, sJ))
        a('s_mov_b32 s%d, 0x3f803f80' % sONE)
        a('s_mov_b32 s%d, 0xffff0000' % sHI)
        a('s_mul_i32 s%d, s%d, %d' % (sRB, sW, RGN))
        a('s_lshl_b32 s%d, s%d, 2' % (sXO, sC))
        a('s_add_u32 s%d, s%d, s%d' % (sXO, sXO, sW))
        a('s_mul_i32 s%d, s%d, %d' % (sXO, sXO, 32 * 1280))
        a('s_mul_i32 s%d, s%d, %d' % (sB1, sW, 160 * 3840))
        a('s_mul_i32 s%d, s%d, 80' % (sT[0], sJ))
        a('s_add_u32 s%d, s%d, s%d' % (sB1, sB1, sT[0]))
        a('v_and_b32 v2, 15, v0')
        a('v_lshrrev_b32 v3, 4, v0')
        a('v_and_b32 v4, 1, v3')
        a('v_lshlrev_b32 v4, 1, v4')
        a('v_and_b32 v5, 7, v0')
        a('v_xor_b32 v4, v4, v5')
        a('v_lshlrev_b32 v4, 4, v4')
        a('v_lshrrev_b32 v5, 3, v0')
        a('v_xor_b32 v16, v2, v3')
        a('v_lshlrev_b32 v16, 4, v16')
        a('v_mov_b32 v20, 1280')
        a('v_mad_u32_u24 v16, v3, v20, v16')
        for q in range(1, 4):
            a('v_xor_b32 v%d, %d, v16' % (16 + q, 64 * q))
            a('v_add_u32 v%d, %d, v%d' % (16 + q, 4 * q * 1280, 16 + q))
        a('v_lshlrev_b32 v21, 4, v3')
        a('v_mad_u32_u24 v21, v2, v20, v21')
        a('v_mul_u32_u24 v22, 52, v0')
        a('v_lshrrev_b32 v22, 8, v22')
        a('v_mul_u32_u24 v6, 1200, v22')
        a('v_add_u32 v6, v6, v1')
        a('v_lshlrev_b32 v23, 2, v0')
        Lr, Lj = a.newlabel('relay'), a.newlabel('jobs')
        a.wait_lg()
        a('s_load_dword s%d, s[%d:%d], 0' % (sTAG, pWS, pWS + 1))
        a('s_cmp_ge_u32 s2, 120')
        a('s_cbranch_scc1 %s' % Lr)
        a('s_lshr_b32 s%d, s2, 1' % sT[0])
        a('s_and_b32 s%d, s2, 1' % sT[1])
        a('s_sub_u32 s%d, 3, s%d' % (sNM, sT[1]))
        a('s_mul_i32 s%d, s%d, s%d' % (sT[2], sNM, sW))
        a('s_mul_i32 s%d, s%d, 12' % (sT[3], sT[1]))
        a('s_add_u32 s%d, s%d, s%d' % (sT[2], sT[2], sT[3]))
        a('s_lshl_b32 s%d, s%d, 6' % (sT[6], sT[2]))
        a('s_mul_i32 s%d, s%d, %d' % (jO[0], sT[2], 32 * 7680))
        a('s_lshl_b32 s%d, s%d, 7' % (sT[3], sT[0]))
        a('s_add_u32 s%d, s%d, s%d' % (jO[0], jO[0], sT[3]))
        a('s_add_u32 s%d, s%d, %d' % (jO[1], jO[0], 32 * 7680))
        a('s_add_u32 s%d, s%d, %d' % (jO[2], jO[0], 64 * 7680))
        a('s_mul_i32 s%d, s%d, 15360' % (sMO, sT[1]))
        a('s_lshl_b32 s%d, s%d, 8' % (sT[3], sT[0]))
        a('s_add_u32 s%d, s%d, s%d' % (sMO, sMO, sT[3]))
        a('s_add_u32 s%d, s%d, 0x%x' % (sMO, sMO, MODP))
        for u in range(3):
            a('s_mov_b64 s[%d:%d], s[%d:%d]' % (jB[u], jB[u] + 1, pWM, pWM + 1))
            a('s_mov_b32 s%d, %d' % (jN[u], 640 * 7680))
            a('s_mov_b32 s%d, 7680' % jP[u])
            a('s_mov_b32 s%d, -1' % jL[u])
            a('s_mov_b32 s%d, 0' % jS[u])
            a('s_mov_b32 s%d, 0x%x' % (jD[u], W2T))
        a('s_sub_u32 s%d, s%d, 1' % (jL[2], sT[1]))
        a('s_branch %s' % Lj)
        a.label(Lr)
        a('s_mov_b32 s%d, 0' % sNM)
        a('s_mov_b32 s%d, 0' % sT[6])
        a('s_mov_b32 s%d, 0x%x' % (sMO, MODP))
        a('s_sub_u32 s%d, s2, 120' % sT[0])
        def slot(u, idx, div, mul, sh, ptr, rows, pitch, nt, dst):
            a('s_mul_i32 s%d, s%d, %d' % (sT[2], idx, mul))
            a('s_lshr_b32 s%d, s%d, %d' % (sT[2], sT[2], sh))
            a('s_mul_i32 s%d, s%d, %d' % (sT[3], sT[2], div))
            a('s_sub_u32 s%d, s%d, s%d' % (sT[3], idx, sT[3]))
            a('s_lshl_b32 s%d, s%d, 2' % (sT[3], sT[3]))
            a('s_add_u32 s%d, s%d, s%d' % (sT[3], sT[3], sW))
            a('s_mul_i32 s%d, s%d, %d' % (jO[u], sT[3], 32 * pitch))
            a('s_lshl_b32 s%d, s%d, 7' % (sT[4], sT[2]))
            a('s_add_u32 s%d, s%d, s%d' % (jO[u], jO[u], sT[4]))
            a('s_mul_i32 s%d, s%d, %d' % (jD[u], sT[3], nt * 1024))
            a('s_lshl_b32 s%d, s%d, 12' % (sT[4], sT[2]))
            a('s_add_u32 s%d, s%d, s%d' % (jD[u], jD[u], sT[4]))
            a('s_add_u32 s%d, s%d, 0x%x' % (jD[u], jD[u], dst))
            a('s_mov_b64 s[%d:%d], s[%d:%d]' % (jB[u], jB[u] + 1, ptr, ptr + 1))
            a('s_mov_b32 s%d, %d' % (jN[u], rows * pitch))
            a('s_mov_b32 s%d, %d' % (jP[u], pitch))
        for i in range(256):
            assert (i * 205) >> 10 == i // 5
        for i in range(136):
            assert (i * 171) >> 11 == i // 12
        a('s_cmp_lt_u32 s%d, 120' % sT[0])
        a('s_cselect_b32 s%d, -1, 0' % jL[0])
        a('s_cselect_b32 s%d, -1, 0' % jL[1])
        a('s_cselect_b32 s%d, s%d, 0' % (sT[1], sT[0]))
        slot(0, sT[1], 12, 171, 11, pW2, 1536, 1280, 40, W4T)
        slot(1, sT[1], 5, 205, 10, pW1, 640, 3072, 96, W3T)
        a('s_sub_u32 s%d, s%d, 86' % (sT[1], sT[0]))
        a('s_cmp_ge_u32 s%d, 86' % sT[0])
        a('s_cselect_b32 s%d, -1, 0' % jL[2])
        a('s_cselect_b32 s%d, s%d, 0' % (sT[1], sT[1]))
        slot(2, sT[1], 5, 205, 10, pWO, 640, 1280, 40, W2T)
        for u in range(3): a('s_mov_b32 s%d, s%d' % (jS[u], jL[u]))
        a.label(Lj)
        self.srd(SC_, pC, 1280)
        a('v_add_u32 v24, s%d, v23' % sT[6])
        a('buffer_load_dword v24, v24, s[%d:%d], 0 offen' % (SC_, SC_ + 3), 'c')
        a('s_mov_b32 s%d, 0x20000' % (SJ + 3))
        for u in range(3):
            a('s_mov_b32 s%d, s%d' % (SJ, jB[u]))
            a('s_and_b32 s%d, s%d, 0xffff' % (SJ + 1, jB[u] + 1))
            a('s_mov_b32 s%d, s%d' % (SJ + 2, jN[u]))
            a('v_mad_u32_u24 v25, v5, s%d, v4' % jP[u])
            a('v_xor_b32 v26, 64, v25')
            a('s_lshl_b32 s%d, s%d, 3' % (sT[0], jP[u]))
            self.exec_('s%d' % jL[u], 's%d' % jL[u])
            for q in range(4):
                a('s_add_u32 m0, s%d, %d' % (sRB, 4096 * u + 1024 * q))
                a('buffer_load_dwordx4 v%d, s[%d:%d], s%d offen nt lds' % (25 + (q & 1), SJ, SJ + 3, jO[u]), 'job%d' % u)
                if q < 3: a('s_add_u32 s%d, s%d, s%d' % (jO[u], jO[u], sT[0]))
            self.exec_all()
        self.srd(SX, pX, 2048 * 1280)
        a('s_lshl_b32 s%d, s%d, 7' % (sT[0], sC))
        a('s_max_u32 s%d, s%d, 16' % (sT[0], sT[0]))
        a('s_sub_u32 s%d, s%d, 16' % (sT[0], sT[0]))
        a('s_mul_i32 s%d, s%d, 1280' % (sT[0], sT[0]))
        a('s_mul_i32 s%d, s%d, 320' % (sT[1], sW))
        a('s_add_u32 s%d, s%d, s%d' % (sT[0], sT[0], sT[1]))
        for s in range(5):
            a('buffer_load_dwordx4 %s, v21, s[%d:%d], s%d offen offset:%d' % (V(76 + 4 * s, 4), SX, SX + 3, sT[0], 64 * s), 'halo')
        for b in range(5): self.x_issue(0, b)
        self.srd(SQ, pQ, 640 * 3840)
        self.srd(SW, pWS, WSZ)
        self.srd(SO, pOUT, 2048 * 1280)

    def x_issue(self, t, b):
        a = self.a
        for q in range(4):
            a('s_add_u32 m0, s%d, %d' % (sRB, XST + 4096 * b + 1024 * q - 256 * b))
            a('buffer_load_dwordx4 v%d, s[%d:%d], s%d offen offset:%d lds' % (16 + q, SX, SX + 3, sXO, 256 * b), 'x%d_%d' % (t, b))

    def b1_issue(self, s):
        a = self.a
        self.exec_(-1, '0x0fffffff')
        for i in range(8):
            a('s_add_u32 m0, s%d, %d' % (sRB, 7680 * s + 960 * i))
            a('s_add_u32 s%d, s%d, %d' % (sT[0], sB1, (32 * s + 4 * i) * 3840))
            a('buffer_load_dwordx4 v6, s[%d:%d], s%d offen lds' % (SQ, SQ + 3, sT[0]), 'b1_%d' % s)
        self.exec_all()

    def jobs(self):
        a = self.a
        a('v_bfe_u32 v8, v0, 2, 2')
        a('v_lshl_add_u32 v9, v3, 3, v8')
        a('v_lshlrev_b32 v9, 7, v9')
        a('v_and_b32 v8, 2, v8')
        a('v_and_b32 v10, 1, v3')
        a('v_lshl_or_b32 v8, v10, 2, v8')
        a('v_lshlrev_b32 v8, 4, v8')
        a('v_and_b32 v10, 3, v0')
        a('v_lshl_or_b32 v8, v10, 3, v8')
        a('v_add3_u32 v8, v8, v9, s%d' % sRB)
        for T in range(1, 4): a('v_xor_b32 v%d, %d, v8' % (8 + T, 32 * T))
        a('s_lshl_b32 s%d, s%d, 8' % (sT[0], sW))
        a('s_add_u32 s%d, s%d, %d' % (sT[0], sT[0], SILU))
        a('v_add_u32 v27, s%d, v23' % sT[0])
        a('v_lshl_add_u32 v12, v3, 4, s%d' % sT[0])
        a.wait_vm('c')
        a('v_lshlrev_b32 v25, 16, v24')
        a('v_and_b32 v26, s%d, v24' % sHI)
        for r in (25, 26):
            a('v_mul_f32 v%d, 0x%x, v%d' % (r + 3, f2u(-LOG2E), r))
        for r in (25, 26): a('v_exp_f32 v%d, v%d' % (r + 3, r + 3))
        for r in (25, 26): a('v_add_f32 v%d, 1.0, v%d' % (r + 3, r + 3))
        for r in (25, 26): a('v_rcp_f32 v%d, v%d' % (r + 3, r + 3))
        for r in (25, 26): a('v_mul_f32 v%d, v%d, v%d' % (r, r, r + 3))
        a('v_cvt_pk_bf16_f32 v24, v25, v26')
        a('ds_write_b32 v27, v24')
        a.wait_lg()
        a('s_add_u32 s%d, s%d, 0x9e3779b9' % (sTAG, sTAG))
        for u in range(3):
            a('ds_read_b128 %s, v12 offset:%d' % (V(240 + 4 * u, 4), 64 * u), 'silu')
        for u in range(3):
            a.wait_vm('job%d' % u)
            f = 176 + 16 * u
            for T in range(4):
                for h in range(2):
                    a('ds_read_b64_tr_b16 %s, v%d offset:%d' % (V(f + 4 * T + 2 * h, 2), 8 + T, 4096 * u + 512 * h), 'jf')
            a.wait_lg()
            Ls = a.newlabel('nomf')
            a('s_cmp_le_u32 s%d, %d' % (sNM, u))
            a('s_cbranch_scc1 %s' % Ls)
            for T in range(4): a(self.mfma(224 + 4 * T, f + 4 * T, 240 + 4 * u, first=(u == 0)))
            a.label(Ls)
            self.exec_('s%d' % jS[u], 's%d' % jS[u])
            for T in range(4):
                a('buffer_store_dwordx4 %s, v1, s[%d:%d], s%d offen offset:%d sc1' % (V(f + 4 * T, 4), SW, SW + 3, jD[u], 1024 * T), 'jst')
            self.exec_all()
        Ld = a.newlabel('nomod')
        a('s_cmp_eq_u32 s%d, 0' % sNM)
        a('s_cbranch_scc1 %s' % Ld)
        a('v_add_u32 v12, %d, v12' % (MRED - SILU))
        self.exec_('0x00010001', '0x00010001')
        a('s_nop 7')
        for T in range(4): a('ds_write_b128 v12, %s offset:%d' % (V(224 + 4 * T, 4), 64 * T))
        self.exec_all()
        self.barrier()
        a('s_cmp_lg_u32 s%d, 0' % sW)
        a('s_cbranch_scc1 %s' % Ld)
        a('v_lshlrev_b32 v12, 4, v2')
        a('v_add_u32 v13, %d, v12' % MRED)
        for i in range(4): a('ds_read_b128 %s, v13 offset:%d' % (V(224 + 4 * i, 4), 256 * i))
        a('s_mov_b32 s%d, 0xffffff00' % sT[0])
        for e in range(4): a('s_bfe_u32 s%d, s%d, 0x%x' % (sT[1 + e], sTAG, 0x80000 + 8 * e))
        a.wait_lg()
        for e in range(4):
            a('v_add_f32 v%d, v%d, v%d' % (224 + e, 224 + e, 228 + e))
            a('v_add_f32 v%d, v%d, v%d' % (232 + e, 232 + e, 236 + e))
            a('v_add_f32 v%d, v%d, v%d' % (224 + e, 224 + e, 232 + e))
            a('v_and_b32 v%d, s%d, v%d' % (224 + e, sT[0], 224 + e))
            a('v_or_b32 v%d, s%d, v%d' % (224 + e, sT[1 + e], 224 + e))
        self.exec_('0xffff', 0)
        a.items.append(Ins('buffer_store_dwordx4 v[224:227], v12, s[%d:%d], s%d offen sc1' % (SW, SW + 3, sMO)))
        self.exec_all()
        a.label(Ld)

    def xread(self, t, b, acc):
        a = self.a
        a.wait_vm('x%d_%d' % (t, b))
        for k in range(4):
            a('ds_read_b128 %s, v%d offset:%d' % (V(96 + 80 * t + 16 * b + 4 * k, 4), 8 + k, 4096 * b), 'xr')
        a.wait_lg()
    def xstats(self, r0, n, s1, s2):
        a = self.a
        for d in range(n):
            a('v_dot2c_f32_bf16 v%d, s%d, v%d' % (s1, sONE, r0 + d))
            a('v_dot2c_f32_bf16 v%d, v%d, v%d' % (s2, r0 + d, r0 + d))
    def xnorm(self, r0, n, rs, t):
        a = self.a
        for d in range(n):
            tt = t + 2 * (d & 1)
            a('v_lshlrev_b32 v%d, 16, v%d' % (tt, r0 + d))
            a('v_and_b32 v%d, s%d, v%d' % (tt + 1, sHI, r0 + d))
            a('v_pk_fma_f32 %s, %s, %s, %s op_sel:[0,0,1] op_sel_hi:[1,0,1]' % (V(tt, 2), V(tt, 2), V(rs, 2), V(rs, 2)))
            a('v_cvt_pk_f16_f32 v%d, v%d, v%d' % (r0 + d, tt, tt + 1))
    def stats_to_rs(self, s1, s2, rs, t):
        a = self.a
        self.finstats(s1, s2, t)
        a('v_mov_b32 v%d, v%d' % (rs, s2))
        a('v_mul_f32 v%d, -v%d, v%d' % (rs + 1, s1, s2))

    def p1_pre(self):
        a = self.a
        self.b1_issue(0)
        a('s_mov_b32 s%d, 0x%x' % (sT[7], f2u(1 / 640)))
        a('v_xor_b32 v8, v2, v3')
        a('v_lshlrev_b32 v8, 4, v8')
        a('v_lshl_or_b32 v8, v2, 8, v8')
        for k in range(1, 4): a('v_xor_b32 v%d, %d, v8' % (8 + k, 64 * k))
        a('s_add_u32 s%d, s%d, %d' % (sT[0], sRB, XST))
        for k in range(4): a('v_add_u32 v%d, s%d, v%d' % (8 + k, sT[0], 8 + k))
        a('v_min_u32 v7, 39, v0')
        a('s_mul_i32 s%d, s%d, 40' % (sT[0], sW))
        a('v_add_lshl_u32 v7, v7, s%d, 4' % sT[0])
        for r in (24, 25, 26, 27): a('v_mov_b32 v%d, 0' % r)
        a.wait_vm('halo')
        self.xstats(76, 20, 24, 25)
        self.rowsum([24, 25], 28)
        a('s_lshl_b32 s%d, s%d, 7' % (sT[0], sW))
        a('s_add_u32 s%d, s%d, %d' % (sT[0], sT[0], HST))
        a('v_lshl_add_u32 v12, v2, 3, s%d' % sT[0])
        a('ds_write_b64 v12, v[24:25]')
        a('s_add_u32 s%d, s%d, %d' % (sXO, sXO, 16 * 1280))
        for b in range(5):
            self.xread(0, b, None)
            self.x_issue(1, b)
            self.xstats(96 + 16 * b, 16, 26, 27)
        self.stamp('x0read')
        self.mod_issue([0, 1], 44, 7, 'mod')
        self.b1_issue(1)
        self.rowsum([26, 27], 28)
        self.stats_to_rs(26, 27, 30, 28)
        self.xnorm(96, 80, 30, 32)
        a('s_barrier')
        a('v_lshlrev_b32 v12, 3, v2')
        a('v_add_u32 v12, %d, v12' % HST)
        for i in range(4): a('ds_read_b64 %s, v12 offset:%d' % (V(36 + 2 * i, 2), 128 * i))
        a('v_mov_b32 v26, 0')
        a('v_mov_b32 v27, 0')
        for b in range(5):
            self.xread(1, b, None)
            if b == 1: self.b1_issue(2)
            if b == 3: self.b1_issue(3)
            if b == 4: self.b1_issue(4)
            self.xstats(176 + 16 * b, 16, 26, 27)
        self.stamp('x1read')
        a('v_pk_add_f32 v[36:37], v[36:37], v[38:39]')
        a('v_pk_add_f32 v[40:41], v[40:41], v[42:43]')
        a('v_pk_add_f32 v[24:25], v[36:37], v[40:41]')
        self.stats_to_rs(24, 25, 30, 28)
        self.xnorm(76, 20, 30, 32)
        self.rowsum([26, 27], 28)
        self.stats_to_rs(26, 27, 30, 28)
        self.xnorm(176, 80, 30, 32)
        self.stamp('xnorm')
        self.mod_check([0, 1], 44, 7, 'mod', 28)
        self.plus1(52)
        self.unpack4(48, 44)
        self.unpack4(56, 52)
        a('v_and_b32 v12, 16, v7')
        a('v_lshlrev_b32 v13, 1, v7')
        a('v_sub_u32 v12, v13, v12')
        a('v_add_u32 v12, %d, v12' % MS)
        a('ds_write_b128 v12, v[56:59]')
        a('ds_write_b128 v12, v[48:51] offset:32')
        self.stamp('modok')

    def p1_gemm(self):
        a = self.a
        ACC, HACC, BB, HB = 256, 256 + 64, 256 + 92, 256 + 124
        a('v_bfe_u32 v8, v0, 2, 2')
        a('v_lshl_add_u32 v8, v3, 3, v8')
        a('v_mul_u32_u24 v8, 240, v8')
        a('v_and_b32 v9, 2, v0')
        a('v_lshl_add_u32 v8, v9, 5, v8')
        a('v_and_b32 v9, 1, v0')
        a('v_lshl_add_u32 v8, v9, 3, v8')
        for i in range(1, 4): a('v_add_u32 v%d, %d, v8' % (8 + i, RGN * i))
        a('v_add_u32 v12, s%d, v8' % sRB)
        a('v_lshlrev_b32 v13, 6, v3')
        a('v_add_u32 v13, %d, v13' % MS)
        a('s_mul_i32 s%d, s%d, 1280' % (sT[0], sW))
        a('v_add_u32 v14, s%d, v13' % sT[0])
        steps = [(s, i) for s in range(5) for i in range(4)]
        ksof = lambda n: 5 * steps[n][1] + steps[n][0]
        def bread(n, T, h):
            s, i = steps[n]
            return ('ds_read_b64_tr_b16 %s, v%d offset:%d' % (R(BB + 4 * T + 2 * h, 2), 8 + i, 7680 * s + 960 * h + 16 * CH0[T]), 'B%d_%d' % (n, T))
        def hread(s, T, h):
            return ('ds_read_b64_tr_b16 %s, v12 offset:%d' % (R(HB + 4 * (T - 1) + 2 * h, 2), 7680 * s + 960 * h + 16 * CH0[T]), 'HB%d' % s)
        def msread(n):
            b = 44 + 16 * (n & 1)
            return [('ds_read_b128 %s, v13 offset:%d' % (V(b + 4 * x, 4), 256 * ksof(n) + 16 * x), 'MS%d' % n) for x in range(4)]
        def hmsread(s):
            return [('ds_read_b128 %s, v14 offset:%d' % (V(28 + 4 * x, 4), 256 * s + 16 * x), 'HMS%d' % s) for x in range(4)]
        def modulate(r0, b, tsel):
            o = []
            for d in range(4):
                t = 20 + 2 * ((d + tsel) & 3)
                o.append('v_fma_mix_f32 v%d, v%d, v%d, v%d op_sel:[0,0,0] op_sel_hi:[1,0,0]' % (t, r0 + d, b + 2 * d, b + 8 + 2 * d))
                o.append('v_fma_mix_f32 v%d, v%d, v%d, v%d op_sel:[1,0,0] op_sel_hi:[1,0,0]' % (t + 1, r0 + d, b + 2 * d + 1, b + 9 + 2 * d))
                o.append('v_cvt_pk_bf16_f32 v%d, v%d, v%d' % (r0 + d, t, t + 1))
            return o
        def modmain(n):
            b = 44 + 16 * (n & 1)
            return modulate(96 + 4 * ksof(n), b, 0) + modulate(176 + 4 * ksof(n), b, 0)
        a.wait_vm('b1_0')
        self.barrier()
        self.jobflag()
        self.stamp('gemm0')
        for x in msread(0): a(*x)
        for T in range(8):
            for h in range(2): a(*bread(0, T, h))
        a.wait_lg('MS0')
        for x in modmain(0): a(x)
        for x in msread(1): a(*x)
        for n in range(20):
            s, i = steps[n]
            ks = ksof(n)
            if i == 3 and s < 4:
                a.wait_vm('b1_%d' % (s + 1))
                a('s_barrier')
            fill = []
            if n + 1 < 20:
                fill.append(('w', 'MS%d' % (n + 1)))
                fill += [('v', x) for x in modmain(n + 1)]
            if n + 2 < 20:
                fill += [('d', x) for x in msread(n + 2)]
            extra = []
            if i == 0:
                extra = [('d', x) for x in hmsread(s)] + [('d', hread(s, T, h)) for T in range(1, 8) for h in range(2)]
            if i == 1:
                extra = [('w', 'HMS%d' % s)] + [('v', x) for x in modulate(76 + 4 * s, 28, 2)]
            if i == 2:
                extra = [('w', 'HB%d' % s)] + [('m', self.mfma(HACC + 4 * (T - 1), HB + 4 * (T - 1), 76 + 4 * s, first=(s == 0))) for T in range(1, 8)]
            if i == 3 and s == 4:
                extra = [('hp', T) for T in range(7)]
            if extra and extra[0][0] == 'hp':
                a('s_mul_i32 s%d, s%d, 7168' % (sT[0], sW))
                a('s_add_u32 s%d, s%d, %d' % (sT[0], sT[0], HP))
                a('v_add_u32 v16, s%d, v1' % sT[0])
            fill = fill + extra if i != 0 else extra + fill
            nslots = 16
            per = -(-len([f for f in fill if f[0] != 'w']) // nslots)
            def emit_fill(k):
                c = 0
                while fill and c < k:
                    kind, x = fill.pop(0)
                    if kind == 'w': a.wait_lg(x); continue
                    if kind == 'd': a(*x)
                    elif kind == 'hp': a('ds_write_b128 v16, %s offset:%d' % (R(HACC + 4 * x, 4), 1024 * x))
                    else: a(x)
                    c += 1
            for T in range(8):
                a.wait_lg('B%d_%d' % (n, T))
                for t in range(2):
                    a(self.mfma(ACC + 32 * t + 4 * T, BB + 4 * T, 96 + 80 * t + 4 * ks, first=(n == 0)))
                    if t == 1 and n + 1 < 20:
                        a(*bread(n + 1, T, 0)); a(*bread(n + 1, T, 1))
                    emit_fill(per)
            emit_fill(99)
        self.stamp('gemm1')

    def p1_attn(self):
        a = self.a
        ACC = 256
        a('s_lshl_b32 s%d, s%d, 5' % (sT[0], sW))
        a('s_add_u32 s%d, s%d, 16' % (sT[0], sT[0]))
        a('v_add_u32 v18, s%d, v2' % sT[0])
        a('v_mul_u32_u24 v18, %d, v18' % RS)
        a('v_lshrrev_b32 v19, 1, v3')
        a('v_and_b32 v20, 1, v3')
        a('v_lshlrev_b32 v19, 3, v19')
        a('v_add_u32 v19, v19, v20')
        a('v_lshl_add_u32 v16, v19, 3, v18')
        a('v_lshl_add_u32 v17, v19, 4, v18')
        if QK: a('v_add_u32 v16, %d, v16' % QK)
        a('v_add_u32 v17, %d, v17' % (VV - 64))
        for t in range(2):
            a('ds_write_b128 v17, %s offset:%d' % (R(ACC + 32 * t + 24, 4), 16 * RS * t + 64))
        for t in range(2):
            for T in range(6):
                r = 32 + 24 * t + 4 * T
                for e in range(4): a('v_accvgpr_read_b32 v%d, %s' % (r + e, R(ACC + 32 * t + 4 * T + e)))
                a('v_cvt_pk_bf16_f32 v%d, v%d, v%d' % (r, r, r + 1))
                a('v_cvt_pk_bf16_f32 v%d, v%d, v%d' % (r + 1, r + 2, r + 3))
                if T < 4: a('ds_write_b64 v16, %s offset:%d' % (V(r, 2), 16 * RS * t + 16 * CH0[T]))
        self.exec_(-1, 0)
        for t in range(2):
            for T in (4, 5): a('ds_write_b64 v16, %s offset:%d' % (V(32 + 24 * t + 4 * T, 2), 16 * RS * t + 16 * CH0[T]))
            a('ds_write_b128 v17, %s offset:%d' % (R(ACC + 32 * t + 28, 4), 16 * RS * t + 96))
        self.exec_(0, -1)
        for t in range(2):
            for T in (4, 5): a('ds_write_b128 v17, %s offset:%d' % (R(ACC + 32 * t + 4 * T, 4), 16 * RS * t + 32 * (T - 4)))
        self.exec_all()
        a('s_lshl_b32 s%d, s%d, 2' % (sT[0], sW))
        a('v_add_u32 v18, s%d, v3' % sT[0])
        a('v_min_u32 v18, 9, v18')
        a('v_lshrrev_b32 v19, 1, v18')
        a('v_and_b32 v20, 1, v18')
        a('v_lshlrev_b32 v20, 8, v20')
        a('v_lshl_add_u32 v20, v2, 4, v20')
        a('v_lshl_add_u32 v20, v19, 10, v20')
        a('v_mov_b32 v21, %d' % (HP + 512))
        a('v_mov_b32 v22, %d' % HP)
        a('v_cmp_gt_u32 vcc, 3, v19')
        a('v_cndmask_b32 v21, v22, v21, vcc')
        a('v_add_u32 v21, v21, v20')
        a('v_mov_b32 v22, %d' % (HP + 5 * 1024))
        a('v_mov_b32 v23, %d' % (HP + 1024 + 512))
        a('v_cmp_gt_u32 vcc, 2, v19')
        a('v_cndmask_b32 v22, v23, v22, vcc')
        a('v_add_u32 v22, v22, v20')
        a('v_mul_u32_u24 v23, %d, v2' % RS)
        a('v_lshl_add_u32 v24, v18, 4, v23')
        a('v_lshl_add_u32 v23, v18, 3, v23')
        self.barrier()
        for i in range(4): a('ds_read_b128 %s, v21 offset:%d' % (V(32 + 4 * i, 4), 7168 * i), 'hk')
        for i in range(4): a('ds_read_b128 %s, v22 offset:%d' % (V(48 + 4 * i, 4), 7168 * i), 'hv')
        a('v_and_b32 v4, 31, v0')
        a('v_lshrrev_b32 v5, 5, v0')
        a('s_lshl_b32 s%d, s%d, 5' % (sT[0], sW))
        a('s_add_u32 s%d, s%d, 2' % (sT[0], sT[0]))
        a('v_add_u32 v8, s%d, v4' % sT[0])
        a('v_mul_u32_u24 v8, %d, v8' % RS)
        a('v_lshl_add_u32 v9, v5, 3, v8')
        a('v_lshl_add_u32 v11, v5, 4, v8')
        a('v_mul_u32_u24 v10, 48, v5')
        a('v_lshl_add_u32 v12, v10, 1, v8')
        a('v_add_u32 v8, v8, v10')
        a('v_add_u32 v11, %d, v11' % VV)
        a('v_add_u32 v12, %d, v12' % VV)
        for base, tg in ((32, 'hk'), (48, 'hv')):
            a.wait_lg(tg)
            for hh in (0, 2):
                a('v_pk_add_f32 %s, %s, %s' % (V(base + hh, 2), V(base + hh, 2), V(base + 4 + hh, 2)))
                a('v_pk_add_f32 %s, %s, %s' % (V(base + 8 + hh, 2), V(base + 8 + hh, 2), V(base + 12 + hh, 2)))
                a('v_pk_add_f32 %s, %s, %s' % (V(base + hh, 2), V(base + hh, 2), V(base + 8 + hh, 2)))
        a('v_cvt_pk_bf16_f32 v32, v32, v33')
        a('v_cvt_pk_bf16_f32 v33, v34, v35')
        a('ds_write_b64 v23, v[32:33] offset:%d' % (QK + 80))
        a('ds_write_b128 v24, v[48:51] offset:%d' % VV)
        self.barrier()
        self.stamp('staged')
        Q, K, Vr, Sx, O = 16, 28, 108, 240, 16
        reads = []
        def rd3(dst, off, tag):
            reads.append(('ds_read_b128 %s, v8 offset:%d' % (V(dst, 4), QK + off), tag))
            reads.append(('ds_read_b128 %s, v8 offset:%d' % (V(dst + 4, 4), QK + off + 16), tag))
            reads.append(('ds_read_b64 %s, v9 offset:%d' % (V(dst + 8, 2), QK + off + 32), tag))
        rd3(Q, 14 * RS, 'k0')
        for wi in range(8): rd3(K + 10 * wi, (14 - 2 * wi) * RS + 80, 'k%d' % wi)
        vreg = lambda wi: (Vr + 20 * wi) if wi < 6 else (K + 20 * (wi - 6))
        for wi in range(8):
            for x in range(4): reads.append(('ds_read_b128 %s, v12 offset:%d' % (V(vreg(wi) + 4 * x, 4), (14 - 2 * wi) * RS + 16 * x), 'v%d' % wi))
            reads.append(('ds_read_b128 %s, v11 offset:%d' % (V(vreg(wi) + 16, 4), (14 - 2 * wi) * RS + 64), 'v%d' % wi))
        def issue(k, lim=None):
            c = 0
            while reads and c < k and not (lim and reads[0][1] in lim):
                a(*reads.pop(0)); c += 1
        issue(15)
        for wi in range(8):
            a.wait_lg('k%d' % wi)
            for d in range(10):
                if d == 0: a('v_dot2_f32_bf16 v%d, v%d, v%d, 0' % (Sx + wi, Q, K + 10 * wi))
                else: a('v_dot2_f32_bf16 v%d, v%d, v%d, v%d' % (Sx + wi, Q + d, K + 10 * wi + d, Sx + wi))
                if d % 2 == 1 and d < 9: issue(1, ('v6', 'v7'))
        Lm = a.newlabel('nomask')
        a('s_or_b32 s%d, s%d, s%d' % (sT[0], sC, sW))
        a('s_cmp_lg_u32 s%d, 0' % sT[0])
        a('s_cbranch_scc1 %s' % Lm)
        a('v_mov_b32 v26, 0x%x' % f2u(-1e9 * math.sqrt(20.0)))
        a('s_nop 2')
        for wi in range(1, 8):
            a('v_cmp_le_u32 vcc, %d, v4' % (2 * wi))
            a('v_cndmask_b32 v%d, v26, v%d, vcc' % (Sx + wi, Sx + wi))
        a.label(Lm)
        a('s_nop 2')
        cs = LOG2E / math.sqrt(20.0)
        a('s_mov_b32 s%d, 0x%x' % (sT[1], f2u(cs)))
        a('v_max3_f32 v26, v%d, v%d, v%d' % (Sx, Sx + 1, Sx + 2)); issue(1)
        a('v_max3_f32 v27, v%d, v%d, v%d' % (Sx + 3, Sx + 4, Sx + 5)); issue(1)
        a('v_max3_f32 v26, v26, v%d, v%d' % (Sx + 6, Sx + 7)); issue(1)
        a('v_max_f32 v26, v26, v27'); issue(1)
        for wi in range(8): a('v_sub_f32 v%d, v%d, v26' % (Sx + wi, Sx + wi)); issue(1)
        for wi in range(8): a('v_mul_f32 v%d, s%d, v%d' % (Sx + wi, sT[1], Sx + wi)); issue(1)
        for wi in range(8): a('v_exp_f32 v%d, v%d' % (Sx + wi, Sx + wi)); issue(1)
        a('v_pk_add_f32 v[26:27], %s, %s' % (V(Sx, 2), V(Sx + 2, 2)))
        a('v_pk_add_f32 v[248:249], %s, %s' % (V(Sx + 4, 2), V(Sx + 6, 2)))
        a('v_pk_add_f32 v[26:27], v[26:27], v[248:249]')
        a('v_add_f32 v248, v26, v27')
        a('v_rcp_f32 v248, v248')
        OA = 68
        for wi in range(8):
            issue(5)
            a.wait_lg('v%d' % wi)
            sel = wi & 1
            pr = V(Sx + (wi & ~1), 2)
            for d in range(10):
                if wi == 0: a('v_pk_mul_f32 %s, %s, %s op_sel:[0,%d] op_sel_hi:[1,%d]' % (V(OA + 2 * d, 2), V(vreg(wi) + 2 * d, 2), pr, sel, sel))
                else: a('v_pk_fma_f32 %s, %s, %s, %s op_sel:[0,%d,0] op_sel_hi:[1,%d,1]' % (V(OA + 2 * d, 2), V(vreg(wi) + 2 * d, 2), pr, V(OA + 2 * d, 2), sel, sel))
        assert not reads
        a('v_lshlrev_b32 v8, 4, v2')
        a('v_bfe_u32 v9, v0, 4, 1')
        a('v_mul_u32_u24 v9, 20480, v9')
        a('v_add_u32 v8, v8, v9')
        a('v_lshl_add_u32 v9, v5, 3, v8')
        a('v_mul_u32_u24 v10, 768, v5')
        a('v_add_u32 v8, v8, v10')
        a('s_lshl_b32 s%d, s%d, 2' % (sT[0], sC))
        a('s_add_u32 s%d, s%d, s%d' % (sT[0], sT[0], sW))
        a('s_mul_i32 s%d, s%d, 40960' % (sT[0], sT[0]))
        a('s_mul_i32 s%d, s%d, 1280' % (sT[1], sJ))
        a('s_add_u32 s%d, s%d, s%d' % (sT[0], sT[0], sT[1]))
        a('s_add_u32 s%d, s%d, 0x%x' % (sT[0], sT[0], WO_))
        for d in range(10):
            a('v_pk_mul_f32 %s, %s, v[248:249] op_sel_hi:[1,0]' % (V(OA + 2 * d, 2), V(OA + 2 * d, 2)))
            a('v_cvt_pk_bf16_f32 v%d, v%d, v%d' % (O + d, OA + 2 * d, OA + 2 * d + 1))
            if d == 3: a('buffer_store_dwordx4 %s, v8, s[%d:%d], s%d offen sc1' % (V(O, 4), SW, SW + 3, sT[0]))
            if d == 7: a('buffer_store_dwordx4 %s, v8, s[%d:%d], s%d offen offset:256 sc1' % (V(O + 4, 4), SW, SW + 3, sT[0]))
        a('buffer_store_dwordx2 %s, v9, s[%d:%d], s%d offen offset:512 sc1' % (V(O + 8, 2), SW, SW + 3, sT[0]))
        self.stamp('attn')
        self.publish(FO)
        self.stamp('Opub')

    def jobflag(self):
        a = self.a
        D = a.newlabel('jf')
        a('s_or_b32 s%d, s%d, s%d' % (sT[0], sW, sNM))
        a('s_cmp_lg_u32 s%d, 0' % sT[0])
        a('s_cbranch_scc1 %s' % D)
        a('s_lshl_b32 s%d, s2, 2' % sT[0])
        a('s_add_u32 s%d, s%d, 0x%x' % (sT[0], sT[0], JF - 480))
        a('v_mov_b32 v20, s%d' % sTAG)
        self.exec_(1, 0)
        a.items.append(Ins('buffer_store_dword v20, off, s[%d:%d], s%d sc1' % (SW, SW + 3, sT[0])))
        self.exec_all()
        a.label(D)

    def finish(self):
        a = self.a
        D = a.newlabel('ep')
        a('s_or_b32 s%d, s2, s%d' % (sT[0], sW))
        a('s_cmp_lg_u32 s%d, 0' % sT[0])
        a('s_cbranch_scc1 %s' % D)
        a('v_mov_b32 v14, s%d' % sTAG)
        self.exec_(1, 0)
        a('buffer_store_dword v14, off, s[%d:%d], 0 sc1' % (SW, SW + 3))
        self.exec_all()
        a.label(D)
        if self.stamps:
            a.wait_vm()
            self.stamp('end')
            a('v_writelane_b32 v15, s%d, 63' % sFAIL)
            a('s_lshl_b32 s%d, s2, 2' % sT[0])
            a('s_add_u32 s%d, s%d, s%d' % (sT[0], sT[0], sW))
            a('s_lshl_b32 s%d, s%d, 8' % (sT[0], sT[0]))
            a('s_add_u32 s%d, s%d, 0x%x' % (sT[0], sT[0], DBG))
            a('v_lshlrev_b32 v14, 2, v0')
            a('buffer_store_dword v15, v14, s[%d:%d], s%d offen' % (SW, SW + 3, sT[0]))
        a.label('L_end')
        a('s_endpgm')

from gen2 import add_phases
add_phases(Gen, globals())

def build(stamps=False, stop=99):
    g = Gen(stamps, stop)
    g.run()
    body = g.a.finish()
    hdr = '''; fused adaLN block: persistent single launch, 256 workgroups (one per CU)
; @launch grid=(256,1,1) block=(256,1,1) lds=163840
.amdgcn_target "amdgcn-amd-amdhsa--gfx950"
.text
.globl {n}_kernel
.p2align 8
.type {n}_kernel,@function
{n}_kernel:
'''.format(n=NAME)
    tail = '''
.section .rodata,"a"
.p2align 6
.amdhsa_kernel {n}_kernel
  .amdhsa_next_free_vgpr 512
  .amdhsa_next_free_sgpr 102
  .amdhsa_accum_offset 256
  .amdhsa_group_segment_fixed_size 0
  .amdhsa_kernarg_size 88
  .amdhsa_user_sgpr_count 2
  .amdhsa_user_sgpr_kernarg_segment_ptr 1
  .amdhsa_system_sgpr_workgroup_id_x 1
.end_amdhsa_kernel
'''.format(n=NAME)
    return hdr + body + tail, g

if __name__ == '__main__':
    out = sys.argv[1] if len(sys.argv) > 1 else 'cdna_kernels/%s.s' % NAME
    txt, g = build(False)
    open(out, 'w').write(txt)
    txt2, g2 = build(True)
    open('dbg.s', 'w').write(txt2)
    open('dbg.names', 'w').write('\n'.join(g2.names))
    print('written', out, len(txt), 'bytes; nops', g.a.npad)
```

```python
from asmlib import *

def add_phases(Gen, G):
    globals().update({k: v for k, v in G.items() if not k.startswith('__')})

    B2 = 256 + 156
    B4 = 256 + 16
    UA = 256

    def ld(self, dst, off, soff, tag, pol='sc1'):
        va = 1 if off < 4096 else 5
        self.a('buffer_load_dwordx4 %s, v%d, s[%d:%d], s%d offen offset:%d %s' % (R(dst, 4), va, SW, SW + 3, soff, off & 4095, pol), tag)
    Gen.ld = ld

    def jf_issue(self):
        a = self.a
        a('v_and_b32 v13, 0x1f0, v1')
        a('v_add_u32 v13, 0x%x, v13' % JF)
        a('buffer_load_dwordx4 v[252:255], v13, s[%d:%d], 0 offen sc1' % (SW, SW + 3), 'jf')
    Gen.jf_issue = jf_issue

    def jf_check(self):
        a = self.a
        L, C, D = a.newlabel('jchk'), a.newlabel('jcold'), a.newlabel('jok')
        a('s_mov_b32 s%d, 0x8000' % sCNT)
        a.wait_vm('jf')
        a.label(L)
        for e in range(4): a('v_xor_b32 v%d, s%d, v%d' % (252 + e, sTAG, 252 + e))
        a('v_or3_b32 v252, v252, v253, v254')
        a('v_or_b32 v252, v252, v255')
        a('v_cmp_ne_u32 vcc, 0, v252')
        a('s_cbranch_vccnz %s' % C)
        a.label(D)
        def cold():
            a.label(C)
            a('s_add_u32 s%d, s%d, 0x10000' % (sFAIL, sFAIL))
            a('s_sub_u32 s%d, s%d, 1' % (sCNT, sCNT))
            a('s_cmp_eq_u32 s%d, 0' % sCNT)
            a('s_cbranch_scc1 %s' % D)
            a('buffer_load_dwordx4 v[252:255], v13, s[%d:%d], 0 offen sc1' % (SW, SW + 3))
            a('s_waitcnt vmcnt(0)')
            a('s_branch %s' % L)
        self.cold.append(cold)
    Gen.jf_check = jf_check

    def wq(self, sreg, dst, k0, k1, lvl, name):
        a = self.a
        for k in range(k0, k1):
            for T in range(5):
                def f(k=k, T=T):
                    self.ld(dst + 20 * k + 4 * T, 1024 * T, sreg, name, self.o['wpol'])
                    if T == 4: a('s_add_u32 s%d, s%d, 40960' % (sreg, sreg))
                self.fq.append((lvl, f, name))
    Gen.wq = wq

    def b3q(self, b0, b1, lvl, name):
        a = self.a
        for blk in range(b0, b1):
            for e in range(3):
                def f(blk=blk, e=e):
                    if e == 0: a('s_add_u32 m0, s%d, %d' % (sB3M, 12288 * blk))
                    a('buffer_load_dwordx4 v%d, s[%d:%d], s%d offen offset:%d %s lds' % (164 + e, S1, S1 + 3, sP[11], 1024 * e, self.o['w1pol']), name)
                    if e == 2: a('s_add_u32 s%d, s%d, 196608' % (sP[11], sP[11]))
                self.fq.append((lvl, f, name))
    Gen.b3q = b3q

    def w_addr(self):
        a = self.a
        a('s_mul_i32 s%d, s%d, 5120' % (sT[2], sCG))
        a('s_mul_i32 s%d, s%d, %d' % (sT[3], sW, 5 * 40960))
        a('s_add_u32 s%d, s%d, s%d' % (sP[10], sT[2], sT[3]))
        a('s_add_u32 s%d, s%d, 0x%x' % (sP[10], sP[10], W2T))
        a('s_mul_i32 s%d, s%d, %d' % (sT[3], sW, 12 * 40960))
        a('s_add_u32 s%d, s%d, s%d' % (sB4O, sT[2], sT[3]))
        a('s_add_u32 s%d, s%d, 0x%x' % (sB4O, sB4O, W4T))
        self.srd(S1, pW1, 640 * 3072)
        a('s_mul_i32 s%d, s%d, 3072' % (sB3M, sW))
        a('s_mul_i32 s%d, s%d, 192' % (sT[3], sJ))
        a('s_lshl4_add_u32 s%d, s%d, s%d' % (sP[11], sB3M, sT[3]))
        for e in range(3):
            a('v_add_u32 v148, %d, v0' % (64 * e))
            a('v_mul_u32_u24 v149, 171, v148')
            a('v_lshrrev_b32 v149, 11, v149')
            a('v_mul_u32_u24 v150, 12, v149')
            a('v_sub_u32 v148, v148, v150')
            a('v_lshrrev_b32 v150, 2, v149')
            a('v_and_b32 v150, 2, v150')
            a('v_xor_b32 v148, v148, v150')
            a('v_mul_u32_u24 v149, 3072, v149')
            a('v_lshl_add_u32 v%d, v148, 4, v149' % (164 + e))
            if e: a('v_subrev_u32 v%d, %d, v%d' % (164 + e, 1024 * e, 164 + e))
    Gen.w_addr = w_addr

    def touch2(self, va, vt, stride, nl, soff):
        a = self.a
        def pre():
            a('v_lshrrev_b32 v%d, 5, v0' % vt)
            a('v_mul_u32_u24 v%d, %d, v%d' % (vt, stride - 4096, vt))
            a('v_lshl_add_u32 v%d, v0, 7, v%d' % (va, vt))
        def go():
            m = '0x%x' % ((1 << nl) - 1)
            self.exec_(m, m if stride > 4096 else 0)
            a('buffer_load_dword v%d, v%d, s[%d:%d], s%d offen sc1' % (vt, va, SW, SW + 3, soff))
            self.exec_all()
        return pre, go
    Gen.touch2 = touch2

    def touches(self, where):
        a = self.a
        L = []
        for k, (srd, base, per, off, hi) in dict(t2=(SW, W2T, 6400, 0, 0x3ffff), t3a=(S1, 0, 15360, 0, 0xfffffff), t3b=(S1, 0, 15360, 7680, 0xfffffff),
                                                 t4a=(SW, W4T, 15360, 0, 0xfffffff), t4b=(SW, W4T, 15360, 7680, 0xfffffff)).items():
            if self.o[k] != where: continue
            def f(srd=srd, base=base, per=per, off=off, hi=hi):
                a('s_mul_i32 s%d, s%d, %d' % (sJ1, sTQ, per))
                a('s_add_u32 s%d, s%d, 0x%x' % (sJ1, sJ1, base + off))
                a('s_mov_b32 exec_hi, 0x%x' % hi)
                a('buffer_load_dword v%d, v167, s[%d:%d], s%d offen sc1' % (50 if where == 'y' else 168, srd, srd + 3, sJ1))
                a('s_mov_b32 exec_hi, -1')
            L.append(f)
        return L
    Gen.touches = touches

    def queue_after_jobs(self):
        self.wq(sP[10], B2, 0, 5, 0, 'b2')
        self.b3q(0, 2, 2, 'b3')
        self.b3q(2, 7, 3, 'b3')
        self.wq(sB4O, B4, 0, 7, 3, 'b4')
    Gen.queue_after_jobs = queue_after_jobs

    def ksplit(self, nks, abase, rtstride, Bf, Ar, nA, LA, ACC, flagbase, red, npump, hooks):
        a = self.a
        a('v_and_b32 v8, 3, v0')
        a('v_lshlrev_b32 v8, 7, v8')
        a('s_lshl2_add_u32 s%d, s%d, s%d' % (sT[0], sC, sW))
        a('s_lshl_b32 s%d, s%d, 9' % (sT[0], sT[0]))
        a('s_add_u32 s%d, s%d, 0x%x' % (sT[0], sT[0], flagbase))
        a('s_lshl1_add_u32 s%d, s%d, s%d' % (sT[1], sC, sRG))
        a('s_mul_i32 s%d, s%d, %d' % (sT[1], sT[1], 4 * rtstride))
        a('s_mul_i32 s%d, s%d, %d' % (sT[6], sW, nks * 1024))
        a('s_add_u32 s%d, s%d, s%d' % (sT[1], sT[1], sT[6]))
        a('s_add_u32 s%d, s%d, 0x%x' % (sT[1], sT[1], abase))
        for p in range(4):
            a('s_xor_b32 s%d, s%d, %d' % (sT[6], sW, p))
            a('s_mul_i32 s%d, s%d, %d' % (sT[2 + p], sT[6], rtstride))
            a('s_add_u32 s%d, s%d, s%d' % (sT[2 + p], sT[2 + p], sT[1]))
            if p:
                a('s_mul_i32 s%d, s%d, 15360' % (sT[6], sT[6]))
                a('s_add_u32 s%d, s%d, %d' % (sT[6], sT[6], red + 5120 * (p - 1)))
                a('v_add_u32 v%d, s%d, v1' % (8 + p, sT[6]))
        a('s_mul_i32 s%d, s%d, 15360' % (sT[6], sW))
        a('s_add_u32 s%d, s%d, %d' % (sT[6], sT[6], red))
        a('v_add_u32 v12, s%d, v1' % sT[6])
        self.poll(8, sT[0], 13)
        self.stamp('flag')
        order = [(p, k) for p in (1, 2, 3, 0) for k in range(nks)]
        N = len(order)
        assert LA < nA
        areg = lambda idx: Ar + 4 * (idx % nA)
        def aload(idx):
            p, k = order[idx]
            if k == 8: a('s_add_u32 s%d, s%d, 8192' % (sT[2 + p], sT[2 + p]))
            if 'noA%d' % (2 if nks == 5 else 4) in self.o['exp']: return
            self.ld(areg(idx), 1024 * (k & 7), sT[2 + p], 'A%d' % idx, self.o['apol'])
        for idx in range(min(LA, N)): aload(idx)
        pend = []
        for idx, (p, k) in enumerate(order):
            fill = list(hooks.get(idx, []))
            a.wait_vm('A%d' % idx)
            if self.o['fine'] and nks == 12 and idx % 12 == 0: self.stamp('i%d' % idx)
            for T in range(5):
                a(self.mfma(ACC + 20 * p + 4 * T, Bf + 20 * k + 4 * T, areg(idx), first=(k == 0)))
                if pend and k >= 1 and T in (1, 3): a(pend.pop(0))
                if T == 0:
                    if idx + LA < N: aload(idx + LA)
                    elif npump > 0: self.pump(); npump -= 1
                elif T == 2 and idx + LA >= N and npump > 0: self.pump(); npump -= 1
                elif fill: fill.pop(0)()
                if T == 4:
                    while fill: fill.pop(0)()
            if k == nks - 1 and p:
                assert not pend
                pend = ['ds_write_b128 v%d, %s offset:%d' % (8 + p, R(ACC + 20 * p + 4 * T, 4), 1024 * T) for T in range(5)]
            if idx == N - 2:
                assert not pend
                self.barrier()
                hooks[N - 1] = [lambda i=i, T=T: a('ds_read_b128 %s, v12 offset:%d' % (R(ACC + 20 * (i + 1) + 4 * T, 4), 5120 * i + 1024 * T), 'r%d' % i) for i in range(3) for T in range(5)]
        self.stamp('mfma')
    Gen.ksplit = ksplit

    def kreduce(self, ACC):
        a = self.a
        a.wait_lg('r1')
        for d in range(10):
            a('v_pk_add_f32 %s, %s, %s' % (V(ACC + 20 + 2 * d, 2), V(ACC + 20 + 2 * d, 2), V(ACC + 40 + 2 * d, 2)))
        a.wait_lg('r2')
        for d in range(10):
            a('v_pk_add_f32 %s, %s, %s' % (V(ACC + 2 * d, 2), V(ACC + 2 * d, 2), V(ACC + 60 + 2 * d, 2)))
        for d in range(10):
            a('v_pk_add_f32 %s, %s, %s' % (V(ACC + 2 * d, 2), V(ACC + 2 * d, 2), V(ACC + 20 + 2 * d, 2)))
    Gen.kreduce = kreduce

    def pack_store(self, src, P, vaddr, srd, soff, cstride, handoff, tag=None):
        a = self.a
        for d in range(10): a('v_cvt_pk_bf16_f32 v%d, v%d, v%d' % (P + d, src + 2 * d, src + 2 * d + 1))
        a('v_mov_b32 v%d, v%d' % (P + 10, P + 8))
        a('v_mov_b32 v%d, v%d' % (P + 11, P + 9))
        for p in range(3):
            a('v_permlane16_swap_b32 v%d, v%d' % (P + 4 * p, P + 4 * p + 2))
            a('v_permlane16_swap_b32 v%d, v%d' % (P + 4 * p + 1, P + 4 * p + 3))
        st = lambda p: 'buffer_store_dwordx4 %s, v%d, s[%d:%d], s%d offen offset:%d' % (V(P + 4 * p, 4), vaddr, srd, srd + 3, soff, 4 * p * cstride)
        txt = [st(0), st(1), 's_mov_b32 exec_lo, 0xffff', 's_mov_b32 exec_hi, 0xffff', st(2), 's_mov_b64 exec, -1']
        if handoff: self.st2(txt, tag)
        else:
            for t in txt: a(t + (' ' + self.o.get('opol', '') if t.startswith('buffer') else ''), tag)
    Gen.pack_store = pack_store

    def chunk_of_lane(self, d, t):
        a = self.a
        a('v_and_b32 v%d, 1, v3' % t)
        a('v_lshrrev_b32 v%d, 1, v3' % d)
        a('v_lshl_add_u32 v%d, v%d, 1, v%d' % (d, t, d))
    Gen.chunk_of_lane = chunk_of_lane

    MR, XR, XF = 220, 208, 144
    def p2_pre(self):
        a = self.a
        L = []
        for i, vec in enumerate([2, 3, 4, 5]):
            for p in range(2):
                L.append(lambda i=i, vec=vec, p=p: (a('s_mov_b32 s%d, 0x%x' % (sT[0], MODP + p * 15360 + vec * 2560)),
                    a('buffer_load_dwordx4 %s, v7, s[%d:%d], s%d offen sc1' % (V(MR + 8 * i + 4 * p, 4), SW, SW + 3, sT[0]), 'mod')))
        L.append(lambda: (a('s_lshl1_add_u32 s%d, s%d, s%d' % (sXO, sC, sRG)),
                          a('s_lshl2_add_u32 s%d, s%d, s%d' % (sXO, sXO, sW)),
                          a('s_mul_i32 s%d, s%d, %d' % (sB1, sXO, 16 * 1280))))
        L.append(lambda: (a('s_mul_i32 s%d, s%d, 160' % (sT[0], sCG)),
                          a('s_add_u32 s%d, s%d, s%d' % (sB1, sB1, sT[0])),
                          a('v_mul_u32_u24 v6, 1280, v2'),
                          a('v_lshl_add_u32 v12, v3, 3, v6')))
        for T in range(5):
            L.append(lambda T=T: a('buffer_load_dwordx2 %s, v12, s[%d:%d], s%d offen offset:%d' % (V(XR + 2 * T, 2), SX, SX + 3, sB1, 32 * T), 'xv'))
        return L
    Gen.p2_pre = p2_pre

    def p2(self):
        a = self.a
        self.publish(FO, 'ost', self.touch2(32, 33, 20480, 10, sP[9]))
        for f in self.touches('o'): f()
        self.stamp('Opub')
        self.flush('b2')
        self.pump(self.o['o_pre'])
        self.mod_check([2, 3, 4, 5], MR, 7, 'mod', 28)
        self.plus1(MR + 16)
        self.unpack4(MR + 4, MR); self.unpack4(MR + 20, MR + 16); self.unpack4(MR + 28, MR + 24)
        a('v_add_u32 v12, %d, v7' % SPARE)
        a('v_lshrrev_b32 v13, 1, v7')
        a('v_add_u32 v13, %d, v13' % SPARE)
        a('ds_write_b128 v12, %s offset:%d' % (V(MR + 4, 4), GA_ - SPARE))
        a('ds_write_b128 v12, %s offset:%d' % (V(MR + 20, 4), C2F - SPARE))
        a('ds_write_b128 v12, %s offset:%d' % (V(MR + 28, 4), GB_ - SPARE))
        a('ds_write_b64 v13, %s offset:%d' % (V(MR + 16, 2), C2B - SPARE))
        a('ds_write_b64 v13, %s offset:%d' % (V(MR + 8, 2), S2B - SPARE))
        a.wait_vm('xv')
        for T in range(5): self.unpack4(XF + 4 * T, XR + 2 * T)
        a('s_mul_i32 s%d, s%d, 320' % (sT[0], sCG))
        a('s_add_u32 s%d, s%d, %d' % (sT[0], sT[0], SPARE))
        a('v_lshl_add_u32 v4, v3, 4, s%d' % sT[0])
        self.chunk_of_lane(16, 17)
        a('v_lshlrev_b32 v17, 4, v2')
        a('v_lshl_add_u32 v17, v16, 8, v17')
        a('v_lshlrev_b32 v18, 3, v2')
        a('s_mul_i32 s%d, s%d, 20480' % (sP[0], sXO))
        a('s_mul_i32 s%d, s%d, 2560' % (sT[1], sCG))
        a('s_add_u32 s%d, s%d, s%d' % (sP[0], sP[0], sT[1]))
        a('s_add_u32 s%d, s%d, 0x%x' % (sP[0], sP[0], WY))
        a('s_lshl3_add_u32 s%d, s%d, s%d' % (sP[1], sXO, sCG))
        a('s_lshl_b32 s%d, s%d, 7' % (sP[1], sP[1]))
        a('s_add_u32 s%d, s%d, 0x%x' % (sP[1], sP[1], ST))
        a.wait_lg()
        ACC, GA, C2 = 176, 92, 112
        rd = [lambda T=T: a('ds_read_b128 %s, v4 offset:%d' % (V(GA + 4 * T, 4), GA_ - SPARE + 64 * T), 'ga') for T in range(5)]
        rd += [lambda T=T: a('ds_read_b128 %s, v4 offset:%d' % (V(C2 + 4 * T, 4), C2F - SPARE + 64 * T), 'ga') for T in range(5)]
        hooks = {4: [lambda: a('s_barrier')], 5: rd[:3], 10: rd[3:6], 15: rd[6:8], 9: rd[8:], 8: self.touches('q8')}
        self.ksplit(5, WO_, 20480, B2, 32, 15, self.o['la2'], ACC, FO, RED, self.o['p2_pump'], hooks)
        self.flush('b3')
        self.kreduce(ACC)
        for d in range(10):
            a('v_pk_fma_f32 %s, %s, %s, %s' % (V(XF + 2 * d, 2), V(ACC + 2 * d, 2), V(GA + 2 * d, 2), V(XF + 2 * d, 2)))
        for d in range(10):
            a('v_pk_mul_f32 %s, %s, %s' % (V(C2 + 2 * d, 2), V(C2 + 2 * d, 2), V(XF + 2 * d, 2)))
        self.pack_store(C2, 20, 17, SW, sP[0], 256, True, 'yst')
        a('v_pk_add_f32 v[32:33], %s, %s' % (V(XF, 2), V(XF + 2, 2)))
        a('v_pk_mul_f32 v[34:35], %s, %s' % (V(XF, 2), V(XF, 2)))
        a('v_pk_fma_f32 v[34:35], %s, %s, v[34:35]' % (V(XF + 2, 2), V(XF + 2, 2)))
        for d in range(2, 10):
            a('v_pk_add_f32 v[32:33], v[32:33], %s' % V(XF + 2 * d, 2))
            a('v_pk_fma_f32 v[34:35], %s, %s, v[34:35]' % (V(XF + 2 * d, 2), V(XF + 2 * d, 2)))
        a('v_add_f32 v32, v32, v33')
        a('v_add_f32 v33, v34, v35')
        self.rowsum([32, 33], 34)
        self.st2(['s_mov_b64 exec, 0xffff',
                  'buffer_store_dwordx2 v[32:33], v18, s[%d:%d], s%d offen' % (SW, SW + 3, sP[1]),
                  's_mov_b64 exec, -1'], 'yst')
        self.stamp('p2epi')
        self.publish(FY, 'yst', self.touch2(48, 49, 4096, 20, sP[0]))
        for f in self.touches('y'): f()
        self.stamp('Ypub')
        rest, self.fq = self.fq, []
        self.b3q(7, 10, 0, 'b3t')
        self.flush('b3t')
        self.fq = rest
        self.wq(sB4O, B4, 7, 12, 0, 'b4')
        self.pump(self.o['y_pre'])
        a('s_mul_i32 s%d, s%d, 5120' % (sT[0], sW))
        a('s_add_u32 s%d, s%d, %d' % (sT[0], sT[0], X1S))
        a('v_add_u32 v7, s%d, v1' % sT[0])
        for T in range(5): a('ds_write_b128 v7, %s offset:%d' % (V(XF + 4 * T, 4), 1024 * T))
    Gen.p2 = p2

    def p3(self):
        a = self.a
        BB, ACC, AA = 24, 48, 96
        a('s_cmp_eq_u32 s%d, 3' % sW)
        a('s_cselect_b32 s%d, 0, s%d' % (sP[2], sW))
        for p in (1, 2):
            a('s_add_u32 s%d, s%d, 1' % (sP[2 + p], sP[1 + p]))
            a('s_cmp_eq_u32 s%d, 3' % sP[2 + p])
            a('s_cselect_b32 s%d, 0, s%d' % (sP[2 + p], sP[2 + p]))
        a('v_bfe_u32 v16, v0, 2, 2')
        a('v_lshl_add_u32 v16, v3, 3, v16')
        a('v_mul_u32_u24 v16, 192, v16')
        a('v_and_b32 v17, 3, v0')
        a('v_lshl_add_u32 v16, v17, 3, v16')
        a('v_and_b32 v17, 16, v0')
        a('v_lshl_add_u32 v16, v17, 1, v16')
        for p in range(3):
            a('s_lshl_b32 s%d, s%d, 6' % (sT[0], sP[2 + p]))
            a('v_add_u32 v%d, s%d, v16' % (8 + 2 * p, sT[0]))
            a('v_xor_b32 v%d, 32, v%d' % (9 + 2 * p, 8 + 2 * p))
        a('v_add_u32 v22, 61440, v8')
        a('v_add_u32 v23, 61440, v9')
        a('v_and_b32 v17, 1, v0')
        a('v_mul_u32_u24 v16, 1280, v17')
        a('v_lshl_add_u32 v16, v3, 4, v16')
        a('v_add_u32 v16, %d, v16' % C2B)
        def rd(ks):
            b = AA + 12 * (ks % 10)
            a('ds_read_b128 %s, v16 offset:%d' % (V(b, 4), 64 * ks), 'u%d' % ks)
            for T in range(2):
                for h in range(2): a('ds_read_b64_tr_b16 %s, v%d offset:%d' % (V(b + 4 + 4 * T + 2 * h, 2), (8 if ks < 10 else 22) + T, 6144 * (ks % 10) + 768 * h), 'u%d' % ks)
        for ks in range(3): rd(ks)
        a('v_mul_u32_u24 v17, 384, v17')
        a('v_lshl_add_u32 v17, v3, 4, v17')
        a('s_lshl_b32 s%d, s%d, 7' % (sT[0], sP[2]))
        a('s_add_u32 s%d, s%d, %d' % (sT[0], sT[0], UT))
        a('v_add_u32 v17, s%d, v17' % sT[0])
        a('v_and_b32 v18, 7, v0')
        a('v_lshlrev_b32 v18, 7, v18')
        a('s_lshr_b32 s%d, s%d, 1' % (sT[1], sW))
        a('s_lshl1_add_u32 s%d, s%d, s%d' % (sT[0], sC, sT[1]))
        a('s_lshl_b32 s%d, s%d, 10' % (sT[0], sT[0]))
        a('s_add_u32 s%d, s%d, 0x%x' % (sT[0], sT[0], FY))
        a('s_lshl2_add_u32 s%d, s%d, s%d' % (sT[5], sC, sW))
        a('s_mul_i32 s%d, s%d, 40960' % (sP[5], sT[5]))
        a('s_add_u32 s%d, s%d, 0x%x' % (sP[5], sP[5], WY))
        for x in range(1, 5): a('s_add_u32 s%d, s%d, %d' % (sP[5 + x], sP[5], 8192 * x))
        a('s_lshl_b32 s%d, s%d, 11' % (sT[4], sT[5]))
        a('s_add_u32 s%d, s%d, 0x%x' % (sT[4], sT[4], ST))
        a('v_lshlrev_b32 v19, 3, v0')
        for ks in range(14):
            b = AA + 12 * (ks % 10)
            a.wait_lg('u%d' % ks)
            a(self.mfma(UA, b + 4, b, first=(ks == 0)))
            a(self.mfma(UA + 4, b + 8, b, first=(ks == 0)))
            if ks + 3 < 14: rd(ks + 3)
        self.stamp('ut')
        order = list(range(10)) + list(range(14, 20)) + list(range(10, 14))
        def bread(n, T, h):
            if n == 10 and h == 0: a('v_add_u32 v%d, 61440, v%d' % (8 + T, 8 + T))
            a('ds_read_b64_tr_b16 %s, v%d offset:%d' % (V(BB + 4 * T + 2 * h, 2), 8 + T, 6144 * (order[n] % 10) + 768 * h), 'B%d_%d' % (n, T))
        def aload(x):
            n, t = x >> 1, x & 1
            off = 20480 * t + 1024 * order[n]
            if 'noA3' in self.o['exp']: return
            self.ld(AA + 4 * x, off & 8191, sP[5 + (off >> 13)], 'A%d' % x, self.o['apol'])
        for T in range(6):
            for h in range(2): bread(0, T, h)
        self.poll(18, sT[0], 20)
        self.stamp('flag')
        aq = list(range(40))
        for x in range(self.o['la3']): aload(aq.pop(0))
        npump = self.o['p3_pump']
        U, Tt = AA, AA + 24
        for n in range(20):
            vm, ot = [], []
            for _ in range(self.o['ra3']):
                if aq: vm.append(lambda x=aq.pop(0): aload(x))
            if n == 12:
                vm += [lambda t=t, hh=hh: a('buffer_load_dwordx2 %s, v19, s[%d:%d], s%d offen offset:%d sc1' % (V(184 + 4 * t + 2 * hh, 2), SW, SW + 3, sT[4], 1024 * t + 512 * hh), 'st') for t in range(2) for hh in range(2)]
            k = min(npump, max(0, self.o['ra3'] - len(vm)))
            vm += [self.pump] * k; npump -= k
            if 9 <= n < 15:
                ot.append(lambda n=n: a('ds_read_b128 %s, v16 offset:%d' % (R(UA + 8 + 4 * (n & 1), 4), 64 * order[n + 1]), 'uf%d' % (n + 1)))
            if n == 9:
                a.wait_vm('b3t'); a('s_barrier')
            if n == 16:
                ot.append(lambda: (a('s_mov_b32 exec_lo, 0x00030003'), a('s_mov_b32 exec_hi, 0x00030003'), a('ds_write_b128 v17, %s' % R(UA, 4), 'uw'),
                                   a('ds_write_b128 v17, %s offset:64' % R(UA + 4, 4), 'uw'), a('s_mov_b64 exec, -1')))
                for p in range(3):
                    ot.append(lambda p=p: (a('s_lshl_b32 s%d, s%d, 7' % (sT[0], sP[2 + p])), a('s_add_u32 s%d, s%d, %d' % (sT[0], sT[0], UT)),
                                           a('v_lshl_add_u32 v%d, v3, 4, s%d' % (20 + p, sT[0]))))
            if n == 18:
                a.wait_lg('uw'); a('s_barrier')
            if n in (18, 19):
                for T in range(6):
                    ot.append(lambda T=T, n=n: a('ds_read_b128 %s, v%d offset:%d' % (V((U if n == 18 else Tt) + 4 * T, 4), 20 + T // 2, 64 * (T & 1) + (384 if n == 19 else 0)), 'UT'))
            slots = [[] for _ in range(12)]
            for q, f in enumerate(vm): slots[(q * 12 + 6) // len(vm)].append(f)
            free = [g for g in range(12) if not slots[g]]
            for q, f in enumerate(ot): slots[free[q * len(free) // len(ot)]].append(f)
            a.wait_vm('A%d' % (2 * n + 1))
            for T in range(6):
                if T in (0, 2): a.wait_lg('B%d_%d' % (n, T + 1))
                if T >= 4: a.wait_lg('B%d_%d' % (n, T))
                for t in range(2):
                    a(self.mfma(ACC + 24 * t + 4 * T, BB + 4 * T, AA + 8 * n + 4 * t, first=(n == 0)))
                    if T > 0 and n + 1 < 20: bread(n + 1, T - 1, t)
                    if T == 0 and n > 0: bread(n, 5, t)
                    for f in slots.pop(0): f()
                if 10 <= n < 16 and T < 2:
                    if T == 0: a.wait_lg('uf%d' % n)
                    a(self.mfma(UA + 4 * T, BB + 4 * T, UA + 8 + 4 * ((n - 1) & 1)))
        assert not aq
        self.stamp('mfma')
        a.wait_vm('st')
        a('v_pk_add_f32 v[16:17], v[184:185], v[186:187]')
        a('v_pk_add_f32 v[20:21], v[188:189], v[190:191]')
        self.rowsum([16, 17, 20, 21], 24)
        a('s_mov_b32 s%d, 0x%x' % (sT[7], f2u(1 / 640)))
        self.finstats(16, 17, 18)
        self.finstats(20, 21, 22)
        self.chunk_of_lane(12, 13)
        a('v_lshlrev_b32 v13, 4, v2')
        a('v_lshl_add_u32 v13, v12, 8, v13')
        a('v_add_u32 v12, 49152, v13')
        a('s_mul_i32 s%d, s%d, %d' % (sT[2], sT[5], 2 * 49152))
        a('s_mul_i32 s%d, s%d, 3072' % (sT[1], sJ))
        a('s_add_u32 s%d, s%d, s%d' % (sT[2], sT[2], sT[1]))
        a('s_add_u32 s%d, s%d, 0x%x' % (sT[2], sT[2], WH))
        for p in range(3):
            a('s_lshl_b32 s%d, s%d, 10' % (sP[2 + p], sP[2 + p]))
            a('s_add_u32 s%d, s%d, s%d' % (sP[2 + p], sP[2 + p], sT[2]))
        a('s_mov_b32 s%d, 0x%x' % (sT[0], f2u(-LOG2E)))
        a('s_mov_b32 s%d, s%d' % (sT[1], sT[0]))
        a.wait_lg()
        for t in range(2):
            st = 16 + 4 * t
            for p in range(3):
                z = ACC + 24 * t + 8 * p
                e = 144 + 8 * ((3 * t + p) & 1)
                o = 160 + 4 * (3 * t + p)
                for d in range(4):
                    a('v_pk_fma_f32 %s, %s, %s, %s op_sel_hi:[1,0,1] neg_lo:[0,1,0] neg_hi:[0,1,0]' % (V(z + 2 * d, 2), V(U + 8 * p + 2 * d, 2), V(st, 2), V(z + 2 * d, 2)))
                for d in range(4):
                    a('v_pk_fma_f32 %s, %s, %s, %s op_sel:[0,1,0] op_sel_hi:[1,1,1]' % (V(z + 2 * d, 2), V(z + 2 * d, 2), V(st, 2), V(Tt + 8 * p + 2 * d, 2)))
                for d in range(4):
                    a('v_pk_mul_f32 %s, %s, s[%d:%d]' % (V(e + 2 * d, 2), V(z + 2 * d, 2), sT[0], sT[1]))
                for d in range(8): a('v_exp_f32 v%d, v%d' % (e + d, e + d))
                for d in range(4): a('v_pk_add_f32 %s, %s, 1.0 op_sel_hi:[1,0]' % (V(e + 2 * d, 2), V(e + 2 * d, 2)))
                for d in range(8): a('v_rcp_f32 v%d, v%d' % (e + d, e + d))
                for d in range(4): a('v_pk_mul_f32 %s, %s, %s' % (V(z + 2 * d, 2), V(z + 2 * d, 2), V(e + 2 * d, 2)))
                for d in range(4): a('v_cvt_pk_bf16_f32 v%d, v%d, v%d' % (o + d, z + 2 * d, z + 2 * d + 1))
                a('v_permlane16_swap_b32 v%d, v%d' % (o, o + 2))
                a('v_permlane16_swap_b32 v%d, v%d' % (o + 1, o + 3))
                self.st2(['buffer_store_dwordx4 %s, v%d, s[%d:%d], s%d offen' % (V(o, 4), 13 - t, SW, SW + 3, sP[2 + p])], 'hst')
                if 3 * t + p < 2 and npump > 0:
                    k = min(npump, 4); self.pump(k); npump -= k
        self.stamp('p3epi')
        self.publish(FH, 'hst', self.touch2(212, 213, 49152, 24, sT[2]))
        self.stamp('Hpub')
    Gen.p3 = p3

    def p4(self):
        a = self.a
        self.flush('b4')
        ACC, GB, X1 = 16, 160, 180
        rd = [lambda T=T: a('ds_read_b128 %s, v4 offset:%d' % (V(GB + 4 * T, 4), GB_ - SPARE + 64 * T), 'gb') for T in range(5)]
        rd += [lambda T=T: a('ds_read_b128 %s, v7 offset:%d' % (V(X1 + 4 * T, 4), 1024 * T), 'gb') for T in range(5)]
        for f in rd: f()
        self.chunk_of_lane(14, 13)
        a('v_lshl_add_u32 v6, v14, 4, v6')
        self.ksplit(12, WH, 49152, B4, 96, 16, self.o['la4'], ACC, FH, 0, 0, {})
        self.kreduce(ACC)
        for d in range(10):
            a('v_pk_fma_f32 %s, %s, %s, %s' % (V(X1 + 2 * d, 2), V(ACC + 2 * d, 2), V(GB + 2 * d, 2), V(X1 + 2 * d, 2)))
        self.pack_store(X1, 200, 6, SO, sB1, 16, False)
        self.stamp('p4epi')
    Gen.p4 = p4

    def run(self):
        self.prologue()
        a = self.a
        a('s_and_b32 s%d, s%d, 31' % (sTQ, sCI))
        a('s_lshl2_add_u32 s%d, s%d, s%d' % (sTQ, sTQ, sW))
        self.p1_gemm()
        self.p1_attn()
        self.p2()
        self.p3()
        self.p4()
        self.finish()
    Gen.run = run
```

```python
import sys, os, math
sys.path.insert(0, os.path.dirname(os.path.abspath(__file__)))
from asmlib import *

NAME = 'adaLN_cond__sliding_local_dilated__dense_activation_silu__prompt'

JF   = 0x1000
CF   = 0x60000
FO   = 0x2000
FY   = 0xA000
FH   = 0x12000
FX   = 0x1A000
XI   = 0x22000
MODP = 0x24000
ST   = 0x40000
W2T  = 0x80000
W4T  = W2T + 819200
WO_  = W4T + 1966080
WY   = WO_ + 2621440
WH   = WY + 2621440
WHB  = WH + 6291456
W1C  = WHB + 2621440
DBG  = W1C + 2457600
WSZ  = DBG + 1024 * 256

RGN   = 38400
SPARE = 153600
HST   = SPARE + 8192
MRED  = SPARE + 8704
HP    = 76800
EX    = 76800 + 12288
RED   = 92160
X1S   = 122880
UT    = 143360
GA_, C2F, GB_, C2B, S2B = SPARE, SPARE + 2560, SPARE + 5120, SPARE + 7680, SPARE + 8960
TOFF = [0, 48, 80, 128, 32, 160, 208, 192]

sW, sC, sJ, sTAG, sCI = 3, 4, 5, 6, 7
pX, pQ, pWO, pW1, pW2, pC, pWM, pOUT, pWS = 8, 10, 12, 16, 18, 20, 22, 24, 28
SX, SQ, SW, SO, S1, SJ = 32, 36, 40, 44, 48, 52
sRG, sCG = 30, 31
sP = [56, 57, 58, 59, 60, 61, 62, 63, 64, 65, 66, 67]
sB3M, sB4O = 68, 69
sG0, sG1 = 70, 72
jD = [74, 75, 76]; jS = [77, 78, 79]
sJ0, sJ1 = 100, 101
sTQ = 100
sNM = 80
sMO = 81
sRB = 82
sXO = 83
sB1 = 84
sPROD = 85
sT = [86, 87, 88, 89, 90, 91, 92, 93]
sCNT = 94
sONE = 95
sHI = 96
sFAIL = 97
sSLOW = 14
sN = 15
sTILE = 26
sSL2 = 27

LOG2E = 1.4426950408889634
def f2u(x):
    import struct
    return struct.unpack('<I', struct.pack('<f', x))[0]

DEF = dict(bpol='sc1', jpol='nt', hpol='', fast=0, cwarm=1, wpol='sc1', w1pol='', apol='sc1', spol='', touch=0, early=3, mw=1, lin=1, gp0=12, t2='x', t3a='x', t3b='x', t4a='x', t4b='x', fine=0, exp='',
           nb1=4, nb2=30, nbn=38, cpol='', ra1=4, la1=10, jfi=9, jfc=12, g_pump=4, at_pump=21,
           la2=12, la3=12, la4=12, ra3=3, o_pre=0, p2_pump=10, y_pre=0, p3_pump=60, h_pre=0)

class Gen:
    def __init__(self, stamps=False, opt=None):
        self.a = Asm()
        self.stamps = stamps
        self.o = dict(DEF); self.o.update(opt or {})
        self.nst = 0
        self.fq = []
        self.cold = []
        self.level = 0

    def stamp(self, name, idx=None):
        if not self.stamps: return
        a = self.a
        idx = self.nst if idx is None else idx
        a.c('stamp %d %s' % (idx, name))
        a('s_memrealtime s[98:99]')
        a.wait_lg()
        a('v_writelane_b32 v15, s98, %d' % idx)
        if idx >= self.nst:
            self.names = getattr(self, 'names', []) + [name]
            self.nst = idx + 1

    def srd(self, d, p, n):
        a = self.a
        a('s_mov_b32 s%d, s%d' % (d, p))
        a('s_and_b32 s%d, s%d, 0xffff' % (d + 1, p + 1))
        a('s_mov_b32 s%d, %d' % (d + 2, n))
        a('s_mov_b32 s%d, 0x20000' % (d + 3))

    def exec_(self, lo, hi):
        self.a('s_mov_b32 exec_lo, %s' % lo)
        self.a('s_mov_b32 exec_hi, %s' % hi)
    def exec_all(self):
        self.a('s_mov_b64 exec, -1')

    def barrier(self):
        self.a.wait_lg()
        self.a('s_barrier')

    def rowsum(self, regs, tmp):
        a = self.a
        for sw in ('v_permlane32_swap_b32', 'v_permlane16_swap_b32'):
            for i, r in enumerate(regs): a('v_mov_b32 v%d, v%d' % (tmp + i, r))
            for i, r in enumerate(regs): a('%s v%d, v%d' % (sw, r, tmp + i))
            for i, r in enumerate(regs): a('v_add_f32 v%d, v%d, v%d' % (r, r, tmp + i))

    def finstats(self, s1, s2, t):
        a = self.a
        a('v_mul_f32 v%d, 0x%x, v%d' % (s1, f2u(1 / 640), s1))
        a('v_mul_f32 v%d, v%d, v%d' % (t, s1, s1))
        a('v_fma_f32 v%d, v%d, s%d, -v%d' % (s2, s2, sT[7], t))
        a('v_max_f32 v%d, 0, v%d' % (s2, s2))
        a('v_add_f32 v%d, 0x%x, v%d' % (s2, f2u(1e-5), s2))
        a('v_rsq_f32 v%d, v%d' % (s2, s2))

    def poll(self, vaddr, soff, vt):
        a = self.a
        L, D = a.newlabel('poll'), a.newlabel('pdone')
        a('s_mov_b32 s%d, 0x8000' % sCNT)
        a.label(L)
        a('buffer_load_dword v%d, v%d, s[%d:%d], s%d offen sc1' % (vt, vaddr, SW, SW + 3, soff))
        a.wait_vm()
        a('v_cmp_ne_u32 vcc, s%d, v%d' % (sTAG, vt))
        a('s_cbranch_vccz %s' % D)
        a('s_sub_u32 s%d, s%d, 1' % (sCNT, sCNT))
        a('s_cmp_lg_u32 s%d, 0' % sCNT)
        a('s_cbranch_scc1 %s' % L)
        a.label(D)

    def mod_issue(self, vecs, r0, vaddr, tag, NP=2):
        a = self.a
        for i, vec in enumerate(vecs):
            for p in range(NP):
                a('s_mov_b32 s%d, 0x%x' % (sT[0], MODP + p * 15360 + vec * 2560))
                a('buffer_load_dwordx4 %s, v%d, s[%d:%d], s%d offen sc1' % (V(r0 + 4 * NP * i + 4 * p, 4), vaddr, SW, SW + 3, sT[0]), tag)

    def mod_check(self, vecs, r0, vaddr, tag, t, NP=2):
        a = self.a
        L, C, D = a.newlabel('mchk'), a.newlabel('mcold'), a.newlabel('mok')
        N = 4 * NP * len(vecs)
        a('s_mov_b32 s%d, 0x8000' % sCNT)
        for e in range(4): a('s_bfe_u32 s%d, s%d, 0x%x' % (sT[1 + e], sTAG, 0x80000 + 8 * e))
        a.wait_vm(tag)
        a.label(L)
        for x in range(N):
            a('v_xor_b32 v%d, s%d, v%d' % (r0 + x, sT[1 + (x & 3)], r0 + x))
            if x == 1: a('v_or_b32 v%d, v%d, v%d' % (t, r0, r0 + 1))
            elif x & 1: a('v_or3_b32 v%d, v%d, v%d, v%d' % (t, t, r0 + x - 1, r0 + x))
        a('v_cmp_ne_u32_sdwa vcc, v%d, v%d src0_sel:BYTE_0 src1_sel:BYTE_3' % (t, 0))
        a('s_cbranch_vccnz %s' % C)
        a.label(D)
        def cold():
            a.label(C)
            a('s_add_u32 s%d, s%d, 1' % (sFAIL, sFAIL))
            a('s_sub_u32 s%d, s%d, 1' % (sCNT, sCNT))
            a('s_cmp_eq_u32 s%d, 0' % sCNT)
            a('s_cbranch_scc1 %s' % D)
            self.mod_issue(vecs, r0, vaddr, None, NP)
            a('s_waitcnt vmcnt(0)')
            a('s_branch %s' % L)
        self.cold.append(cold)
        for p in range(1, NP):
            for i in range(len(vecs)):
                r = r0 + 4 * NP * i
                for e in (0, 2): a('v_pk_add_f32 %s, %s, %s' % (V(r + e, 2), V(r + e, 2), V(r + 4 * p + e, 2)))
        for i in range(len(vecs)):
            r = r0 + 4 * NP * i
            a('v_cvt_pk_bf16_f32 v%d, v%d, v%d' % (r, r, r + 1))
            a('v_cvt_pk_bf16_f32 v%d, v%d, v%d' % (r + 1, r + 2, r + 3))

    def unpack4(self, d, s):
        a = self.a
        a('v_lshlrev_b32 v%d, 16, v%d' % (d, s))
        a('v_and_b32 v%d, s%d, v%d' % (d + 1, sHI, s))
        a('v_lshlrev_b32 v%d, 16, v%d' % (d + 2, s + 1))
        a('v_and_b32 v%d, s%d, v%d' % (d + 3, sHI, s + 1))

    def plus1(self, r):
        a = self.a
        self.unpack4(r + 4, r)
        for e in range(4): a('v_add_f32 v%d, 1.0, v%d' % (r + 4 + e, r + 4 + e))
        a('v_cvt_pk_bf16_f32 v%d, v%d, v%d' % (r, r + 4, r + 5))
        a('v_cvt_pk_bf16_f32 v%d, v%d, v%d' % (r + 1, r + 6, r + 7))

    def mfma(self, d, wa, act, first=False):
        c = '0' if first else R(d, 4)
        return 'v_mfma_f32_16x16x32_bf16 %s, %s, %s, %s' % (R(d, 4), R(wa, 4), R(act, 4), c)

    def pump(self, k=1):
        while k > 0 and self.fq and self.fq[0][0] <= self.level:
            self.fq.pop(0)[1]()
            k -= 1
    def flush(self, name):
        while any(e[2] == name for e in self.fq):
            assert self.fq[0][0] <= self.level
            self.fq.pop(0)[1]()

    def st2(self, texts, tag=None, sl=None):
        a = self.a
        if not self.o['fast']:
            for t in texts:
                if t.startswith('buffer'): a(t + ' sc1', tag)
                else: a(t)
            return
        Ls, Ld = a.newlabel('slow'), a.newlabel('sdone')
        a('s_cmp_lg_u32 s%d, 0' % (sSLOW if sl is None else sl))
        a('s_cbranch_scc1 %s' % Ls)
        for t in texts: a(t + (' ' + self.o['spol'] if t.startswith('buffer') else ''), tag)
        a.label(Ld)
        def cold():
            a.label(Ls)
            a('s_nop 4')
            for t in texts: a.items.append(Ins(t + (' sc1' if t.startswith('buffer') else '')))
            a('s_nop 1')
            a('s_branch %s' % Ld)
        self.cold.append(cold)

    def flagstore(self, soff, sl=None):
        a = self.a
        D = a.newlabel('pub')
        a('s_cmp_lg_u32 s%d, 0' % sW)
        a('s_cbranch_scc1 %s' % D)
        a('v_mov_b32 v14, s%d' % sTAG)
        self.exec_(1, 0)
        save = list(a.vm)
        self.st2(['buffer_store_dword v14, off, s[%d:%d], s%d' % (SW, SW + 3, soff)], None, sl)
        a.vm = save
        self.exec_all()
        a.label(D)

    def publish(self, base, tag=None, touch=None):
        a = self.a
        a('s_lshl_b32 s%d, s%d, 7' % (sT[0], sCI))
        a('s_add_u32 s%d, s%d, 0x%x' % (sT[0], sT[0], base))
        if touch and self.o['touch']: touch[0]()
        a.wait_vm(tag)
        if touch and self.o['touch']: touch[1]()
        self.barrier()
        self.flagstore(sT[0])

    def xi_issue(self, tag):
        a = self.a
        a('s_lshl_b32 s%d, s%d, 7' % (sT[0], sC))
        a('s_add_u32 s%d, s%d, 0x%x' % (sT[0], sT[0], XI))
        a('v_lshlrev_b32 v32, 2, v2')
        a('buffer_load_dword v33, v32, s[%d:%d], s%d offen sc1' % (SW, SW + 3, sT[0]), tag)
    def xi_check(self, tag):
        a = self.a
        L, D = a.newlabel('xi'), a.newlabel('xiok')
        a.wait_vm(tag)
        a('s_mov_b32 s%d, 0x8000' % sCNT)
        a.label(L)
        a('v_subrev_u32 v33, s%d, v33' % sTAG)
        a('v_cmp_lt_u32 vcc, 15, v33')
        a('s_cbranch_vccz %s' % D)
        a('s_sub_u32 s%d, s%d, 1' % (sCNT, sCNT))
        a('s_cmp_eq_u32 s%d, 0' % sCNT)
        a('s_cbranch_scc1 %s' % D)
        save = list(a.vm)
        self.xi_issue(None)
        a('s_waitcnt vmcnt(0)')
        a.vm = save
        a('s_branch %s' % L)
        a.label(D)
        a('v_readfirstlane_b32 s%d, v33' % sT[0])
        a('v_cmp_ne_u32 vcc, s%d, v33' % sT[0])
        a('s_or_b32 s%d, vcc_lo, vcc_hi' % sSLOW)

    def b1_one(self, x, force=False, mask=None):
        a = self.a
        if force or x % 4 == 0:
            a('s_add_u32 m0, s%d, %d' % (sRB, 4096 * (x // 4)))
            a('s_add_u32 s%d, s%d, %d' % (sT[7], sB1, 4096 * (x // 4)))
        if mask is not None: a('s_mov_b32 exec_lo, s%d' % mask)
        if x == 37: a('s_mov_b32 exec_hi, 0')
        elif mask is not None: a('s_mov_b32 exec_hi, s%d' % mask)
        a('buffer_load_dwordx4 v1, s[%d:%d], s%d offen offset:%d %s lds' % (SW, SW + 3, sT[7], 1024 * (x & 3), self.o['bpol']), 'b1_%d' % (2 * x // 15))
        if x == 37 or mask is not None: self.exec_all()
    def b1_issue(self, x0, x1):
        for x in range(x0, x1): self.b1_one(x, x == x0)

    def xi_publish(self):
        a = self.a
        a.wait_lg()
        a('s_add_u32 s%d, s%d, 0x9e3779b9' % (sTAG, sTAG))
        a('s_getreg_b32 s%d, hwreg(HW_REG_XCC_ID, 0, 4)' % sT[1])
        a('s_add_u32 s%d, s%d, s%d' % (sT[1], sT[1], sTAG))
        a('v_mov_b32 v14, s%d' % sT[1])
        a('s_lshl_b32 s%d, s%d, 7' % (sT[0], sC))
        a('s_lshl2_add_u32 s%d, s%d, s%d' % (sT[0], sJ, sT[0]))
        a('s_add_u32 s%d, s%d, 0x%x' % (sT[0], sT[0], XI))
        a('s_cmp_eq_u32 s%d, 0' % sW)
        a('s_cselect_b32 exec_lo, 1, 0')
        a('s_mov_b32 exec_hi, 0')
        a('buffer_store_dword v14, off, s[%d:%d], s%d sc1' % (SW, SW + 3, sT[0]))
        self.exec_all()

    def prologue(self):
        a = self.a
        a('s_cmp_ge_u32 s2, 256')
        a('s_cbranch_scc1 L_end')
        a('s_load_dwordx16 s[8:23], s[0:1], 0')
        a('s_load_dwordx4 s[24:27], s[0:1], 64')
        a('s_load_dwordx2 s[28:29], s[0:1], 80')
        if self.o['cwarm']:
            a('s_getpc_b64 s[%d:%d]' % (SJ, SJ + 1))
            a('s_and_b32 s%d, s%d, 0xffff' % (SJ + 1, SJ + 1))
            a('s_mov_b32 s%d, CODE_END-%s_kernel-64' % (SJ + 2, NAME))
            a('s_mov_b32 s%d, 0x20000' % (SJ + 3))
            a('s_bfe_u32 s%d, s2, 0x10003' % sT[0])
            a('s_lshl_b32 s%d, s%d, 15' % (sT[0], sT[0]))
            a('v_lshl_add_u32 v1, v0, 7, s%d' % sT[0])
            a('buffer_load_dword v255, v1, s[%d:%d], 0 offen' % (SJ, SJ + 3), 'cw')
        a('v_lshrrev_b32 v1, 6, v0')
        a('v_and_b32 v0, 63, v0')
        a('v_readfirstlane_b32 s%d, v1' % sW)
        a('v_lshlrev_b32 v1, 4, v0')
        if self.stamps: a('v_mov_b32 v15, 0')
        a('s_mov_b32 s%d, 0' % sFAIL)
        a('s_and_b32 s%d, s2, 7' % sT[0])
        a('s_lshr_b32 s%d, s2, 7' % sT[1])
        a('s_lshl1_add_u32 s%d, s%d, s%d' % (sC, sT[0], sT[1]))
        a('s_bfe_u32 s%d, s2, 0x40003' % sJ)
        a('s_lshl4_add_u32 s%d, s%d, s%d' % (sCI, sC, sJ))
        a('s_lshr_b32 s%d, s%d, 3' % (sRG, sJ))
        a('s_and_b32 s%d, s%d, 7' % (sCG, sJ))
        a('s_mov_b32 s%d, 0x3f803f80' % sONE)
        a('s_mov_b32 s%d, 0xffff0000' % sHI)
        a('s_mul_i32 s%d, s%d, %d' % (sRB, sW, RGN))
        a('s_mul_i32 s%d, s%d, 153600' % (sB1, sJ))
        a('s_add_u32 s%d, s%d, s%d' % (sB1, sB1, sRB))
        a('s_add_u32 s%d, s%d, 0x%x' % (sB1, sB1, W1C))
        a('v_and_b32 v2, 15, v0')
        a('v_lshrrev_b32 v3, 4, v0')
        a('v_lshrrev_b32 v36, 5, v0')
        a('v_bfe_u32 v37, v0, 3, 2')
        a('v_lshl_add_u32 v36, v36, 3, v37')
        a('v_and_b32 v37, 0x70, v1')
        a('v_mul_u32_u24 v38, 7680, v36')
        a('v_add_u32 v38, v38, v37')
        a('v_mul_u32_u24 v39, 1280, v36')
        a('v_add_u32 v39, v39, v37')
        a('v_lshlrev_b32 v41, 2, v0')
        a('v_mul_u32_u24 v6, 52, v0')
        a('v_lshrrev_b32 v6, 8, v6')
        a('v_mul_u32_u24 v6, 1200, v6')
        a('v_add_u32 v6, v6, v1')
        a('v_mul_u32_u24 v43, 1280, v2')
        a('v_lshl_add_u32 v43, v3, 4, v43')
        a('s_lshr_b32 s%d, s%d, 1' % (sT[2], sJ))
        a('s_lshl3_add_u32 s%d, s%d, s%d' % (sT[3], sT[1], sT[2]))
        a('s_lshl3_add_u32 s%d, s%d, s%d' % (sT[3], sT[3], sT[0]))
        a('s_lshl3_add_u32 s%d, s%d, s%d' % (sXO, sC, sT[2]))
        a('s_xor_b32 s%d, s%d, s%d' % (sT[1], sT[1], sJ))
        a('s_and_b32 s%d, s%d, 1' % (sT[1], sT[1]))
        a('s_sub_u32 s%d, 0, s%d' % (sPROD, sT[1]))
        Lp, Ld = a.newlabel('prod'), a.newlabel('join')
        a('s_cbranch_scc1 %s' % Lp)
        save = (list(a.vm), list(a.lg))
        self.plain()
        a('s_branch %s' % Ld)
        a.vm, a.lg = save
        a.label(Lp)
        self.producer()
        a.label(Ld)

    def staging(self):
        a = self.a
        a('s_lshl_b32 s%d, s%d, 11' % (sT[0], sW))
        a('s_add_u32 s%d, s%d, %d' % (sT[0], sT[0], SPARE))
        a('v_and_b32 v42, 0x30, v0')
        a('v_lshlrev_b32 v42, 1, v42')
        a('v_xor_b32 v42, v42, v1')
        a('v_add_u32 v42, s%d, v42' % sT[0])
        a('v_lshrrev_b32 v140, 2, v0')
        a('v_and_b32 v141, 6, v140')
        a('v_lshlrev_b32 v141, 4, v141')
        a('v_lshl_add_u32 v140, v140, 7, v141')
        a('v_and_b32 v141, 3, v0')
        a('v_lshl_add_u32 v140, v141, 3, v140')
        a('v_add_u32 v140, s%d, v140' % sT[0])
        for T in range(1, 4): a('v_xor_b32 v%d, %d, v140' % (140 + T, 32 * T))
        a('v_add_u32 v41, s%d, v41' % sT[0])
        a('v_lshl_add_u32 v45, v3, 4, s%d' % sT[0])
        a('v_lshl_add_u32 v145, v3, 6, s%d' % sT[0])
        a('s_lshl_b32 s%d, s%d, 8' % (sT[0], sW))
        a('s_add_u32 s%d, s%d, %d' % (sT[0], sT[0], MRED))
        a('v_lshl_add_u32 v144, v3, 4, s%d' % sT[0])
        a('v_lshlrev_b32 v146, 4, v2')
        a('v_add_u32 v147, %d, v146' % MRED)
    def silu(self, nu):
        a = self.a
        a.wait_vm('c')
        a('v_lshlrev_b32 v46, 16, v44')
        a('v_and_b32 v47, s%d, v44' % sHI)
        for r in (46, 47): a('v_mul_f32 v%d, 0x%x, v%d' % (r + 2, f2u(-LOG2E), r))
        for r in (46, 47): a('v_exp_f32 v%d, v%d' % (r + 2, r + 2))
        for r in (46, 47): a('v_add_f32 v%d, 1.0, v%d' % (r + 2, r + 2))
        for r in (46, 47): a('v_rcp_f32 v%d, v%d' % (r + 2, r + 2))
        for r in (46, 47): a('v_mul_f32 v%d, v%d, v%d' % (r, r, r + 2))
        a('v_cvt_pk_bf16_f32 v44, v46, v47')
        a('ds_write_b32 v41, v44')
        for u in range(nu):
            a('ds_read_b128 %s, v45 offset:%d' % (V(128 + 4 * u, 4), 64 * u), 'silu')
    def mod_write(self):
        a = self.a
        self.exec_('0x00010001', '0x00010001')
        a('s_nop 6')
        for T in range(4): a('ds_write_b128 v144, %s offset:%d' % (V(60 + 4 * T, 4), 64 * T))
        self.exec_all()
    def mod_publish(self):
        a = self.a
        MA = 60
        Ld = a.newlabel('nomod')
        a('s_cmp_eq_u32 s%d, 0' % sNM)
        a('s_cselect_b32 s%d, 1, s%d' % (sT[5], sW))
        a('s_cmp_lg_u32 s%d, 0' % sT[5])
        a('s_cbranch_scc1 %s' % Ld)
        for i in range(4): a('ds_read_b128 %s, v147 offset:%d' % (V(MA + 4 * i, 4), 256 * i))
        a('s_mov_b32 s%d, 0xffffff00' % sT[0])
        for e in range(4): a('s_bfe_u32 s%d, s%d, 0x%x' % (sT[1 + e], sTAG, 0x80000 + 8 * e))
        a.wait_lg()
        for hh in (0, 2):
            a('v_pk_add_f32 %s, %s, %s' % (V(MA + hh, 2), V(MA + hh, 2), V(MA + 4 + hh, 2)))
            a('v_pk_add_f32 %s, %s, %s' % (V(MA + 8 + hh, 2), V(MA + 8 + hh, 2), V(MA + 12 + hh, 2)))
        for hh in (0, 2):
            a('v_pk_add_f32 %s, %s, %s' % (V(MA + hh, 2), V(MA + hh, 2), V(MA + 8 + hh, 2)))
        for e in range(4): a('v_and_b32 v%d, s%d, v%d' % (MA + e, sT[0], MA + e))
        for e in range(4): a('v_or_b32 v%d, s%d, v%d' % (MA + e, sT[1 + e], MA + e))
        a('s_mov_b64 exec, 0xffff')
        a.items.append(Ins('buffer_store_dwordx4 %s, v146, s[%d:%d], s%d offen sc1' % (V(MA, 4), SW, SW + 3, sMO)))
        self.exec_all()
        a.label(Ld)
    def cf_addr(self):
        a = self.a
        a('s_lshl2_add_u32 s%d, s%d, s%d' % (sT[6], sJ, sW))
        a('s_lshl_b32 s%d, s%d, 10' % (sT[6], sT[6]))
        a('s_add_u32 s%d, s%d, 0x%x' % (sT[6], sT[6], CF))
        a('v_and_b32 v50, 7, v0')
        a('v_lshlrev_b32 v50, 7, v50')

    def plain(self):
        a = self.a
        a('s_mul_i32 s%d, s%d, 205' % (sT[0], sT[3]))
        a('s_lshr_b32 s%d, s%d, 10' % (sT[0], sT[0]))
        a('s_mul_i32 s%d, s%d, 5' % (sT[1], sT[0]))
        a('s_sub_u32 s%d, s%d, s%d' % (sT[1], sT[3], sT[1]))
        a('s_lshl2_add_u32 s%d, s%d, s%d' % (sT[2], sT[1], sW))
        a('s_lshl_b32 s%d, s%d, 6' % (sT[6], sT[2]))
        a('s_mul_i32 s%d, s%d, %d' % (sT[5], sT[2], 32 * 7680))
        a('s_lshl_b32 s%d, s%d, 7' % (sT[4], sT[0]))
        a('s_add_u32 s%d, s%d, s%d' % (sT[5], sT[5], sT[4]))
        a('s_mul_i32 s%d, s%d, 15360' % (sMO, sT[1]))
        a('s_lshl1_add_u32 s%d, s%d, s%d' % (sMO, sT[4], sMO))
        a('s_add_u32 s%d, s%d, 0x%x' % (sMO, sMO, MODP))
        a('s_cmp_lt_u32 s%d, 100' % sT[3])
        a('s_cselect_b32 s%d, -1, 0' % sNM)
        a('v_add_u32 v44, s%d, v41' % sT[6])
        a('s_lshr_b32 s%d, s%d, 2' % (sT[0], sT[3]))
        a('s_and_b32 s%d, s%d, 3' % (sT[1], sT[3]))
        a('s_lshl2_add_u32 s%d, s%d, s%d' % (sT[1], sT[1], sW))
        a('s_mul_i32 s%d, s%d, %d' % (sT[2], sT[0], 20 * 3840))
        a('s_mul_i32 s%d, s%d, 80' % (sT[4], sT[1]))
        a('s_add_u32 s%d, s%d, s%d' % (sT[2], sT[2], sT[4]))
        a('s_lshl_b32 s%d, s%d, 5' % (sT[1], sT[1]))
        a('s_add_u32 s%d, s%d, s%d' % (sT[1], sT[1], sT[0]))
        a('s_mul_i32 s%d, s%d, 4800' % (jD[0], sT[1]))
        a('s_add_u32 s%d, s%d, 0x%x' % (jD[0], jD[0], W1C))
        a('s_lshl_b32 s%d, s%d, 7' % (jD[1], sT[1]))
        a('s_add_u32 s%d, s%d, 0x%x' % (jD[1], jD[1], CF))
        a.wait_lg()
        self.stamp('karg', 0)
        a('s_load_dword s%d, s[%d:%d], 0' % (sTAG, pWS, pWS + 1))
        a('s_mov_b32 s%d, 0' % sN)
        self.srd(S1, pC, 1280)
        a('buffer_load_dword v44, v44, s[%d:%d], 0 offen' % (S1, S1 + 3), 'c')
        self.srd(SJ, pWM, 640 * 7680)
        self.exec_('s%d' % sNM, 's%d' % sNM)
        self.unit_load(176, 38, sT[5], 7680, 'm0')
        self.srd(SQ, pQ, 640 * 3840)
        self.exec_(-1, '0x0fffffff')
        for x in range(5):
            a('buffer_load_dwordx4 %s, v6, s[%d:%d], s%d offen %s' % (V(192 + 4 * x, 4), SQ, SQ + 3, sT[2], self.o['cpol']), 'cp')
            if x < 4: a('s_add_u32 s%d, s%d, %d' % (sT[2], sT[2], 4 * 3840))
        self.exec_all()
        self.srd(SW, pWS, WSZ)
        self.srd(SX, pX, 2048 * 1280)
        self.staging()
        self.xi_publish()
        self.stamp('issued', 1)
        self.setup()
        self.silu(1)
        self.stamp('c', 2)
        a.wait_vm('m0')
        self.unit_tr(176, 96)
        a.wait_lg()
        for T in range(4): a(self.mfma(60 + 4 * T, 96 + 4 * T, 128, first=True))
        self.mod_write()
        self.barrier()
        self.mod_publish()
        self.stamp('mpub', 3)
        a.wait_vm('cp')
        a('s_mov_b32 exec_hi, 0x0fffffff')
        for x in range(5):
            a('buffer_store_dwordx4 %s, v1, s[%d:%d], s%d offen offset:%d sc1' % (V(192 + 4 * x, 4), SW, SW + 3, jD[0], 960 * x), 'cs')
        self.cf_addr()
        a('v_mov_b32 v14, s%d' % sTAG)
        a('s_mov_b64 exec, 1')
        a.wait_vm()
        a('buffer_store_dword v14, off, s[%d:%d], s%d sc1' % (SW, SW + 3, jD[1]))
        self.exec_all()
        self.stamp('pre', 4)
        a('v_and_b32 v50, 7, v0')
        a('v_lshlrev_b32 v50, 7, v50')
        self.xi_issue('xi')
        self.poll(50, sT[6], 51)
        self.stamp('modok', 5)
        self.b1_issue(0, self.o['nbn'])
        self.xi_check('xi')

    def unit_load(self, dst, va, soff, pitch, tag):
        a = self.a
        for q in range(4):
            h, gp = q >> 1, q & 1
            if isinstance(pitch, int):
                a('s_add_u32 s%d, s%d, %d' % (sT[7], soff, (16 * gp + 4 * h) * pitch))
            else:
                a('s_mul_i32 s%d, %s, %d' % (sT[7], pitch, 16 * gp + 4 * h))
                a('s_add_u32 s%d, s%d, s%d' % (sT[7], sT[7], soff))
            a('buffer_load_dwordx4 %s, v%d, s[%d:%d], s%d offen %s' % (R(dst + 4 * q, 4), va, SJ, SJ + 3, sT[7], self.o['jpol']), tag)
    def unit_tr(self, src, f):
        a = self.a
        for h in range(2):
            for gp in range(2): a('ds_write_b128 v42, %s offset:%d' % (R(src + 8 * h + 4 * gp, 4), 1024 * gp))
            for T in range(4): a('ds_read_b64_tr_b16 %s, v%d' % (V(f + 4 * T + 2 * h, 2), 140 + T), 'jf%d' % f)
    def unit_store(self, f, mask, dst):
        a = self.a
        self.exec_('s%d' % mask, 's%d' % mask)
        for T in range(4):
            a('buffer_store_dwordx4 %s, v1, s[%d:%d], s%d offen offset:%d sc1' % (V(f + 4 * T, 4), SW, SW + 3, dst, 1024 * T), 'jst')
        self.exec_all()

    def producer(self):
        a = self.a
        ML, XR_, XF_, MA, SF, MG = 256, 76, 176, 60, 128, 216
        E = self.o['early']
        a('s_mul_i32 s%d, s%d, %d' % (sT[5], sXO, 16 * 1280))
        a('s_mul_i32 s%d, s%d, 320' % (sT[1], sW))
        a('s_add_u32 s%d, s%d, s%d' % (sT[5], sT[5], sT[1]))
        a('s_lshr_b32 s%d, s%d, 1' % (sT[0], sT[3]))
        a('s_and_b32 s%d, s%d, 1' % (sT[1], sT[3]))
        a('s_sub_u32 s%d, 3, s%d' % (sNM, sT[1]))
        a('s_mul_i32 s%d, s%d, s%d' % (sT[2], sNM, sW))
        a('s_mul_i32 s%d, s%d, 12' % (sT[4], sT[1]))
        a('s_add_u32 s%d, s%d, s%d' % (sT[2], sT[2], sT[4]))
        a('s_lshl_b32 s%d, s%d, 6' % (sT[6], sT[2]))
        a('v_add_u32 v44, s%d, v41' % sT[6])
        a('s_mul_i32 s%d, s%d, %d' % (sT[6], sT[2], 32 * 7680))
        a('s_lshl_b32 s%d, s%d, 7' % (sT[4], sT[0]))
        a('s_add_u32 s%d, s%d, 2560' % (sT[4], sT[4]))
        a('s_add_u32 s%d, s%d, s%d' % (sT[6], sT[6], sT[4]))
        a('s_mul_i32 s%d, s%d, 15360' % (sMO, sT[1]))
        a('s_lshl1_add_u32 s%d, s%d, s%d' % (sMO, sT[4], sMO))
        a('s_add_u32 s%d, s%d, 0x%x' % (sMO, sMO, MODP))
        a('s_sub_u32 s%d, s%d, 2' % (sT[0], sT[0]))
        a('s_mul_i32 s%d, s%d, 3' % (sT[1], sT[3]))
        a('s_sub_u32 s%d, s%d, 200' % (sT[1], sT[1]))
        a('s_cmp_lt_u32 s%d, 80' % sT[3])
        a('s_cselect_b32 s%d, s%d, 0' % (sNM, sNM))
        a('s_cselect_b32 s%d, s%d, s%d' % (sT[0], sT[0], sT[1]))
        a.wait_lg()
        self.stamp('karg', 0)
        a('s_load_dword s%d, s[%d:%d], 0' % (sTAG, pWS, pWS + 1))
        a('s_mov_b32 s%d, s%d' % (sN, sT[3]))
        self.srd(SX, pX, 2048 * 1280)
        for s in range(5):
            a('buffer_load_dwordx4 %s, v43, s[%d:%d], s%d offen offset:%d %s' % (V(XR_ + 4 * s, 4), SX, SX + 3, sT[5], 64 * s, self.o['hpol']), 'xt')
        self.srd(S1, pC, 1280)
        a('buffer_load_dword v44, v44, s[%d:%d], 0 offen' % (S1, S1 + 3), 'c')
        for i in range(184): assert (i * 205) >> 11 == i // 10
        a('s_mov_b32 s%d, 0x20000' % (SJ + 3))
        def slot(u):
            a('s_add_u32 s%d, s%d, %d' % (sT[1], sJ0, u))
            if self.o['lin']:
                a('s_lshl2_add_u32 s%d, s%d, s%d' % (sT[3], sT[1], sW))
                a('s_mul_i32 s%d, s%d, 6554' % (sT[4], sT[3]))
                a('s_lshr_b32 s%d, s%d, 16' % (sT[4], sT[4]))
                a('s_mul_i32 s%d, s%d, 10' % (sT[2], sT[4]))
                a('s_sub_u32 s%d, s%d, s%d' % (sT[3], sT[3], sT[2]))
                a('s_lshr_b32 s%d, s%d, 2' % (sT[2], sT[4]))
            else:
                a('s_mul_i32 s%d, s%d, 205' % (sT[2], sT[1]))
                a('s_lshr_b32 s%d, s%d, 11' % (sT[2], sT[2]))
                a('s_mul_i32 s%d, s%d, 10' % (sT[3], sT[2]))
                a('s_sub_u32 s%d, s%d, s%d' % (sT[3], sT[1], sT[3]))
                a('s_lshl2_add_u32 s%d, s%d, s%d' % (sT[4], sT[2], sW))
            a('s_mul_i32 s%d, s%d, 40960' % (sT[4], sT[4]))
            a('s_lshl_b32 s%d, s%d, 12' % (jD[u], sT[3]))
            a('s_add_u32 s%d, s%d, s%d' % (jD[u], jD[u], sT[4]))
            a('s_add_u32 s%d, s%d, 0x%x' % (jD[u], jD[u], W2T))
            a('s_lshl_b32 s%d, s%d, 7' % (sT[3], sT[3]))
            a('s_add_u32 s%d, s%d, s%d' % (sT[4], sT[4], sT[3]))
            a('s_sub_u32 s%d, s%d, 819200' % (sT[3], sT[4]))
            a('s_cmp_lt_u32 s%d, 170' % sT[1])
            a('s_cselect_b32 s%d, -1, 0' % jS[u])
            a('s_cmp_lt_u32 s%d, 5' % sT[2])
            a('s_cselect_b32 s%d, s%d, s%d' % (SJ, pWO, pW2))
            a('s_cselect_b32 s%d, s%d, s%d' % (SJ + 1, pWO + 1, pW2 + 1))
            a('s_cselect_b32 s%d, 5, 12' % sT[2])
            a('s_cselect_b32 s%d, s%d, s%d' % (sT[4], sT[4], sT[3]))
            a('s_cmp_gt_u32 s%d, %d' % (sNM, u))
            a('s_cselect_b32 s%d, s%d, s%d' % (SJ, pWM, SJ))
            a('s_cselect_b32 s%d, s%d, s%d' % (SJ + 1, pWM + 1, SJ + 1))
            a('s_cselect_b32 s%d, 30, s%d' % (sT[2], sT[2]))
            a('s_cselect_b32 s%d, s%d, s%d' % (sT[4], sJ1, sT[4]))
            a('s_cselect_b32 s%d, 6, 1' % sT[3])
            a('s_cselect_b32 s%d, -1, s%d' % (sT[1], jS[u]))
            a('s_cselect_b32 s%d, 0, s%d' % (jS[u], jS[u]))
            a('s_cselect_b64 vcc, -1, 0')
            a('s_and_b32 s%d, s%d, 0xffff' % (SJ + 1, SJ + 1))
            a('s_mul_i32 s%d, s%d, 163840' % (SJ + 2, sT[2]))
            a('s_mul_i32 s%d, s%d, 1280' % (sT[3], sT[3]))
            a('v_cndmask_b32 v40, v39, v38, vcc')
            self.exec_('s%d' % sT[1], 's%d' % sT[1])
            self.unit_load(ML + 16 * u, 40, sT[4], 's%d' % sT[3], 'm%d' % u)
            self.exec_all()
            a('s_add_u32 s%d, s%d, %d' % (sJ1, sJ1, 32 * 7680))
        a('s_mov_b32 s%d, s%d' % (sJ0, sT[0]))
        a('s_mov_b32 s%d, s%d' % (sJ1, sT[6]))
        if E > 0: slot(0)
        self.srd(SW, pWS, WSZ)
        self.staging()
        self.xi_publish()
        self.stamp('issued', 1)
        self.setup()
        a('s_lshl2_add_u32 s%d, s%d, s%d' % (sTILE, sXO, sW))
        a('s_mul_i32 s%d, s%d, 5120' % (sTILE, sTILE))
        a('s_add_u32 s%d, s%d, 0x%x' % (sTILE, sTILE, WHB))
        a('v_mov_b32 v34, 0')
        a('v_mov_b32 v35, 0')
        a('s_lshl_b32 s%d, s%d, 7' % (sT[0], sW))
        a('s_add_u32 s%d, s%d, %d' % (sT[0], sT[0], HST))
        a('v_lshl_add_u32 v60, v2, 3, s%d' % sT[0])
        a('v_lshlrev_b32 v61, 3, v2')
        a('v_add_u32 v61, %d, v61' % HST)
        a('v_lshlrev_b32 v46, 7, v0')
        if self.o['fast']:
            a('s_mov_b32 exec_hi, 0xff')
            a('buffer_load_dword v254, v46, s[%d:%d], s%d offen' % (SW, SW + 3, sTILE))
            a('s_mov_b32 exec_hi, -1')
        a.wait_vm('xt')
        self.stamp('c', 2)
        for u in range(1, E): slot(u)
        self.xi_issue('xi')
        for d in range(20):
            a('v_dot2c_f32_bf16 v34, s%d, v%d' % (sONE, XR_ + d))
            a('v_dot2c_f32_bf16 v35, v%d, v%d' % (XR_ + d, XR_ + d))
        self.rowsum([34, 35], 36)
        a('ds_write_b64 v60, v[34:35]')
        self.barrier()
        for i in range(4): a('ds_read_b64 %s, v61 offset:%d' % (V(62 + 2 * i, 2), 128 * i))
        self.stamp('mpub', 3)
        for d in range(20):
            a('v_lshlrev_b32 v%d, 16, v%d' % (XF_ + 2 * d, XR_ + d))
            a('v_and_b32 v%d, s%d, v%d' % (XF_ + 1 + 2 * d, sHI, XR_ + d))
        a.wait_lg()
        a('v_pk_add_f32 v[62:63], v[62:63], v[64:65]')
        a('v_pk_add_f32 v[66:67], v[66:67], v[68:69]')
        a('v_pk_add_f32 v[34:35], v[62:63], v[66:67]')

        a('s_mov_b32 s%d, 0x%x' % (sT[7], f2u(1 / 640)))
        self.finstats(34, 35, 36)
        a('v_mul_f32 v34, -v34, v35')
        for d in range(20):
            a('v_pk_fma_f32 %s, %s, v[34:35], v[34:35] op_sel:[0,1,0] op_sel_hi:[1,1,0]' % (V(XF_ + 2 * d, 2), V(XF_ + 2 * d, 2)))
        a('v_and_b32 v60, 16, v7')
        a('v_lshlrev_b32 v61, 1, v7')
        a('v_sub_u32 v60, v61, v60')
        a('s_mul_i32 s%d, s%d, 768' % (sT[0], sW))
        a('s_add_u32 s%d, s%d, %d' % (sT[0], sT[0], SPARE))
        a('v_add_u32 v60, s%d, v60' % sT[0])
        if self.o['mw'] >= 0: a.wait_vm('m%d' % self.o['mw'])
        self.mod_issue([0, 1], MG, 7, 'mod', 5)
        self.xi_check('xi')
        a('s_cmp_ge_u32 s%d, 14' % sJ)
        a('s_cselect_b32 s%d, 1, s%d' % (sSL2, sSLOW))
        self.stamp('pre', 4)
        self.mod_check([0, 1], MG, 7, 'mod', 36, 5)
        self.stamp('modok', 5)
        self.plus1(MG + 20)
        self.unpack4(52, MG)
        self.unpack4(56, MG + 20)
        a('ds_write_b128 v60, v[56:59]')
        a('ds_write_b128 v60, v[52:55] offset:32')
        MSR = [96, 112, 60, 216, 232]
        for s in range(5):
            for x in range(4):
                a('ds_read_b128 %s, v145 offset:%d' % (V(MSR[s] + 4 * x, 4), 256 * s + 16 * x), 'ms%d' % s)
        for s in range(5):
            a.wait_lg('ms%d' % s)
            b, r = MSR[s], XF_ + 8 * s
            for d in range(4):
                a('v_pk_fma_f32 %s, %s, %s, %s' % (V(r + 2 * d, 2), V(r + 2 * d, 2), V(b + 2 * d, 2), V(b + 8 + 2 * d, 2)))
            for d, (e0, e1) in enumerate(((0, 2), (4, 6), (1, 3), (5, 7))):
                a('v_cvt_pk_bf16_f32 v%d, v%d, v%d' % (XR_ + 4 * s + d, r + e0, r + e1))
        self.st2(['buffer_store_dwordx4 %s, v%d, s[%d:%d], s%d offen offset:%d' % (V(XR_ + 4 * s, 4), 1 if s < 4 else 5, SW, SW + 3, sTILE, 1024 * (s & 3)) for s in range(5)], 'hst', sSL2)
        self.cf_addr()
        a('buffer_load_dword v51, v50, s[%d:%d], s%d offen sc1' % (SW, SW + 3, sT[6]), 'cf')
        for u in range(E, 3): slot(u)
        F = [96, 112, 224]
        self.silu(3)
        for u in range(E): self.unit_tr(ML + 16 * u, F[u])
        a('s_lshl_b32 s%d, s%d, 7' % (sT[0], sXO))
        a('s_add_u32 s%d, s%d, 0x%x' % (sT[0], sT[0], FX))
        a('v_lshlrev_b32 v46, 7, v0')
        a.wait_vm('hst')
        if self.o['touch']:
            a('s_mov_b32 exec_hi, 0xff')
            a('buffer_load_dword v254, v46, s[%d:%d], s%d offen sc1' % (SW, SW + 3, sTILE))
            a('s_mov_b32 exec_hi, -1')
        a('s_barrier')
        self.flagstore(sT[0], sSL2)
        self.stamp('hpub', 6)
        for u in range(E, 3):
            a.wait_vm('m%d' % u)
            self.unit_tr(ML + 16 * u, F[u])
        Lc = a.newlabel('cfok')
        a.wait_vm('cf')
        a('v_cmp_ne_u32 vcc, s%d, v51' % sTAG)
        a('s_cbranch_vccz %s' % Lc)
        self.poll(50, sT[6], 51)
        a.label(Lc)
        self.stamp('jobs', 7)
        self.b1_issue(0, self.o['nb1'])
        a.wait_lg()
        for u in range(3):
            if u == 2:
                Ls = a.newlabel('nomf')
                a('s_cmp_lg_u32 s%d, 3' % sNM)
                a('s_cbranch_scc1 %s' % Ls)
            for T in range(4): a(self.mfma(MA + 4 * T, F[u] + 4 * T, SF + 4 * u, first=(u == 0)))
            if u == 2: a.label(Ls)
            self.unit_store(F[u], jS[u], jD[u])
        self.mod_write()
        self.barrier()
        self.mod_publish()
        self.b1_issue(self.o['nb1'], self.o['nb2'])

    def jobflag(self):
        a = self.a
        a('s_lshl_b32 s%d, s%d, 2' % (sT[2], sN))
        a('s_add_u32 s%d, s%d, 0x%x' % (sT[2], sT[2], JF))
        a('v_mov_b32 v14, s%d' % sTAG)
        a('s_cmp_eq_u32 s%d, 1' % sW)
        a('s_cselect_b32 s%d, s%d, 0' % (sT[3], sPROD))
        a('s_and_b32 exec_lo, s%d, 1' % sT[3])
        a('s_mov_b32 exec_hi, 0')
        a('buffer_store_dword v14, off, s[%d:%d], s%d sc1' % (SW, SW + 3, sT[2]))
        self.exec_all()

    def setup(self):
        a = self.a
        self.srd(SO, pOUT, 2048 * 1280)
        a('v_min_u32 v7, 39, v0')
        a('s_mul_i32 s%d, s%d, 40' % (sT[0], sW))
        a('v_add_lshl_u32 v7, v7, s%d, 4' % sT[0])
        a('v_add_u32 v5, 4096, v1')
        a('v_lshrrev_b32 v148, 2, v0')
        a('v_mul_u32_u24 v148, 480, v148')
        a('v_and_b32 v149, 3, v0')
        a('v_lshl_add_u32 v8, v149, 3, v148')
        a('v_and_b32 v149, 2, v0')
        a('v_lshl_add_u32 v152, v149, 5, v8')
        for i in range(1, 4):
            a('v_add_u32 v%d, %d, v8' % (8 + i, RGN * i))
            a('v_add_u32 v%d, %d, v152' % (152 + i, RGN * i))
        a('v_add_u32 v12, s%d, v8' % sRB)
        a('v_add_u32 v156, s%d, v152' % sRB)
        a('s_lshr_b32 s%d, s%d, 1' % (sT[0], sW))
        a('s_mul_i32 s%d, s%d, %d' % (sT[0], sT[0], RGN - 12288))
        a('s_mul_i32 s%d, s%d, 6144' % (sT[1], sW))
        a('s_add_u32 s%d, s%d, s%d' % (sT[0], sT[0], sT[1]))
        a('s_add_u32 s%d, s%d, %d' % (sT[0], sT[0], HP))
        a('v_add_u32 v4, s%d, v1' % sT[0])
        a('s_cmp_eq_u32 s%d, 1' % sW)
        a('s_cselect_b32 s%d, 512, 0' % sT[0])
        a('v_or_b32 v157, s%d, v1' % sT[0])
        a('s_lshl_b32 s%d, s%d, 10' % (sT[0], sW))
        a('s_add_u32 s%d, s%d, %d' % (sT[0], sT[0], HP))
        a('v_add_u32 v157, s%d, v157' % sT[0])
        a('s_add_u32 s%d, s%d, 4' % (sT[1], sW))
        a('s_min_u32 s%d, s%d, 5' % (sT[1], sT[1]))
        a('s_lshl_b32 s%d, s%d, 10' % (sT[0], sT[1]))
        a('s_add_u32 s%d, s%d, %d' % (sT[0], sT[0], HP))
        a('v_add_u32 v158, s%d, v1' % sT[0])
        a('s_lshl_b32 s%d, s%d, 9' % (sT[0], sW))
        a('s_add_u32 s%d, s%d, %d' % (sT[0], sT[0], EX))
        a('v_lshl_add_u32 v159, v0, 3, s%d' % sT[0])
        a('s_lshl_b32 s%d, s%d, 9' % (sT[0], sT[1]))
        a('s_add_u32 s%d, s%d, %d' % (sT[0], sT[0], EX))
        a('v_lshl_add_u32 v160, v0, 3, s%d' % sT[0])
        a('s_mul_i32 s%d, s%d, 3072' % (sT[0], sW))
        a('s_add_u32 s%d, s%d, %d' % (sT[0], sT[0], EX))
        a('v_lshl_add_u32 v161, v0, 3, s%d' % sT[0])
        a('v_and_b32 v148, 1, v3')
        a('v_lshrrev_b32 v149, 1, v3')
        a('v_mad_u32_u24 v162, v148, 3, v149')
        a('v_lshlrev_b32 v150, 4, v2')
        a('v_lshl_add_u32 v162, v162, 8, v150')
        a('v_mul_u32_u24 v149, 20480, v149')
        a('v_lshl_add_u32 v163, v148, 3, v150')
        a('v_add_u32 v163, v163, v149')
        NEG = 0xff61b1e6
        a('s_or_b32 s%d, s%d, s%d' % (sT[0], sC, sW))
        a('s_cselect_b32 s%d, 0, 0x%x' % (sT[0], NEG))
        a('s_mov_b32 s%d, 0x80000001' % sT[1])
        a('s_mov_b32 s%d, 0x80000000' % sT[2])
        a('s_mov_b32 s%d, 0x07070303' % sT[3])
        a('v_mov_b32 v150, 0x%x' % NEG)
        a('v_lshlrev_b32 v148, 2, v3')
        a('v_sub_u32 v148, v2, v148')
        for e in range(4):
            a('v_subrev_u32 v149, %d, v148' % e)
            a('v_and_b32 v149, s%d, v149' % sT[1])
            a('v_cmp_ne_u32 vcc, 0, v149')
            a('v_cndmask_b32 v%d, 0, v150, vcc' % (16 + e))
            a('v_cmp_ne_u32 vcc, s%d, v149' % sT[2])
            a('v_cndmask_b32 v%d, 0, v150, vcc' % (20 + e))
            a('v_or_b32 v%d, s%d, v%d' % (24 + e, sT[0], 20 + e))
        for x, r in enumerate((20, 22, 16, 18)):
            a('v_perm_b32 v%d, v%d, v%d, s%d' % (28 + x, r + 1, r, sT[3]))
        a('s_mov_b64 s[%d:%d], 0xffff' % (sG0, sG0 + 1))
        a('s_mov_b32 s%d, 0xffff0000' % sG1)
        a('s_mov_b32 s%d, 0' % (sG1 + 1))
        a('s_lshl2_add_u32 s%d, s%d, s%d' % (sT[0], sC, sW))
        a('s_mul_i32 s%d, s%d, 40960' % (sT[0], sT[0]))
        for t in range(2):
            for i in range(4): a('s_add_u32 s%d, s%d, 0x%x' % (sP[4 * t + i], sT[0], WHB + 20480 * t + 5120 * i))
        a('s_mul_i32 s%d, s%d, 1280' % (sT[1], sJ))
        a('s_add_u32 s%d, s%d, s%d' % (sP[9], sT[0], sT[1]))
        a('s_add_u32 s%d, s%d, 0x%x' % (sP[9], sP[9], WO_))
        a('s_lshl_b32 s%d, s%d, 3' % (sT[0], sC))
        a('s_max_u32 s%d, s%d, 1' % (sT[1], sT[0]))
        a('s_sub_u32 s%d, s%d, 1' % (sT[1], sT[1]))
        a('s_lshl2_add_u32 s%d, s%d, s%d' % (sT[2], sT[1], sW))
        a('s_mul_i32 s%d, s%d, 5120' % (sT[2], sT[2]))
        a('s_add_u32 s%d, s%d, 0x%x' % (sP[8], sT[2], WHB))
        a('s_lshl1_add_u32 s%d, s%d, s%d' % (sT[0], sW, sT[0]))
        a('v_add_u32 v13, s%d, v0' % sT[0])
        a('v_mov_b32 v148, s%d' % sT[1])
        a('v_cmp_gt_u32 vcc, 2, v0')
        a('v_cndmask_b32 v13, v148, v13, vcc')
        a('v_lshlrev_b32 v13, 7, v13')
        self.w_addr()

    def p1_gemm(self):
        a = self.a
        o = self.o
        ACC, HACC, BB, HB, HA = 32, 96, 120, 176, 200
        HT = [2, 4, 3, 5, 6, 7]
        steps = [(s, i) for s in range(5) for i in range(4)]
        def bread(n, T, h):
            s, i = steps[n]
            a('ds_read_b64_tr_b16 %s, v%d offset:%d' % (R(BB + 4 * T + 2 * h, 2), (152 if T == 4 else 8) + i, 7680 * s + 240 * h + TOFF[T]), 'B%d_%d' % (n, T))
        def hread(s, x, h):
            a('ds_read_b64_tr_b16 %s, v%d offset:%d' % (R(HB + 4 * x + 2 * h, 2), 156 if HT[x] == 4 else 12, 7680 * s + 240 * h + TOFF[HT[x]]), 'HB%d' % s)
        areg = lambda x: 220 + 4 * x if x < 8 else 256 + 4 * (x - 8)
        def aload(x):
            s, i = steps[x >> 1]
            if 'noA1' in o['exp']: return
            self.ld(areg(x), 1024 * s, sP[4 * (x & 1) + i], 'A%d' % x, o['apol'])
        def mm(d, w, act, T, first):
            return self.mfma(d, act, w, first) if T >= 5 else self.mfma(d, w, act, first)
        a('s_mov_b32 s%d, 0x%x' % (sT[0], FX))
        self.stamp('b1i')
        self.poll(13, sT[0], 32)
        self.stamp('gemm0')
        aq = list(range(40))
        for _ in range(o['la1']): aload(aq.pop(0))
        self.ld(HA, 0, sP[8], 'HA0')
        a('s_barrier')
        for T in range(8):
            for h in range(2): bread(0, T, h)
        self.jobflag()
        b1f = lambda x: (lambda: self.b1_one(x, x == o['nb2'], sPROD if x < o['nbn'] else None))
        b1q = list(range(o['nb2'], 38))
        hrd = {1: (0, 0, 6), 3: (1, 0, 3), 4: (1, 3, 6), 6: (2, 0, 3), 7: (2, 3, 6), 9: (3, 0, 3), 10: (3, 3, 6), 12: (4, 0, 6)}
        hmm = {2: 0, 5: 1, 8: 2, 11: 3, 13: 4}
        HOFF = [0, 6144, 38400, 44544]
        for n in range(20):
            s, i = steps[n]
            if n == 6: a.wait_vm('b1_2')
            if n == 9: a.wait_vm('b1_3')
            if n == 12:
                assert not b1q
                a.wait_vm('b1_4')
            if n == 7 and o['nb2'] < 23: a('s_barrier')
            if n == 11:
                a('s_barrier'); self.level = 1
            if n == 15:
                a.wait_lg('hp'); a('s_barrier'); self.level = 2
            vm, ot = [], []
            k = 2 if (b1q and n >= 1) else o['ra1']
            for _ in range(k):
                if aq: vm.append(lambda x=aq.pop(0): aload(x))
            if n >= 1:
                for _ in range(2):
                    if b1q: vm.append(b1f(b1q.pop(0)))
            if 1 <= n < 5: vm.append(lambda: self.ld(HA + 4 * n, 1024 * n, sP[8], 'HA%d' % n))
            if n in hrd:
                hs, x0, x1 = hrd[n]
                ot += [lambda x=x, h=h: hread(hs, x, h) for x in range(x0, x1) for h in range(2)]
            hm = []
            if n in hmm:
                hs = hmm[n]
                hm = [mm(HACC + 4 * x, HB + 4 * x, HA + 4 * hs, HT[x], hs == 0) for x in range(6)]
            if n == 14:
                ot += [lambda: None] * 3 + [lambda x=x: a('ds_write_b128 v4, %s offset:%d' % (R(HACC + 4 * x, 4), 1024 * x), 'hp') for x in range(6)]
                pre = self.p2_pre()
            if n >= 14:
                vm += pre[:3]; pre = pre[3:]
            if n == 15:
                ot += [lambda y=y, p=p: a('ds_read_b128 %s, v%d offset:%d' % (V(HB + 16 * y + 4 * p, 4), 157 + y, HOFF[p]), 'hr') for y in range(2) for p in range(4)]
            if n in (16, 17):
                b = HB + 16 * (n - 16)
                if n == 16: a.wait_lg('hr')
                ot += [lambda e=e, p=p: a('v_add_f32 v%d, v%d, v%d' % (b + 8 * p + e, b + 8 * p + e, b + 8 * p + 4 + e)) for p in range(2) for e in range(4)]
                ot += [lambda e=e: a('v_add_f32 v%d, v%d, v%d' % (b + e, b + e, b + 8 + e)) for e in range(4)]
                ot += [lambda e=e: a('v_cvt_pk_bf16_f32 v%d, v%d, v%d' % (b + e, b + 2 * e, b + 2 * e + 1)) for e in range(2)]
                ot += [lambda: a('ds_write_b64 v%d, %s' % (159 + n - 16, V(b, 2)))]
            if n == o['jfi']: vm.append(lambda: self.jf_issue())
            if n == o['jfc']:
                self.jf_check()
                self.queue_after_jobs()
            vm += self.touches('g%d' % n)
            if n >= o['gp0']:
                vm += [self.pump] * max(0, o['g_pump'] - (len(vm) if n < 14 else 1))
            ngap = 16 + len(hm)
            slots = [[] for _ in range(ngap)]
            for q, f in enumerate(vm): slots[(q * ngap + ngap // 2) // len(vm)].append(f)
            free = [g for g in range(ngap) if not slots[g]]
            if len(free) < len(ot): free = list(range(ngap))
            for q, f in enumerate(ot): slots[free[q * len(free) // len(ot)]].append(f)
            a.wait_vm('A%d' % (2 * n + 1))
            for T in range(8):
                if T % 2 == 0: a.wait_lg('B%d_%d' % (n, T + 1 if T < 6 else T))
                if T == 7: a.wait_lg('B%d_7' % n)
                for t in range(2):
                    a(mm(ACC + 32 * t + 4 * T, BB + 4 * T, areg(2 * n + t), T, n == 0))
                    if T > 0 and n + 1 < 20: bread(n + 1, T - 1, t)
                    if T == 0 and n > 0: bread(n, 7, t)
                    for f in slots.pop(0): f()
                if hm and T >= 2:
                    if T == 2:
                        a.wait_vm('HA%d' % hs); a.wait_lg('HB%d' % hs)
                    a(hm.pop(0))
                    for f in slots.pop(0): f()
            assert not slots and not hm
        assert not aq and not b1q and not pre
        self.stamp('gemm1')

    def p1_attn(self):
        a = self.a
        ACC, S_, P_, X_ = 32, 176, 64, 80
        K = lambda t: 102 + 6 * t
        Vv = lambda y, t: 116 + 6 * y + 2 * t
        Q = lambda t, h: 132 + 8 * t + 4 * h
        np_ = [self.o['at_pump']]
        def pump(k=1):
            k = min(k, np_[0]); np_[0] -= k; self.pump(k)
        def cvt(d, r):
            a('v_cvt_pk_bf16_f32 v%d, v%d, v%d' % (d, r, r + 1))
            a('v_cvt_pk_bf16_f32 v%d, v%d, v%d' % (d + 1, r + 2, r + 3))
        def kv(t):
            r = ACC + 32 * t
            cvt(K(t), r + 8); cvt(K(t) + 4, r + 12)
            cvt(K(t) + 2, r + 16); cvt(148 + 2 * t, r + 16)
            cvt(Vv(0, t), r + 20)
            for e in range(2): a('v_permlane32_swap_b32 v%d, v%d' % (148 + 2 * t + e, K(t) + 2 + e))
            cvt(Vv(1, t), r + 24); cvt(Vv(2, t), r + 28)
        def qq(t):
            r = ACC + 32 * t
            cvt(Q(t, 0), r); cvt(Q(t, 1) + 2, r + 4)
            for e in range(2):
                a('v_cndmask_b32 v%d, 0, v%d, s[%d:%d]' % (Q(t, 0) + 2 + e, 148 + 2 * t + e, sG0, sG0 + 1))
                a('v_cndmask_b32 v%d, 0, v%d, s[%d:%d]' % (Q(t, 1) + e, 148 + 2 * t + e, sG1, sG1 + 1))
        def smm(u, cur):
            t, h = u >> 1, u & 1
            m = 16 if cur else (24 if t == 0 else 20)
            a('v_mfma_f32_16x16x32_bf16 %s, %s, %s, %s' % (V(S_ + 8 * u + 4 * cur, 4), V(K(t - 1 + cur) + 2 * h, 4), V(Q(t, h), 4), V(m, 4)))
        kv(1)
        for x in range(3): a('ds_write_b64 v161, %s offset:%d' % (V(K(1) + 2 * x, 2), 3072 + 512 * x))
        for y in range(3): a('ds_write_b64 v161, %s offset:%d' % (V(Vv(y, 1), 2), 3072 + 1536 + 512 * y))
        for f in self.touches('a0'): f()
        pump(2)
        kv(0)
        self.barrier()
        self.level = 3
        for x in range(3): a('ds_read_b64 %s, v161 offset:%d' % (V(K(-1) + 2 * x, 2), 512 * x), 'ek')
        for y in range(3): a('ds_read_b64 %s, v161 offset:%d' % (V(Vv(y, -1), 2), 1536 + 512 * y), 'ev')
        pump(3)
        qq(1)
        for u in (2, 3): smm(u, 0); smm(u, 1)
        qq(0)
        pump(2)
        for u in (0, 1): smm(u, 1)
        a.wait_lg('ek')
        for u in (0, 1): smm(u, 0)
        self.stamp('S')
        cs = LOG2E / math.sqrt(20.0)
        a('s_mov_b32 s%d, 0x%x' % (sT[1], f2u(cs)))
        sv = lambda u, i: X_ + 2 * u + i
        M = X_ + 8
        for u in (2, 3, 0, 1):
            b = S_ + 8 * u
            for i in range(2): a('v_max3_f32 v%d, v%d, v%d, v%d' % (sv(u, i), b + 2 * i, b + 2 * i + 1, b + 4 + 2 * i))
            for i in range(2): a('v_max_f32 v%d, v%d, v%d' % (sv(u, i), sv(u, i), b + 5 + 2 * i))
            a('v_max_f32 v%d, v%d, v%d' % (M + u, sv(u, 0), sv(u, 1)))
            pump(1)
        def allred(op, mid):
            a('v_permlane32_swap_b32 v%d, v%d' % (M, M + 2))
            a('v_permlane32_swap_b32 v%d, v%d' % (M + 1, M + 3))
            pump(1)
            a('%s v%d, v%d, v%d' % (op, M, M, M + 2))
            a('%s v%d, v%d, v%d' % (op, M + 1, M + 1, M + 3))
            pump(1)
            a('v_permlane16_swap_b32 v%d, v%d' % (M, M + 1))
            a('%s v%d, v%d, v%d' % (op, M, M, M + 1))
            a(mid % (M + 1, M)); a(mid % (M + 2, M)); a(mid % (M + 3, M)); a(mid % (M, M))
            pump(1)
            a('v_permlane16_swap_b32 v%d, v%d' % (M + 2, M + 3))
            a('v_permlane16_swap_b32 v%d, v%d' % (M, M + 1))
            pump(1)
            a('v_permlane32_swap_b32 v%d, v%d' % (M, M + 2))
            a('v_permlane32_swap_b32 v%d, v%d' % (M + 1, M + 3))
        allred('v_max_f32', 'v_mul_f32 v%%d, s%d, v%%d' % sT[1])
        for u in range(4):
            for i in range(2): a('v_fma_f32 v%d, v%d, s%d, -v%d' % (sv(u, i), sv(u, i), sT[1], M + u))
        for u in range(4):
            for i in range(2): a('v_exp_f32 v%d, v%d' % (sv(u, i), sv(u, i)))
        for u in range(4): a('v_add_f32 v%d, v%d, v%d' % (M + u, sv(u, 0), sv(u, 1)))
        allred('v_add_f32', 'v_rcp_f32 v%d, v%d')
        a.wait_lg('ev')
        for u in range(4):
            t, h = u >> 1, u & 1
            for i in range(2): a('v_mul_f32 v%d, v%d, v%d' % (sv(u, i), sv(u, i), M + u))
            for i in range(2): a('v_cvt_pk_bf16_f32 v%d, v%d, v%d' % (sv(u, i), sv(u, i), sv(u, i)))
            for x in range(4): a('v_bfi_b32 v%d, v%d, 0, v%d' % (P_ + 4 * u + x, 28 + x, sv(u, x & 1)))
            if u > 0: self.pv(u - 1)
        self.pv(3)
        O = S_
        for t in range(2):
            cvt(O + 4 * t, ACC + 16 * t); cvt(O + 4 * t + 2, ACC + 16 * t + 8)
            cvt(O + 8 + 2 * t, ACC + 16 * t + 4); cvt(O + 12, ACC + 16 * t + 12)
            for e in range(2): a('v_permlane16_swap_b32 v%d, v%d' % (O + 4 * t + e, O + 4 * t + 2 + e))
            for e in range(2): a('v_cndmask_b32 v%d, v%d, v%d, s[%d:%d]' % (O + 8 + 2 * t + e, O + 8 + 2 * t + e, O + 12 + e, sG1, sG1 + 1))
        a('s_add_u32 s%d, s%d, 20480' % (sT[0], sP[9]))
        for e in range(2): a('v_permlane32_swap_b32 v%d, v%d' % (O + 8 + e, O + 10 + e))
        self.st2(['buffer_store_dwordx4 %s, v162, s[%d:%d], s%d offen' % (V(O, 4), SW, SW + 3, sP[9]),
                  'buffer_store_dwordx4 %s, v162, s[%d:%d], s%d offen' % (V(O + 4, 4), SW, SW + 3, sT[0]),
                  'buffer_store_dwordx2 %s, v163, s[%d:%d], s%d offen offset:512' % (V(O + 8, 2), SW, SW + 3, sP[9])], 'ost')
        self.stamp('attn')

    def pv(self, u):
        t, h = u >> 1, u & 1
        for x, y in enumerate((h, 2)):
            self.a('v_mfma_f32_16x16x32_bf16 %s, %s, %s, 0' % (V(32 + 8 * u + 4 * x, 4), V(114 + 6 * y + 2 * t, 4), V(64 + 4 * u, 4)))

    def finish(self):
        a = self.a
        D = a.newlabel('ep')
        a('s_or_b32 s%d, s2, s%d' % (sT[0], sW))
        a('s_cmp_lg_u32 s%d, 0' % sT[0])
        a('s_cbranch_scc1 %s' % D)
        a('v_mov_b32 v14, s%d' % sTAG)
        self.exec_(1, 0)
        a('buffer_store_dword v14, off, s[%d:%d], 0 sc1' % (SW, SW + 3))
        self.exec_all()
        a.label(D)
        if self.stamps:
            a.wait_vm()
            self.stamp('end')
            a('v_writelane_b32 v15, s%d, 63' % sFAIL)
            a('v_writelane_b32 v15, s%d, 62' % sSLOW)
            a('s_lshl_b32 s%d, s2, 2' % sT[0])
            a('s_add_u32 s%d, s%d, s%d' % (sT[0], sT[0], sW))
            a('s_lshl_b32 s%d, s%d, 8' % (sT[0], sT[0]))
            a('s_add_u32 s%d, s%d, 0x%x' % (sT[0], sT[0], DBG))
            a('v_lshlrev_b32 v14, 2, v0')
            a('buffer_store_dword v15, v14, s[%d:%d], s%d offen' % (SW, SW + 3, sT[0]))
        a.label('L_end')
        a('s_endpgm')
        for c in self.cold: c()
        a.label('CODE_END')
        a('s_endpgm')

from gen2 import add_phases
add_phases(Gen, globals())

def build(stamps=False, opt=None):
    g = Gen(stamps, opt)
    g.run()
    body = g.a.finish()
    hdr = '''; fused adaLN block: persistent single launch, 256 workgroups (one per CU)
; @launch grid=(256,1,1) block=(256,1,1) lds=163840
.amdgcn_target "amdgcn-amd-amdhsa--gfx950"
.text
.globl {n}_kernel
.p2align 8
.type {n}_kernel,@function
{n}_kernel:
'''.format(n=NAME)
    tail = '''
.section .rodata,"a"
.p2align 6
.amdhsa_kernel {n}_kernel
  .amdhsa_next_free_vgpr 512
  .amdhsa_next_free_sgpr 102
  .amdhsa_accum_offset 256
  .amdhsa_group_segment_fixed_size 0
  .amdhsa_kernarg_size 88
  .amdhsa_user_sgpr_count 2
  .amdhsa_user_sgpr_kernarg_segment_ptr 1
  .amdhsa_system_sgpr_workgroup_id_x 1
.end_amdhsa_kernel
'''.format(n=NAME)
    return hdr + body + tail, g

def parse(kvs):
    o = {}
    for kv in kvs:
        k, v = kv.split('=', 1)
        o[k] = int(v) if v.lstrip('-').isdigit() else v.replace('+', ' ')
    return o

if __name__ == '__main__':
    if len(sys.argv) > 2 and sys.argv[1] == 'var':
        o = parse(sys.argv[3:])
        txt, g = build(True, o)
        open('v_%s.s' % sys.argv[2], 'w').write(txt)
        open('v_%s.names' % sys.argv[2], 'w').write('\n'.join(g.names))
        txt, g = build(False, o)
        open('p_%s.s' % sys.argv[2], 'w').write(txt)
    else:
        out = 'cdna_kernels/%s.s' % NAME
        txt, g = build(False)
        open(out, 'w').write(txt)
        print('written', out, len(txt), 'bytes; nops', g.a.npad)
```

```python
import sys, os, math
sys.path.insert(0, os.path.dirname(os.path.abspath(__file__)))
from asmlib import *

NAME = 'adaLN_cond__sliding_local_dilated__dense_activation_silu__prompt'

JF   = 0x1000
CF   = 0x60000
FO   = 0x2000
FY   = 0xA000
FH   = 0x12000
FX   = 0x1A000
XI   = 0x22000
MODP = 0x24000
ST   = 0x40000
W2T  = 0x80000
W4T  = W2T + 819200
WO_  = W4T + 1966080
WY   = WO_ + 2621440
WH   = WY + 2621440
WHB  = WH + 6291456
W1C  = WHB + 2621440
DBG  = W1C + 2457600
WSZ  = DBG + 1024 * 256

RGN   = 38400
SPARE = 153600
HST   = SPARE + 8192
MRED  = SPARE + 8704
HP    = 76800
EX    = 76800 + 12288
RED   = 92160
X1S   = 122880
UT    = 143360
GA_, C2F, GB_, C2B, S2B = SPARE, SPARE + 2560, SPARE + 5120, SPARE + 7680, SPARE + 8960
TOFF = [0, 48, 80, 128, 32, 160, 208, 192]

sW, sC, sJ, sTAG, sCI = 3, 4, 5, 6, 7
pX, pQ, pWO, pW1, pW2, pC, pWM, pOUT, pWS = 8, 10, 12, 16, 18, 20, 22, 24, 28
SX, SQ, SW, SO, S1, SJ = 32, 36, 40, 44, 48, 52
sRG, sCG = 30, 31
sP = [56, 57, 58, 59, 60, 61, 62, 63, 64, 65, 66, 67]
sB3M, sB4O = 68, 69
sG0, sG1 = 70, 72
jD = [74, 75, 76]; jS = [77, 78, 79]
sJ0, sJ1 = 100, 101
sTQ = 100
sNM = 80
sMO = 81
sRB = 82
sXO = 83
sB1 = 84
sPROD = 85
sT = [86, 87, 88, 89, 90, 91, 92, 93]
sCNT = 94
sONE = 95
sHI = 96
sFAIL = 97
sSLOW = 14
sN = 15
sTILE = 26
sSL2 = 27

LOG2E = 1.4426950408889634
def f2u(x):
    import struct
    return struct.unpack('<I', struct.pack('<f', x))[0]

DEF = dict(bpol='sc1', jpol='nt', hpol='', fast=0, cwarm=1, wpol='sc1', w1pol='', apol='sc1', spol='', touch=0, early=3, mw=1, lin=1, gp0=12, t2='x', t3a='x', t3b='x', t4a='x', t4b='x', fine=0, exp='',
           nb1=4, nb2=30, nbn=38, cpol='', ra1=4, la1=10, jfi=9, jfc=12, g_pump=4, at_pump=21,
           la2=12, la3=12, la4=12, ra3=3, o_pre=0, p2_pump=10, y_pre=0, p3_pump=60, h_pre=0)

class Gen:
    def __init__(self, stamps=False, opt=None):
        self.a = Asm()
        self.stamps = stamps
        self.o = dict(DEF); self.o.update(opt or {})
        self.nst = 0
        self.fq = []
        self.cold = []
        self.level = 0

    def stamp(self, name, idx=None):
        if not self.stamps: return
        a = self.a
        idx = self.nst if idx is None else idx
        a.c('stamp %d %s' % (idx, name))
        a('s_memrealtime s[98:99]')
        a.wait_lg()
        a('v_writelane_b32 v15, s98, %d' % idx)
        if idx >= self.nst:
            self.names = getattr(self, 'names', []) + [name]
            self.nst = idx + 1

    def srd(self, d, p, n):
        a = self.a
        a('s_mov_b32 s%d, s%d' % (d, p))
        a('s_and_b32 s%d, s%d, 0xffff' % (d + 1, p + 1))
        a('s_mov_b32 s%d, %d' % (d + 2, n))
        a('s_mov_b32 s%d, 0x20000' % (d + 3))

    def exec_(self, lo, hi):
        self.a('s_mov_b32 exec_lo, %s' % lo)
        self.a('s_mov_b32 exec_hi, %s' % hi)
    def exec_all(self):
        self.a('s_mov_b64 exec, -1')

    def barrier(self):
        self.a.wait_lg()
        self.a('s_barrier')

    def rowsum(self, regs, tmp):
        a = self.a
        for sw in ('v_permlane32_swap_b32', 'v_permlane16_swap_b32'):
            for i, r in enumerate(regs): a('v_mov_b32 v%d, v%d' % (tmp + i, r))
            for i, r in enumerate(regs): a('%s v%d, v%d' % (sw, r, tmp + i))
            for i, r in enumerate(regs): a('v_add_f32 v%d, v%d, v%d' % (r, r, tmp + i))

    def finstats(self, s1, s2, t):
        a = self.a
        a('v_mul_f32 v%d, 0x%x, v%d' % (s1, f2u(1 / 640), s1))
        a('v_mul_f32 v%d, v%d, v%d' % (t, s1, s1))
        a('v_fma_f32 v%d, v%d, s%d, -v%d' % (s2, s2, sT[7], t))
        a('v_max_f32 v%d, 0, v%d' % (s2, s2))
        a('v_add_f32 v%d, 0x%x, v%d' % (s2, f2u(1e-5), s2))
        a('v_rsq_f32 v%d, v%d' % (s2, s2))

    def poll(self, vaddr, soff, vt):
        a = self.a
        L, D = a.newlabel('poll'), a.newlabel('pdone')
        a('s_mov_b32 s%d, 0x8000' % sCNT)
        a.label(L)
        a('buffer_load_dword v%d, v%d, s[%d:%d], s%d offen sc1' % (vt, vaddr, SW, SW + 3, soff))
        a.wait_vm()
        a('v_cmp_ne_u32 vcc, s%d, v%d' % (sTAG, vt))
        a('s_cbranch_vccz %s' % D)
        a('s_sub_u32 s%d, s%d, 1' % (sCNT, sCNT))
        a('s_cmp_lg_u32 s%d, 0' % sCNT)
        a('s_cbranch_scc1 %s' % L)
        a.label(D)

    def mod_issue(self, vecs, r0, vaddr, tag, NP=2):
        a = self.a
        for i, vec in enumerate(vecs):
            for p in range(NP):
                a('s_mov_b32 s%d, 0x%x' % (sT[0], MODP + p * 15360 + vec * 2560))
                a('buffer_load_dwordx4 %s, v%d, s[%d:%d], s%d offen sc1' % (V(r0 + 4 * NP * i + 4 * p, 4), vaddr, SW, SW + 3, sT[0]), tag)

    def mod_check(self, vecs, r0, vaddr, tag, t, NP=2):
        a = self.a
        L, C, D = a.newlabel('mchk'), a.newlabel('mcold'), a.newlabel('mok')
        N = 4 * NP * len(vecs)
        a('s_mov_b32 s%d, 0x8000' % sCNT)
        for e in range(4): a('s_bfe_u32 s%d, s%d, 0x%x' % (sT[1 + e], sTAG, 0x80000 + 8 * e))
        a.wait_vm(tag)
        a.label(L)
        for x in range(N):
            a('v_xor_b32 v%d, s%d, v%d' % (r0 + x, sT[1 + (x & 3)], r0 + x))
            if x == 1: a('v_or_b32 v%d, v%d, v%d' % (t, r0, r0 + 1))
            elif x & 1: a('v_or3_b32 v%d, v%d, v%d, v%d' % (t, t, r0 + x - 1, r0 + x))
        a('v_cmp_ne_u32_sdwa vcc, v%d, v%d src0_sel:BYTE_0 src1_sel:BYTE_3' % (t, 0))
        a('s_cbranch_vccnz %s' % C)
        a.label(D)
        def cold():
            a.label(C)
            a('s_add_u32 s%d, s%d, 1' % (sFAIL, sFAIL))
            a('s_sub_u32 s%d, s%d, 1' % (sCNT, sCNT))
            a('s_cmp_eq_u32 s%d, 0' % sCNT)
            a('s_cbranch_scc1 %s' % D)
            self.mod_issue(vecs, r0, vaddr, None, NP)
            a('s_waitcnt vmcnt(0)')
            a('s_branch %s' % L)
        self.cold.append(cold)
        for p in range(1, NP):
            for i in range(len(vecs)):
                r = r0 + 4 * NP * i
                for e in (0, 2): a('v_pk_add_f32 %s, %s, %s' % (V(r + e, 2), V(r + e, 2), V(r + 4 * p + e, 2)))
        for i in range(len(vecs)):
            r = r0 + 4 * NP * i
            a('v_cvt_pk_bf16_f32 v%d, v%d, v%d' % (r, r, r + 1))
            a('v_cvt_pk_bf16_f32 v%d, v%d, v%d' % (r + 1, r + 2, r + 3))

    def unpack4(self, d, s):
        a = self.a
        a('v_lshlrev_b32 v%d, 16, v%d' % (d, s))
        a('v_and_b32 v%d, s%d, v%d' % (d + 1, sHI, s))
        a('v_lshlrev_b32 v%d, 16, v%d' % (d + 2, s + 1))
        a('v_and_b32 v%d, s%d, v%d' % (d + 3, sHI, s + 1))

    def plus1(self, r):
        a = self.a
        self.unpack4(r + 4, r)
        for e in range(4): a('v_add_f32 v%d, 1.0, v%d' % (r + 4 + e, r + 4 + e))
        a('v_cvt_pk_bf16_f32 v%d, v%d, v%d' % (r, r + 4, r + 5))
        a('v_cvt_pk_bf16_f32 v%d, v%d, v%d' % (r + 1, r + 6, r + 7))

    def mfma(self, d, wa, act, first=False):
        c = '0' if first else R(d, 4)
        return 'v_mfma_f32_16x16x32_bf16 %s, %s, %s, %s' % (R(d, 4), R(wa, 4), R(act, 4), c)

    def pump(self, k=1):
        while k > 0 and self.fq and self.fq[0][0] <= self.level:
            self.fq.pop(0)[1]()
            k -= 1
    def flush(self, name):
        while any(e[2] == name for e in self.fq):
            assert self.fq[0][0] <= self.level
            self.fq.pop(0)[1]()

    def st2(self, texts, tag=None, sl=None):
        a = self.a
        if not self.o['fast']:
            for t in texts:
                if t.startswith('buffer'): a(t + ' sc1', tag)
                else: a(t)
            return
        Ls, Ld = a.newlabel('slow'), a.newlabel('sdone')
        a('s_cmp_lg_u32 s%d, 0' % (sSLOW if sl is None else sl))
        a('s_cbranch_scc1 %s' % Ls)
        for t in texts: a(t + (' ' + self.o['spol'] if t.startswith('buffer') else ''), tag)
        a.label(Ld)
        def cold():
            a.label(Ls)
            a('s_nop 4')
            for t in texts: a.items.append(Ins(t + (' sc1' if t.startswith('buffer') else '')))
            a('s_nop 1')
            a('s_branch %s' % Ld)
        self.cold.append(cold)

    def flagstore(self, soff, sl=None):
        a = self.a
        D = a.newlabel('pub')
        a('s_cmp_lg_u32 s%d, 0' % sW)
        a('s_cbranch_scc1 %s' % D)
        a('v_mov_b32 v14, s%d' % sTAG)
        self.exec_(1, 0)
        save = list(a.vm)
        self.st2(['buffer_store_dword v14, off, s[%d:%d], s%d' % (SW, SW + 3, soff)], None, sl)
        a.vm = save
        self.exec_all()
        a.label(D)

    def publish(self, base, tag=None, touch=None):
        a = self.a
        a('s_lshl_b32 s%d, s%d, 7' % (sT[0], sCI))
        a('s_add_u32 s%d, s%d, 0x%x' % (sT[0], sT[0], base))
        if touch and self.o['touch']: touch[0]()
        a.wait_vm(tag)
        if touch and self.o['touch']: touch[1]()
        self.barrier()
        self.flagstore(sT[0])

    def xi_issue(self, tag):
        a = self.a
        a('s_lshl_b32 s%d, s%d, 7' % (sT[0], sC))
        a('s_add_u32 s%d, s%d, 0x%x' % (sT[0], sT[0], XI))
        a('v_lshlrev_b32 v32, 2, v2')
        a('buffer_load_dword v33, v32, s[%d:%d], s%d offen sc1' % (SW, SW + 3, sT[0]), tag)
    def xi_check(self, tag):
        a = self.a
        L, D = a.newlabel('xi'), a.newlabel('xiok')
        a.wait_vm(tag)
        a('s_mov_b32 s%d, 0x8000' % sCNT)
        a.label(L)
        a('v_subrev_u32 v33, s%d, v33' % sTAG)
        a('v_cmp_lt_u32 vcc, 15, v33')
        a('s_cbranch_vccz %s' % D)
        a('s_sub_u32 s%d, s%d, 1' % (sCNT, sCNT))
        a('s_cmp_eq_u32 s%d, 0' % sCNT)
        a('s_cbranch_scc1 %s' % D)
        save = list(a.vm)
        self.xi_issue(None)
        a('s_waitcnt vmcnt(0)')
        a.vm = save
        a('s_branch %s' % L)
        a.label(D)
        a('v_readfirstlane_b32 s%d, v33' % sT[0])
        a('v_cmp_ne_u32 vcc, s%d, v33' % sT[0])
        a('s_or_b32 s%d, vcc_lo, vcc_hi' % sSLOW)

    def b1_one(self, x, force=False, mask=None):
        a = self.a
        if force or x % 4 == 0:
            a('s_add_u32 m0, s%d, %d' % (sRB, 4096 * (x // 4)))
            a('s_add_u32 s%d, s%d, %d' % (sT[7], sB1, 4096 * (x // 4)))
        if mask is not None: a('s_mov_b32 exec_lo, s%d' % mask)
        if x == 37: a('s_mov_b32 exec_hi, 0')
        elif mask is not None: a('s_mov_b32 exec_hi, s%d' % mask)
        a('buffer_load_dwordx4 v1, s[%d:%d], s%d offen offset:%d %s lds' % (SW, SW + 3, sT[7], 1024 * (x & 3), self.o['bpol']), 'b1_%d' % (2 * x // 15))
        if x == 37 or mask is not None: self.exec_all()
    def b1_issue(self, x0, x1):
        for x in range(x0, x1): self.b1_one(x, x == x0)

    def xi_publish(self):
        a = self.a
        a.wait_lg()
        a('s_add_u32 s%d, s%d, 0x9e3779b9' % (sTAG, sTAG))
        a('s_getreg_b32 s%d, hwreg(HW_REG_XCC_ID, 0, 4)' % sT[1])
        a('s_add_u32 s%d, s%d, s%d' % (sT[1], sT[1], sTAG))
        a('v_mov_b32 v14, s%d' % sT[1])
        a('s_lshl_b32 s%d, s%d, 7' % (sT[0], sC))
        a('s_lshl2_add_u32 s%d, s%d, s%d' % (sT[0], sJ, sT[0]))
        a('s_add_u32 s%d, s%d, 0x%x' % (sT[0], sT[0], XI))
        a('s_cmp_eq_u32 s%d, 0' % sW)
        a('s_cselect_b32 exec_lo, 1, 0')
        a('s_mov_b32 exec_hi, 0')
        a('buffer_store_dword v14, off, s[%d:%d], s%d sc1' % (SW, SW + 3, sT[0]))
        self.exec_all()

    def prologue(self):
        a = self.a
        a('s_cmp_ge_u32 s2, 256')
        a('s_cbranch_scc1 L_end')
        a('s_load_dwordx16 s[8:23], s[0:1], 0')
        a('s_load_dwordx4 s[24:27], s[0:1], 64')
        a('s_load_dwordx2 s[28:29], s[0:1], 80')
        if self.o['cwarm']:
            a('s_getpc_b64 s[%d:%d]' % (SJ, SJ + 1))
            a('s_and_b32 s%d, s%d, 0xffff' % (SJ + 1, SJ + 1))
            a('s_mov_b32 s%d, CODE_END-%s_kernel-64' % (SJ + 2, NAME))
            a('s_mov_b32 s%d, 0x20000' % (SJ + 3))
            a('s_bfe_u32 s%d, s2, 0x10003' % sT[0])
            a('s_lshl_b32 s%d, s%d, 15' % (sT[0], sT[0]))
            a('v_lshl_add_u32 v1, v0, 7, s%d' % sT[0])
            a('buffer_load_dword v255, v1, s[%d:%d], 0 offen' % (SJ, SJ + 3), 'cw')
        a('v_lshrrev_b32 v1, 6, v0')
        a('v_and_b32 v0, 63, v0')
        a('v_readfirstlane_b32 s%d, v1' % sW)
        a('v_lshlrev_b32 v1, 4, v0')
        if self.stamps: a('v_mov_b32 v15, 0')
        a('s_mov_b32 s%d, 0' % sFAIL)
        a('s_and_b32 s%d, s2, 7' % sT[0])
        a('s_lshr_b32 s%d, s2, 7' % sT[1])
        a('s_lshl1_add_u32 s%d, s%d, s%d' % (sC, sT[0], sT[1]))
        a('s_bfe_u32 s%d, s2, 0x40003' % sJ)
        a('s_lshl4_add_u32 s%d, s%d, s%d' % (sCI, sC, sJ))
        a('s_lshr_b32 s%d, s%d, 3' % (sRG, sJ))
        a('s_and_b32 s%d, s%d, 7' % (sCG, sJ))
        a('s_mov_b32 s%d, 0x3f803f80' % sONE)
        a('s_mov_b32 s%d, 0xffff0000' % sHI)
        a('s_mul_i32 s%d, s%d, %d' % (sRB, sW, RGN))
        a('s_mul_i32 s%d, s%d, 153600' % (sB1, sJ))
        a('s_add_u32 s%d, s%d, s%d' % (sB1, sB1, sRB))
        a('s_add_u32 s%d, s%d, 0x%x' % (sB1, sB1, W1C))
        a('v_and_b32 v2, 15, v0')
        a('v_lshrrev_b32 v3, 4, v0')
        a('v_lshrrev_b32 v36, 5, v0')
        a('v_bfe_u32 v37, v0, 3, 2')
        a('v_lshl_add_u32 v36, v36, 3, v37')
        a('v_and_b32 v37, 0x70, v1')
        a('v_mul_u32_u24 v38, 7680, v36')
        a('v_add_u32 v38, v38, v37')
        a('v_mul_u32_u24 v39, 1280, v36')
        a('v_add_u32 v39, v39, v37')
        a('v_lshlrev_b32 v41, 2, v0')
        a('v_mul_u32_u24 v6, 52, v0')
        a('v_lshrrev_b32 v6, 8, v6')
        a('v_mul_u32_u24 v6, 1200, v6')
        a('v_add_u32 v6, v6, v1')
        a('v_mul_u32_u24 v43, 1280, v2')
        a('v_lshl_add_u32 v43, v3, 4, v43')
        a('s_lshr_b32 s%d, s%d, 1' % (sT[2], sJ))
        a('s_lshl3_add_u32 s%d, s%d, s%d' % (sT[3], sT[1], sT[2]))
        a('s_lshl3_add_u32 s%d, s%d, s%d' % (sT[3], sT[3], sT[0]))
        a('s_lshl3_add_u32 s%d, s%d, s%d' % (sXO, sC, sT[2]))
        a('s_xor_b32 s%d, s%d, s%d' % (sT[1], sT[1], sJ))
        a('s_and_b32 s%d, s%d, 1' % (sT[1], sT[1]))
        a('s_sub_u32 s%d, 0, s%d' % (sPROD, sT[1]))
        Lp, Ld = a.newlabel('prod'), a.newlabel('join')
        a('s_cbranch_scc1 %s' % Lp)
        save = (list(a.vm), list(a.lg))
        self.plain()
        a('s_branch %s' % Ld)
        a.vm, a.lg = save
        a.label(Lp)
        self.producer()
        a.label(Ld)

    def staging(self):
        a = self.a
        a('s_lshl_b32 s%d, s%d, 11' % (sT[0], sW))
        a('s_add_u32 s%d, s%d, %d' % (sT[0], sT[0], SPARE))
        a('v_and_b32 v42, 0x30, v0')
        a('v_lshlrev_b32 v42, 1, v42')
        a('v_xor_b32 v42, v42, v1')
        a('v_add_u32 v42, s%d, v42' % sT[0])
        a('v_lshrrev_b32 v140, 2, v0')
        a('v_and_b32 v141, 6, v140')
        a('v_lshlrev_b32 v141, 4, v141')
        a('v_lshl_add_u32 v140, v140, 7, v141')
        a('v_and_b32 v141, 3, v0')
        a('v_lshl_add_u32 v140, v141, 3, v140')
        a('v_add_u32 v140, s%d, v140' % sT[0])
        for T in range(1, 4): a('v_xor_b32 v%d, %d, v140' % (140 + T, 32 * T))
        a('v_add_u32 v41, s%d, v41' % sT[0])
        a('v_lshl_add_u32 v45, v3, 4, s%d' % sT[0])
        a('v_lshl_add_u32 v145, v3, 6, s%d' % sT[0])
        a('s_lshl_b32 s%d, s%d, 8' % (sT[0], sW))
        a('s_add_u32 s%d, s%d, %d' % (sT[0], sT[0], MRED))
        a('v_lshl_add_u32 v144, v3, 4, s%d' % sT[0])
        a('v_lshlrev_b32 v146, 4, v2')
        a('v_add_u32 v147, %d, v146' % MRED)
    def silu(self, nu):
        a = self.a
        a.wait_vm('c')
        a('v_lshlrev_b32 v46, 16, v44')
        a('v_and_b32 v47, s%d, v44' % sHI)
        for r in (46, 47): a('v_mul_f32 v%d, 0x%x, v%d' % (r + 2, f2u(-LOG2E), r))
        for r in (46, 47): a('v_exp_f32 v%d, v%d' % (r + 2, r + 2))
        for r in (46, 47): a('v_add_f32 v%d, 1.0, v%d' % (r + 2, r + 2))
        for r in (46, 47): a('v_rcp_f32 v%d, v%d' % (r + 2, r + 2))
        for r in (46, 47): a('v_mul_f32 v%d, v%d, v%d' % (r, r, r + 2))
        a('v_cvt_pk_bf16_f32 v44, v46, v47')
        a('ds_write_b32 v41, v44')
        for u in range(nu):
            a('ds_read_b128 %s, v45 offset:%d' % (V(128 + 4 * u, 4), 64 * u), 'silu')
    def mod_write(self):
        a = self.a
        self.exec_('0x00010001', '0x00010001')
        a('s_nop 6')
        for T in range(4): a('ds_write_b128 v144, %s offset:%d' % (V(60 + 4 * T, 4), 64 * T))
        self.exec_all()
    def mod_publish(self):
        a = self.a
        MA = 60
        Ld = a.newlabel('nomod')
        a('s_cmp_eq_u32 s%d, 0' % sNM)
        a('s_cselect_b32 s%d, 1, s%d' % (sT[5], sW))
        a('s_cmp_lg_u32 s%d, 0' % sT[5])
        a('s_cbranch_scc1 %s' % Ld)
        for i in range(4): a('ds_read_b128 %s, v147 offset:%d' % (V(MA + 4 * i, 4), 256 * i))
        a('s_mov_b32 s%d, 0xffffff00' % sT[0])
        for e in range(4): a('s_bfe_u32 s%d, s%d, 0x%x' % (sT[1 + e], sTAG, 0x80000 + 8 * e))
        a.wait_lg()
        for hh in (0, 2):
            a('v_pk_add_f32 %s, %s, %s' % (V(MA + hh, 2), V(MA + hh, 2), V(MA + 4 + hh, 2)))
            a('v_pk_add_f32 %s, %s, %s' % (V(MA + 8 + hh, 2), V(MA + 8 + hh, 2), V(MA + 12 + hh, 2)))
        for hh in (0, 2):
            a('v_pk_add_f32 %s, %s, %s' % (V(MA + hh, 2), V(MA + hh, 2), V(MA + 8 + hh, 2)))
        for e in range(4): a('v_and_b32 v%d, s%d, v%d' % (MA + e, sT[0], MA + e))
        for e in range(4): a('v_or_b32 v%d, s%d, v%d' % (MA + e, sT[1 + e], MA + e))
        a('s_mov_b64 exec, 0xffff')
        a.items.append(Ins('buffer_store_dwordx4 %s, v146, s[%d:%d], s%d offen sc1' % (V(MA, 4), SW, SW + 3, sMO)))
        self.exec_all()
        a.label(Ld)
    def cf_addr(self):
        a = self.a
        a('s_lshl2_add_u32 s%d, s%d, s%d' % (sT[6], sJ, sW))
        a('s_lshl_b32 s%d, s%d, 10' % (sT[6], sT[6]))
        a('s_add_u32 s%d, s%d, 0x%x' % (sT[6], sT[6], CF))
        a('v_and_b32 v50, 7, v0')
        a('v_lshlrev_b32 v50, 7, v50')

    def plain(self):
        a = self.a
        a('s_mul_i32 s%d, s%d, 205' % (sT[0], sT[3]))
        a('s_lshr_b32 s%d, s%d, 10' % (sT[0], sT[0]))
        a('s_mul_i32 s%d, s%d, 5' % (sT[1], sT[0]))
        a('s_sub_u32 s%d, s%d, s%d' % (sT[1], sT[3], sT[1]))
        a('s_lshl2_add_u32 s%d, s%d, s%d' % (sT[2], sT[1], sW))
        a('s_lshl_b32 s%d, s%d, 6' % (sT[6], sT[2]))
        a('s_mul_i32 s%d, s%d, %d' % (sT[5], sT[2], 32 * 7680))
        a('s_lshl_b32 s%d, s%d, 7' % (sT[4], sT[0]))
        a('s_add_u32 s%d, s%d, s%d' % (sT[5], sT[5], sT[4]))
        a('s_mul_i32 s%d, s%d, 15360' % (sMO, sT[1]))
        a('s_lshl1_add_u32 s%d, s%d, s%d' % (sMO, sT[4], sMO))
        a('s_add_u32 s%d, s%d, 0x%x' % (sMO, sMO, MODP))
        a('s_cmp_lt_u32 s%d, 100' % sT[3])
        a('s_cselect_b32 s%d, -1, 0' % sNM)
        a('v_add_u32 v44, s%d, v41' % sT[6])
        a('s_lshr_b32 s%d, s%d, 2' % (sT[0], sT[3]))
        a('s_and_b32 s%d, s%d, 3' % (sT[1], sT[3]))
        a('s_lshl2_add_u32 s%d, s%d, s%d' % (sT[1], sT[1], sW))
        a('s_mul_i32 s%d, s%d, %d' % (sT[2], sT[0], 20 * 3840))
        a('s_mul_i32 s%d, s%d, 80' % (sT[4], sT[1]))
        a('s_add_u32 s%d, s%d, s%d' % (sT[2], sT[2], sT[4]))
        a('s_lshl_b32 s%d, s%d, 5' % (sT[1], sT[1]))
        a('s_add_u32 s%d, s%d, s%d' % (sT[1], sT[1], sT[0]))
        a('s_mul_i32 s%d, s%d, 4800' % (jD[0], sT[1]))
        a('s_add_u32 s%d, s%d, 0x%x' % (jD[0], jD[0], W1C))
        a('s_lshl_b32 s%d, s%d, 7' % (jD[1], sT[1]))
        a('s_add_u32 s%d, s%d, 0x%x' % (jD[1], jD[1], CF))
        a.wait_lg()
        self.stamp('karg', 0)
        a('s_load_dword s%d, s[%d:%d], 0' % (sTAG, pWS, pWS + 1))
        a('s_mov_b32 s%d, 0' % sN)
        self.srd(S1, pC, 1280)
        a('buffer_load_dword v44, v44, s[%d:%d], 0 offen' % (S1, S1 + 3), 'c')
        self.srd(SJ, pWM, 640 * 7680)
        self.exec_('s%d' % sNM, 's%d' % sNM)
        self.unit_load(176, 38, sT[5], 7680, 'm0')
        self.srd(SQ, pQ, 640 * 3840)
        self.exec_(-1, '0x0fffffff')
        for x in range(5):
            a('buffer_load_dwordx4 %s, v6, s[%d:%d], s%d offen %s' % (V(192 + 4 * x, 4), SQ, SQ + 3, sT[2], self.o['cpol']), 'cp')
            if x < 4: a('s_add_u32 s%d, s%d, %d' % (sT[2], sT[2], 4 * 3840))
        self.exec_all()
        self.srd(SW, pWS, WSZ)
        self.srd(SX, pX, 2048 * 1280)
        self.staging()
        self.xi_publish()
        self.stamp('issued', 1)
        self.setup()
        self.silu(1)
        self.stamp('c', 2)
        a.wait_vm('m0')
        self.unit_tr(176, 96)
        a.wait_lg()
        for T in range(4): a(self.mfma(60 + 4 * T, 96 + 4 * T, 128, first=True))
        self.mod_write()
        self.barrier()
        self.mod_publish()
        self.stamp('mpub', 3)
        a.wait_vm('cp')
        a('s_mov_b32 exec_hi, 0x0fffffff')
        for x in range(5):
            a('buffer_store_dwordx4 %s, v1, s[%d:%d], s%d offen offset:%d sc1' % (V(192 + 4 * x, 4), SW, SW + 3, jD[0], 960 * x), 'cs')
        self.cf_addr()
        a('v_mov_b32 v14, s%d' % sTAG)
        a('s_mov_b64 exec, 1')
        a.wait_vm()
        a('buffer_store_dword v14, off, s[%d:%d], s%d sc1' % (SW, SW + 3, jD[1]))
        self.exec_all()
        self.stamp('pre', 4)
        a('v_and_b32 v50, 7, v0')
        a('v_lshlrev_b32 v50, 7, v50')
        self.xi_issue('xi')
        self.poll(50, sT[6], 51)
        self.stamp('modok', 5)
        self.b1_issue(0, self.o['nbn'])
        self.xi_check('xi')

    def unit_load(self, dst, va, soff, pitch, tag):
        a = self.a
        for q in range(4):
            h, gp = q >> 1, q & 1
            if isinstance(pitch, int):
                a('s_add_u32 s%d, s%d, %d' % (sT[7], soff, (16 * gp + 4 * h) * pitch))
            else:
                a('s_mul_i32 s%d, %s, %d' % (sT[7], pitch, 16 * gp + 4 * h))
                a('s_add_u32 s%d, s%d, s%d' % (sT[7], sT[7], soff))
            a('buffer_load_dwordx4 %s, v%d, s[%d:%d], s%d offen %s' % (R(dst + 4 * q, 4), va, SJ, SJ + 3, sT[7], self.o['jpol']), tag)
    def unit_tr(self, src, f):
        a = self.a
        for h in range(2):
            for gp in range(2): a('ds_write_b128 v42, %s offset:%d' % (R(src + 8 * h + 4 * gp, 4), 1024 * gp))
            for T in range(4): a('ds_read_b64_tr_b16 %s, v%d' % (V(f + 4 * T + 2 * h, 2), 140 + T), 'jf%d' % f)
    def unit_store(self, f, mask, dst):
        a = self.a
        self.exec_('s%d' % mask, 's%d' % mask)
        for T in range(4):
            a('buffer_store_dwordx4 %s, v1, s[%d:%d], s%d offen offset:%d sc1' % (V(f + 4 * T, 4), SW, SW + 3, dst, 1024 * T), 'jst')
        self.exec_all()

    def producer(self):
        a = self.a
        ML, XR_, XF_, MA, SF, MG = 256, 76, 176, 60, 128, 216
        E = self.o['early']
        a('s_mul_i32 s%d, s%d, %d' % (sT[5], sXO, 16 * 1280))
        a('s_mul_i32 s%d, s%d, 320' % (sT[1], sW))
        a('s_add_u32 s%d, s%d, s%d' % (sT[5], sT[5], sT[1]))
        a('s_lshr_b32 s%d, s%d, 1' % (sT[0], sT[3]))
        a('s_and_b32 s%d, s%d, 1' % (sT[1], sT[3]))
        a('s_sub_u32 s%d, 3, s%d' % (sNM, sT[1]))
        a('s_mul_i32 s%d, s%d, s%d' % (sT[2], sNM, sW))
        a('s_mul_i32 s%d, s%d, 12' % (sT[4], sT[1]))
        a('s_add_u32 s%d, s%d, s%d' % (sT[2], sT[2], sT[4]))
        a('s_lshl_b32 s%d, s%d, 6' % (sT[6], sT[2]))
        a('v_add_u32 v44, s%d, v41' % sT[6])
        a('s_mul_i32 s%d, s%d, %d' % (sT[6], sT[2], 32 * 7680))
        a('s_lshl_b32 s%d, s%d, 7' % (sT[4], sT[0]))
        a('s_add_u32 s%d, s%d, 2560' % (sT[4], sT[4]))
        a('s_add_u32 s%d, s%d, s%d' % (sT[6], sT[6], sT[4]))
        a('s_mul_i32 s%d, s%d, 15360' % (sMO, sT[1]))
        a('s_lshl1_add_u32 s%d, s%d, s%d' % (sMO, sT[4], sMO))
        a('s_add_u32 s%d, s%d, 0x%x' % (sMO, sMO, MODP))
        a('s_sub_u32 s%d, s%d, 2' % (sT[0], sT[0]))
        a('s_mul_i32 s%d, s%d, 3' % (sT[1], sT[3]))
        a('s_sub_u32 s%d, s%d, 200' % (sT[1], sT[1]))
        a('s_cmp_lt_u32 s%d, 80' % sT[3])
        a('s_cselect_b32 s%d, s%d, 0' % (sNM, sNM))
        a('s_cselect_b32 s%d, s%d, s%d' % (sT[0], sT[0], sT[1]))
        a.wait_lg()
        self.stamp('karg', 0)
        a('s_load_dword s%d, s[%d:%d], 0' % (sTAG, pWS, pWS + 1))
        a('s_mov_b32 s%d, s%d' % (sN, sT[3]))
        self.srd(SX, pX, 2048 * 1280)
        for s in range(5):
            a('buffer_load_dwordx4 %s, v43, s[%d:%d], s%d offen offset:%d %s' % (V(XR_ + 4 * s, 4), SX, SX + 3, sT[5], 64 * s, self.o['hpol']), 'xt')
        self.srd(S1, pC, 1280)
        a('buffer_load_dword v44, v44, s[%d:%d], 0 offen' % (S1, S1 + 3), 'c')
        for i in range(184): assert (i * 205) >> 11 == i // 10
        a('s_mov_b32 s%d, 0x20000' % (SJ + 3))
        def slot(u):
            a('s_add_u32 s%d, s%d, %d' % (sT[1], sJ0, u))
            if self.o['lin']:
                a('s_lshl2_add_u32 s%d, s%d, s%d' % (sT[3], sT[1], sW))
                a('s_mul_i32 s%d, s%d, 6554' % (sT[4], sT[3]))
                a('s_lshr_b32 s%d, s%d, 16' % (sT[4], sT[4]))
                a('s_mul_i32 s%d, s%d, 10' % (sT[2], sT[4]))
                a('s_sub_u32 s%d, s%d, s%d' % (sT[3], sT[3], sT[2]))
                a('s_lshr_b32 s%d, s%d, 2' % (sT[2], sT[4]))
            else:
                a('s_mul_i32 s%d, s%d, 205' % (sT[2], sT[1]))
                a('s_lshr_b32 s%d, s%d, 11' % (sT[2], sT[2]))
                a('s_mul_i32 s%d, s%d, 10' % (sT[3], sT[2]))
                a('s_sub_u32 s%d, s%d, s%d' % (sT[3], sT[1], sT[3]))
                a('s_lshl2_add_u32 s%d, s%d, s%d' % (sT[4], sT[2], sW))
            a('s_mul_i32 s%d, s%d, 40960' % (sT[4], sT[4]))
            a('s_lshl_b32 s%d, s%d, 12' % (jD[u], sT[3]))
            a('s_add_u32 s%d, s%d, s%d' % (jD[u], jD[u], sT[4]))
            a('s_add_u32 s%d, s%d, 0x%x' % (jD[u], jD[u], W2T))
            a('s_lshl_b32 s%d, s%d, 7' % (sT[3], sT[3]))
            a('s_add_u32 s%d, s%d, s%d' % (sT[4], sT[4], sT[3]))
            a('s_sub_u32 s%d, s%d, 819200' % (sT[3], sT[4]))
            a('s_cmp_lt_u32 s%d, 170' % sT[1])
            a('s_cselect_b32 s%d, -1, 0' % jS[u])
            a('s_cmp_lt_u32 s%d, 5' % sT[2])
            a('s_cselect_b32 s%d, s%d, s%d' % (SJ, pWO, pW2))
            a('s_cselect_b32 s%d, s%d, s%d' % (SJ + 1, pWO + 1, pW2 + 1))
            a('s_cselect_b32 s%d, 5, 12' % sT[2])
            a('s_cselect_b32 s%d, s%d, s%d' % (sT[4], sT[4], sT[3]))
            a('s_cmp_gt_u32 s%d, %d' % (sNM, u))
            a('s_cselect_b32 s%d, s%d, s%d' % (SJ, pWM, SJ))
            a('s_cselect_b32 s%d, s%d, s%d' % (SJ + 1, pWM + 1, SJ + 1))
            a('s_cselect_b32 s%d, 30, s%d' % (sT[2], sT[2]))
            a('s_cselect_b32 s%d, s%d, s%d' % (sT[4], sJ1, sT[4]))
            a('s_cselect_b32 s%d, 6, 1' % sT[3])
            a('s_cselect_b32 s%d, -1, s%d' % (sT[1], jS[u]))
            a('s_cselect_b32 s%d, 0, s%d' % (jS[u], jS[u]))
            a('s_cselect_b64 vcc, -1, 0')
            a('s_and_b32 s%d, s%d, 0xffff' % (SJ + 1, SJ + 1))
            a('s_mul_i32 s%d, s%d, 163840' % (SJ + 2, sT[2]))
            a('s_mul_i32 s%d, s%d, 1280' % (sT[3], sT[3]))
            a('v_cndmask_b32 v40, v39, v38, vcc')
            self.exec_('s%d' % sT[1], 's%d' % sT[1])
            self.unit_load(ML + 16 * u, 40, sT[4], 's%d' % sT[3], 'm%d' % u)
            self.exec_all()
            a('s_add_u32 s%d, s%d, %d' % (sJ1, sJ1, 32 * 7680))
        a('s_mov_b32 s%d, s%d' % (sJ0, sT[0]))
        a('s_mov_b32 s%d, s%d' % (sJ1, sT[6]))
        if E > 0: slot(0)
        self.srd(SW, pWS, WSZ)
        self.staging()
        self.xi_publish()
        self.stamp('issued', 1)
        self.setup()
        a('s_lshl2_add_u32 s%d, s%d, s%d' % (sTILE, sXO, sW))
        a('s_mul_i32 s%d, s%d, 5120' % (sTILE, sTILE))
        a('s_add_u32 s%d, s%d, 0x%x' % (sTILE, sTILE, WHB))
        a('v_mov_b32 v34, 0')
        a('v_mov_b32 v35, 0')
        a('s_lshl_b32 s%d, s%d, 7' % (sT[0], sW))
        a('s_add_u32 s%d, s%d, %d' % (sT[0], sT[0], HST))
        a('v_lshl_add_u32 v60, v2, 3, s%d' % sT[0])
        a('v_lshlrev_b32 v61, 3, v2')
        a('v_add_u32 v61, %d, v61' % HST)
        a('v_lshlrev_b32 v46, 7, v0')
        if self.o['fast']:
            a('s_mov_b32 exec_hi, 0xff')
            a('buffer_load_dword v254, v46, s[%d:%d], s%d offen' % (SW, SW + 3, sTILE))
            a('s_mov_b32 exec_hi, -1')
        a.wait_vm('xt')
        self.stamp('c', 2)
        for u in range(1, E): slot(u)
        self.xi_issue('xi')
        for d in range(20):
            a('v_dot2c_f32_bf16 v34, s%d, v%d' % (sONE, XR_ + d))
            a('v_dot2c_f32_bf16 v35, v%d, v%d' % (XR_ + d, XR_ + d))
        self.rowsum([34, 35], 36)
        a('ds_write_b64 v60, v[34:35]')
        self.barrier()
        for i in range(4): a('ds_read_b64 %s, v61 offset:%d' % (V(62 + 2 * i, 2), 128 * i))
        self.stamp('mpub', 3)
        for d in range(20):
            a('v_lshlrev_b32 v%d, 16, v%d' % (XF_ + 2 * d, XR_ + d))
            a('v_and_b32 v%d, s%d, v%d' % (XF_ + 1 + 2 * d, sHI, XR_ + d))
        a.wait_lg()
        a('v_pk_add_f32 v[62:63], v[62:63], v[64:65]')
        a('v_pk_add_f32 v[66:67], v[66:67], v[68:69]')
        a('v_pk_add_f32 v[34:35], v[62:63], v[66:67]')

        a('s_mov_b32 s%d, 0x%x' % (sT[7], f2u(1 / 640)))
        self.finstats(34, 35, 36)
        a('v_mul_f32 v34, -v34, v35')
        for d in range(20):
            a('v_pk_fma_f32 %s, %s, v[34:35], v[34:35] op_sel:[0,1,0] op_sel_hi:[1,1,0]' % (V(XF_ + 2 * d, 2), V(XF_ + 2 * d, 2)))
        a('v_and_b32 v60, 16, v7')
        a('v_lshlrev_b32 v61, 1, v7')
        a('v_sub_u32 v60, v61, v60')
        a('s_mul_i32 s%d, s%d, 768' % (sT[0], sW))
        a('s_add_u32 s%d, s%d, %d' % (sT[0], sT[0], SPARE))
        a('v_add_u32 v60, s%d, v60' % sT[0])
        if self.o['mw'] >= 0: a.wait_vm('m%d' % self.o['mw'])
        self.mod_issue([0, 1], MG, 7, 'mod', 5)
        self.xi_check('xi')
        a('s_cmp_ge_u32 s%d, 14' % sJ)
        a('s_cselect_b32 s%d, 1, s%d' % (sSL2, sSLOW))
        self.stamp('pre', 4)
        self.mod_check([0, 1], MG, 7, 'mod', 36, 5)
        self.stamp('modok', 5)
        self.plus1(MG + 20)
        self.unpack4(52, MG)
        self.unpack4(56, MG + 20)
        a('ds_write_b128 v60, v[56:59]')
        a('ds_write_b128 v60, v[52:55] offset:32')
        MSR = [96, 112, 60, 216, 232]
        for s in range(5):
            for x in range(4):
                a('ds_read_b128 %s, v145 offset:%d' % (V(MSR[s] + 4 * x, 4), 256 * s + 16 * x), 'ms%d' % s)
        for s in range(5):
            a.wait_lg('ms%d' % s)
            b, r = MSR[s], XF_ + 8 * s
            for d in range(4):
                a('v_pk_fma_f32 %s, %s, %s, %s' % (V(r + 2 * d, 2), V(r + 2 * d, 2), V(b + 2 * d, 2), V(b + 8 + 2 * d, 2)))
            for d, (e0, e1) in enumerate(((0, 2), (4, 6), (1, 3), (5, 7))):
                a('v_cvt_pk_bf16_f32 v%d, v%d, v%d' % (XR_ + 4 * s + d, r + e0, r + e1))
        self.st2(['buffer_store_dwordx4 %s, v%d, s[%d:%d], s%d offen offset:%d' % (V(XR_ + 4 * s, 4), 1 if s < 4 else 5, SW, SW + 3, sTILE, 1024 * (s & 3)) for s in range(5)], 'hst', sSL2)
        self.cf_addr()
        a('buffer_load_dword v51, v50, s[%d:%d], s%d offen sc1' % (SW, SW + 3, sT[6]), 'cf')
        for u in range(E, 3): slot(u)
        F = [96, 112, 224]
        self.silu(3)
        for u in range(E): self.unit_tr(ML + 16 * u, F[u])
        a('s_lshl_b32 s%d, s%d, 7' % (sT[0], sXO))
        a('s_add_u32 s%d, s%d, 0x%x' % (sT[0], sT[0], FX))
        a('v_lshlrev_b32 v46, 7, v0')
        a.wait_vm('hst')
        if self.o['touch']:
            a('s_mov_b32 exec_hi, 0xff')
            a('buffer_load_dword v254, v46, s[%d:%d], s%d offen sc1' % (SW, SW + 3, sTILE))
            a('s_mov_b32 exec_hi, -1')
        a('s_barrier')
        self.flagstore(sT[0], sSL2)
        self.stamp('hpub', 6)
        for u in range(E, 3):
            a.wait_vm('m%d' % u)
            self.unit_tr(ML + 16 * u, F[u])
        Lc = a.newlabel('cfok')
        a.wait_vm('cf')
        a('v_cmp_ne_u32 vcc, s%d, v51' % sTAG)
        a('s_cbranch_vccz %s' % Lc)
        self.poll(50, sT[6], 51)
        a.label(Lc)
        self.stamp('jobs', 7)
        self.b1_issue(0, self.o['nb1'])
        a.wait_lg()
        for u in range(3):
            if u == 2:
                Ls = a.newlabel('nomf')
                a('s_cmp_lg_u32 s%d, 3' % sNM)
                a('s_cbranch_scc1 %s' % Ls)
            for T in range(4): a(self.mfma(MA + 4 * T, F[u] + 4 * T, SF + 4 * u, first=(u == 0)))
            if u == 2: a.label(Ls)
            self.unit_store(F[u], jS[u], jD[u])
        self.mod_write()
        self.barrier()
        self.mod_publish()
        self.b1_issue(self.o['nb1'], self.o['nb2'])

    def jobflag(self):
        a = self.a
        a('s_lshl_b32 s%d, s%d, 2' % (sT[2], sN))
        a('s_add_u32 s%d, s%d, 0x%x' % (sT[2], sT[2], JF))
        a('v_mov_b32 v14, s%d' % sTAG)
        a('s_cmp_eq_u32 s%d, 1' % sW)
        a('s_cselect_b32 s%d, s%d, 0' % (sT[3], sPROD))
        a('s_and_b32 exec_lo, s%d, 1' % sT[3])
        a('s_mov_b32 exec_hi, 0')
        a('buffer_store_dword v14, off, s[%d:%d], s%d sc1' % (SW, SW + 3, sT[2]))
        self.exec_all()

    def setup(self):
        a = self.a
        self.srd(SO, pOUT, 2048 * 1280)
        a('v_min_u32 v7, 39, v0')
        a('s_mul_i32 s%d, s%d, 40' % (sT[0], sW))
        a('v_add_lshl_u32 v7, v7, s%d, 4' % sT[0])
        a('v_add_u32 v5, 4096, v1')
        a('v_lshrrev_b32 v148, 2, v0')
        a('v_mul_u32_u24 v148, 480, v148')
        a('v_and_b32 v149, 3, v0')
        a('v_lshl_add_u32 v8, v149, 3, v148')
        a('v_and_b32 v149, 2, v0')
        a('v_lshl_add_u32 v152, v149, 5, v8')
        for i in range(1, 4):
            a('v_add_u32 v%d, %d, v8' % (8 + i, RGN * i))
            a('v_add_u32 v%d, %d, v152' % (152 + i, RGN * i))
        a('v_add_u32 v12, s%d, v8' % sRB)
        a('v_add_u32 v156, s%d, v152' % sRB)
        a('s_lshr_b32 s%d, s%d, 1' % (sT[0], sW))
        a('s_mul_i32 s%d, s%d, %d' % (sT[0], sT[0], RGN - 12288))
        a('s_mul_i32 s%d, s%d, 6144' % (sT[1], sW))
        a('s_add_u32 s%d, s%d, s%d' % (sT[0], sT[0], sT[1]))
        a('s_add_u32 s%d, s%d, %d' % (sT[0], sT[0], HP))
        a('v_add_u32 v4, s%d, v1' % sT[0])
        a('s_cmp_eq_u32 s%d, 1' % sW)
        a('s_cselect_b32 s%d, 512, 0' % sT[0])
        a('v_or_b32 v157, s%d, v1' % sT[0])
        a('s_lshl_b32 s%d, s%d, 10' % (sT[0], sW))
        a('s_add_u32 s%d, s%d, %d' % (sT[0], sT[0], HP))
        a('v_add_u32 v157, s%d, v157' % sT[0])
        a('s_add_u32 s%d, s%d, 4' % (sT[1], sW))
        a('s_min_u32 s%d, s%d, 5' % (sT[1], sT[1]))
        a('s_lshl_b32 s%d, s%d, 10' % (sT[0], sT[1]))
        a('s_add_u32 s%d, s%d, %d' % (sT[0], sT[0], HP))
        a('v_add_u32 v158, s%d, v1' % sT[0])
        a('s_lshl_b32 s%d, s%d, 9' % (sT[0], sW))
        a('s_add_u32 s%d, s%d, %d' % (sT[0], sT[0], EX))
        a('v_lshl_add_u32 v159, v0, 3, s%d' % sT[0])
        a('s_lshl_b32 s%d, s%d, 9' % (sT[0], sT[1]))
        a('s_add_u32 s%d, s%d, %d' % (sT[0], sT[0], EX))
        a('v_lshl_add_u32 v160, v0, 3, s%d' % sT[0])
        a('s_mul_i32 s%d, s%d, 3072' % (sT[0], sW))
        a('s_add_u32 s%d, s%d, %d' % (sT[0], sT[0], EX))
        a('v_lshl_add_u32 v161, v0, 3, s%d' % sT[0])
        a('v_and_b32 v148, 1, v3')
        a('v_lshrrev_b32 v149, 1, v3')
        a('v_mad_u32_u24 v162, v148, 3, v149')
        a('v_lshlrev_b32 v150, 4, v2')
        a('v_lshl_add_u32 v162, v162, 8, v150')
        a('v_mul_u32_u24 v149, 20480, v149')
        a('v_lshl_add_u32 v163, v148, 3, v150')
        a('v_add_u32 v163, v163, v149')
        NEG = 0xff61b1e6
        a('s_or_b32 s%d, s%d, s%d' % (sT[0], sC, sW))
        a('s_cselect_b32 s%d, 0, 0x%x' % (sT[0], NEG))
        a('s_mov_b32 s%d, 0x80000001' % sT[1])
        a('s_mov_b32 s%d, 0x80000000' % sT[2])
        a('s_mov_b32 s%d, 0x07070303' % sT[3])
        a('v_mov_b32 v150, 0x%x' % NEG)
        a('v_lshlrev_b32 v148, 2, v3')
        a('v_sub_u32 v148, v2, v148')
        for e in range(4):
            a('v_subrev_u32 v149, %d, v148' % e)
            a('v_and_b32 v149, s%d, v149' % sT[1])
            a('v_cmp_ne_u32 vcc, 0, v149')
            a('v_cndmask_b32 v%d, 0, v150, vcc' % (16 + e))
            a('v_cmp_ne_u32 vcc, s%d, v149' % sT[2])
            a('v_cndmask_b32 v%d, 0, v150, vcc' % (20 + e))
            a('v_or_b32 v%d, s%d, v%d' % (24 + e, sT[0], 20 + e))
        for x, r in enumerate((20, 22, 16, 18)):
            a('v_perm_b32 v%d, v%d, v%d, s%d' % (28 + x, r + 1, r, sT[3]))
        a('s_mov_b64 s[%d:%d], 0xffff' % (sG0, sG0 + 1))
        a('s_mov_b32 s%d, 0xffff0000' % sG1)
        a('s_mov_b32 s%d, 0' % (sG1 + 1))
        a('s_lshl2_add_u32 s%d, s%d, s%d' % (sT[0], sC, sW))
        a('s_mul_i32 s%d, s%d, 40960' % (sT[0], sT[0]))
        for t in range(2):
            for i in range(4): a('s_add_u32 s%d, s%d, 0x%x' % (sP[4 * t + i], sT[0], WHB + 20480 * t + 5120 * i))
        a('s_mul_i32 s%d, s%d, 1280' % (sT[1], sJ))
        a('s_add_u32 s%d, s%d, s%d' % (sP[9], sT[0], sT[1]))
        a('s_add_u32 s%d, s%d, 0x%x' % (sP[9], sP[9], WO_))
        a('s_lshl_b32 s%d, s%d, 3' % (sT[0], sC))
        a('s_max_u32 s%d, s%d, 1' % (sT[1], sT[0]))
        a('s_sub_u32 s%d, s%d, 1' % (sT[1], sT[1]))
        a('s_lshl2_add_u32 s%d, s%d, s%d' % (sT[2], sT[1], sW))
        a('s_mul_i32 s%d, s%d, 5120' % (sT[2], sT[2]))
        a('s_add_u32 s%d, s%d, 0x%x' % (sP[8], sT[2], WHB))
        a('s_lshl1_add_u32 s%d, s%d, s%d' % (sT[0], sW, sT[0]))
        a('v_add_u32 v13, s%d, v0' % sT[0])
        a('v_mov_b32 v148, s%d' % sT[1])
        a('v_cmp_gt_u32 vcc, 2, v0')
        a('v_cndmask_b32 v13, v148, v13, vcc')
        a('v_lshlrev_b32 v13, 7, v13')
        self.w_addr()

    def p1_gemm(self):
        a = self.a
        o = self.o
        ACC, HACC, BB, HB, HA = 32, 96, 120, 176, 200
        HT = [2, 4, 3, 5, 6, 7]
        steps = [(s, i) for s in range(5) for i in range(4)]
        def bread(n, T, h):
            s, i = steps[n]
            a('ds_read_b64_tr_b16 %s, v%d offset:%d' % (R(BB + 4 * T + 2 * h, 2), (152 if T == 4 else 8) + i, 7680 * s + 240 * h + TOFF[T]), 'B%d_%d' % (n, T))
        def hread(s, x, h):
            a('ds_read_b64_tr_b16 %s, v%d offset:%d' % (R(HB + 4 * x + 2 * h, 2), 156 if HT[x] == 4 else 12, 7680 * s + 240 * h + TOFF[HT[x]]), 'HB%d' % s)
        areg = lambda x: 220 + 4 * x if x < 8 else 256 + 4 * (x - 8)
        def aload(x):
            s, i = steps[x >> 1]
            if 'noA1' in o['exp']: return
            self.ld(areg(x), 1024 * s, sP[4 * (x & 1) + i], 'A%d' % x, o['apol'])
        def mm(d, w, act, T, first):
            return self.mfma(d, act, w, first) if T >= 5 else self.mfma(d, w, act, first)
        a('s_mov_b32 s%d, 0x%x' % (sT[0], FX))
        self.stamp('b1i')
        self.poll(13, sT[0], 32)
        self.stamp('gemm0')
        aq = list(range(40))
        for _ in range(o['la1']): aload(aq.pop(0))
        self.ld(HA, 0, sP[8], 'HA0')
        a('s_barrier')
        for T in range(8):
            for h in range(2): bread(0, T, h)
        self.jobflag()
        b1f = lambda x: (lambda: self.b1_one(x, x == o['nb2'], sPROD if x < o['nbn'] else None))
        b1q = list(range(o['nb2'], 38))
        hrd = {1: (0, 0, 6), 3: (1, 0, 3), 4: (1, 3, 6), 6: (2, 0, 3), 7: (2, 3, 6), 9: (3, 0, 3), 10: (3, 3, 6), 12: (4, 0, 6)}
        hmm = {2: 0, 5: 1, 8: 2, 11: 3, 13: 4}
        HOFF = [0, 6144, 38400, 44544]
        for n in range(20):
            s, i = steps[n]
            if n == 6: a.wait_vm('b1_2')
            if n == 9: a.wait_vm('b1_3')
            if n == 12:
                assert not b1q
                a.wait_vm('b1_4')
            if n == 7 and o['nb2'] < 23: a('s_barrier')
            if n == 11:
                a('s_barrier'); self.level = 1
            if n == 15:
                a.wait_lg('hp'); a('s_barrier'); self.level = 2
            vm, ot = [], []
            k = 2 if (b1q and n >= 1) else o['ra1']
            for _ in range(k):
                if aq: vm.append(lambda x=aq.pop(0): aload(x))
            if n >= 1:
                for _ in range(2):
                    if b1q: vm.append(b1f(b1q.pop(0)))
            if 1 <= n < 5: vm.append(lambda: self.ld(HA + 4 * n, 1024 * n, sP[8], 'HA%d' % n))
            if n in hrd:
                hs, x0, x1 = hrd[n]
                ot += [lambda x=x, h=h: hread(hs, x, h) for x in range(x0, x1) for h in range(2)]
            hm = []
            if n in hmm:
                hs = hmm[n]
                hm = [mm(HACC + 4 * x, HB + 4 * x, HA + 4 * hs, HT[x], hs == 0) for x in range(6)]
            if n == 14:
                ot += [lambda: None] * 3 + [lambda x=x: a('ds_write_b128 v4, %s offset:%d' % (R(HACC + 4 * x, 4), 1024 * x), 'hp') for x in range(6)]
                pre = self.p2_pre()
            if n >= 14:
                vm += pre[:3]; pre = pre[3:]
            if n == 15:
                ot += [lambda y=y, p=p: a('ds_read_b128 %s, v%d offset:%d' % (V(HB + 16 * y + 4 * p, 4), 157 + y, HOFF[p]), 'hr') for y in range(2) for p in range(4)]
            if n in (16, 17):
                b = HB + 16 * (n - 16)
                if n == 16: a.wait_lg('hr')
                ot += [lambda e=e, p=p: a('v_add_f32 v%d, v%d, v%d' % (b + 8 * p + e, b + 8 * p + e, b + 8 * p + 4 + e)) for p in range(2) for e in range(4)]
                ot += [lambda e=e: a('v_add_f32 v%d, v%d, v%d' % (b + e, b + e, b + 8 + e)) for e in range(4)]
                ot += [lambda e=e: a('v_cvt_pk_bf16_f32 v%d, v%d, v%d' % (b + e, b + 2 * e, b + 2 * e + 1)) for e in range(2)]
                ot += [lambda: a('ds_write_b64 v%d, %s' % (159 + n - 16, V(b, 2)))]
            if n == o['jfi']: vm.append(lambda: self.jf_issue())
            if n == o['jfc']:
                self.jf_check()
                self.queue_after_jobs()
            vm += self.touches('g%d' % n)
            if n >= o['gp0']:
                vm += [self.pump] * max(0, o['g_pump'] - (len(vm) if n < 14 else 1))
            ngap = 16 + len(hm)
            slots = [[] for _ in range(ngap)]
            for q, f in enumerate(vm): slots[(q * ngap + ngap // 2) // len(vm)].append(f)
            free = [g for g in range(ngap) if not slots[g]]
            if len(free) < len(ot): free = list(range(ngap))
            for q, f in enumerate(ot): slots[free[q * len(free) // len(ot)]].append(f)
            a.wait_vm('A%d' % (2 * n + 1))
            for T in range(8):
                if T % 2 == 0: a.wait_lg('B%d_%d' % (n, T + 1 if T < 6 else T))
                if T == 7: a.wait_lg('B%d_7' % n)
                for t in range(2):
                    a(mm(ACC + 32 * t + 4 * T, BB + 4 * T, areg(2 * n + t), T, n == 0))
                    if T > 0 and n + 1 < 20: bread(n + 1, T - 1, t)
                    if T == 0 and n > 0: bread(n, 7, t)
                    for f in slots.pop(0): f()
                if hm and T >= 2:
                    if T == 2:
                        a.wait_vm('HA%d' % hs); a.wait_lg('HB%d' % hs)
                    a(hm.pop(0))
                    for f in slots.pop(0): f()
            assert not slots and not hm
        assert not aq and not b1q and not pre
        self.stamp('gemm1')

    def p1_attn(self):
        a = self.a
        ACC, S_, P_, X_ = 32, 176, 64, 80
        K = lambda t: 102 + 6 * t
        Vv = lambda y, t: 116 + 6 * y + 2 * t
        Q = lambda t, h: 132 + 8 * t + 4 * h
        np_ = [self.o['at_pump']]
        def pump(k=1):
            k = min(k, np_[0]); np_[0] -= k; self.pump(k)
        def cvt(d, r):
            a('v_cvt_pk_bf16_f32 v%d, v%d, v%d' % (d, r, r + 1))
            a('v_cvt_pk_bf16_f32 v%d, v%d, v%d' % (d + 1, r + 2, r + 3))
        def kv(t):
            r = ACC + 32 * t
            cvt(K(t), r + 8); cvt(K(t) + 4, r + 12)
            cvt(K(t) + 2, r + 16); cvt(148 + 2 * t, r + 16)
            cvt(Vv(0, t), r + 20)
            for e in range(2): a('v_permlane32_swap_b32 v%d, v%d' % (148 + 2 * t + e, K(t) + 2 + e))
            cvt(Vv(1, t), r + 24); cvt(Vv(2, t), r + 28)
        def qq(t):
            r = ACC + 32 * t
            cvt(Q(t, 0), r); cvt(Q(t, 1) + 2, r + 4)
            for e in range(2):
                a('v_cndmask_b32 v%d, 0, v%d, s[%d:%d]' % (Q(t, 0) + 2 + e, 148 + 2 * t + e, sG0, sG0 + 1))
                a('v_cndmask_b32 v%d, 0, v%d, s[%d:%d]' % (Q(t, 1) + e, 148 + 2 * t + e, sG1, sG1 + 1))
        def smm(u, cur):
            t, h = u >> 1, u & 1
            m = 16 if cur else (24 if t == 0 else 20)
            a('v_mfma_f32_16x16x32_bf16 %s, %s, %s, %s' % (V(S_ + 8 * u + 4 * cur, 4), V(K(t - 1 + cur) + 2 * h, 4), V(Q(t, h), 4), V(m, 4)))
        kv(1)
        for x in range(3): a('ds_write_b64 v161, %s offset:%d' % (V(K(1) + 2 * x, 2), 3072 + 512 * x))
        for y in range(3): a('ds_write_b64 v161, %s offset:%d' % (V(Vv(y, 1), 2), 3072 + 1536 + 512 * y))
        for f in self.touches('a0'): f()
        pump(2)
        kv(0)
        self.barrier()
        self.level = 3
        for x in range(3): a('ds_read_b64 %s, v161 offset:%d' % (V(K(-1) + 2 * x, 2), 512 * x), 'ek')
        for y in range(3): a('ds_read_b64 %s, v161 offset:%d' % (V(Vv(y, -1), 2), 1536 + 512 * y), 'ev')
        pump(3)
        qq(1)
        for u in (2, 3): smm(u, 0); smm(u, 1)
        qq(0)
        pump(2)
        for u in (0, 1): smm(u, 1)
        a.wait_lg('ek')
        for u in (0, 1): smm(u, 0)
        self.stamp('S')
        cs = LOG2E / math.sqrt(20.0)
        a('s_mov_b32 s%d, 0x%x' % (sT[1], f2u(cs)))
        sv = lambda u, i: X_ + 2 * u + i
        M = X_ + 8
        for u in (2, 3, 0, 1):
            b = S_ + 8 * u
            for i in range(2): a('v_max3_f32 v%d, v%d, v%d, v%d' % (sv(u, i), b + 2 * i, b + 2 * i + 1, b + 4 + 2 * i))
            for i in range(2): a('v_max_f32 v%d, v%d, v%d' % (sv(u, i), sv(u, i), b + 5 + 2 * i))
            a('v_max_f32 v%d, v%d, v%d' % (M + u, sv(u, 0), sv(u, 1)))
            pump(1)
        def allred(op, mid):
            a('v_permlane32_swap_b32 v%d, v%d' % (M, M + 2))
            a('v_permlane32_swap_b32 v%d, v%d' % (M + 1, M + 3))
            pump(1)
            a('%s v%d, v%d, v%d' % (op, M, M, M + 2))
            a('%s v%d, v%d, v%d' % (op, M + 1, M + 1, M + 3))
            pump(1)
            a('v_permlane16_swap_b32 v%d, v%d' % (M, M + 1))
            a('%s v%d, v%d, v%d' % (op, M, M, M + 1))
            a(mid % (M + 1, M)); a(mid % (M + 2, M)); a(mid % (M + 3, M)); a(mid % (M, M))
            pump(1)
            a('v_permlane16_swap_b32 v%d, v%d' % (M + 2, M + 3))
            a('v_permlane16_swap_b32 v%d, v%d' % (M, M + 1))
            pump(1)
            a('v_permlane32_swap_b32 v%d, v%d' % (M, M + 2))
            a('v_permlane32_swap_b32 v%d, v%d' % (M + 1, M + 3))
        allred('v_max_f32', 'v_mul_f32 v%%d, s%d, v%%d' % sT[1])
        for u in range(4):
            for i in range(2): a('v_fma_f32 v%d, v%d, s%d, -v%d' % (sv(u, i), sv(u, i), sT[1], M + u))
        for u in range(4):
            for i in range(2): a('v_exp_f32 v%d, v%d' % (sv(u, i), sv(u, i)))
        for u in range(4): a('v_add_f32 v%d, v%d, v%d' % (M + u, sv(u, 0), sv(u, 1)))
        allred('v_add_f32', 'v_rcp_f32 v%d, v%d')
        a.wait_lg('ev')
        for u in range(4):
            t, h = u >> 1, u & 1
            for i in range(2): a('v_mul_f32 v%d, v%d, v%d' % (sv(u, i), sv(u, i), M + u))
            for i in range(2): a('v_cvt_pk_bf16_f32 v%d, v%d, v%d' % (sv(u, i), sv(u, i), sv(u, i)))
            for x in range(4): a('v_bfi_b32 v%d, v%d, 0, v%d' % (P_ + 4 * u + x, 28 + x, sv(u, x & 1)))
            if u > 0: self.pv(u - 1)
        self.pv(3)
        O = S_
        for t in range(2):
            cvt(O + 4 * t, ACC + 16 * t); cvt(O + 4 * t + 2, ACC + 16 * t + 8)
            cvt(O + 8 + 2 * t, ACC + 16 * t + 4); cvt(O + 12, ACC + 16 * t + 12)
            for e in range(2): a('v_permlane16_swap_b32 v%d, v%d' % (O + 4 * t + e, O + 4 * t + 2 + e))
            for e in range(2): a('v_cndmask_b32 v%d, v%d, v%d, s[%d:%d]' % (O + 8 + 2 * t + e, O + 8 + 2 * t + e, O + 12 + e, sG1, sG1 + 1))
        a('s_add_u32 s%d, s%d, 20480' % (sT[0], sP[9]))
        for e in range(2): a('v_permlane32_swap_b32 v%d, v%d' % (O + 8 + e, O + 10 + e))
        self.st2(['buffer_store_dwordx4 %s, v162, s[%d:%d], s%d offen' % (V(O, 4), SW, SW + 3, sP[9]),
                  'buffer_store_dwordx4 %s, v162, s[%d:%d], s%d offen' % (V(O + 4, 4), SW, SW + 3, sT[0]),
                  'buffer_store_dwordx2 %s, v163, s[%d:%d], s%d offen offset:512' % (V(O + 8, 2), SW, SW + 3, sP[9])], 'ost')
        self.stamp('attn')

    def pv(self, u):
        t, h = u >> 1, u & 1
        for x, y in enumerate((h, 2)):
            self.a('v_mfma_f32_16x16x32_bf16 %s, %s, %s, 0' % (V(32 + 8 * u + 4 * x, 4), V(114 + 6 * y + 2 * t, 4), V(64 + 4 * u, 4)))

    def finish(self):
        a = self.a
        D = a.newlabel('ep')
        a('s_or_b32 s%d, s2, s%d' % (sT[0], sW))
        a('s_cmp_lg_u32 s%d, 0' % sT[0])
        a('s_cbranch_scc1 %s' % D)
        a('v_mov_b32 v14, s%d' % sTAG)
        self.exec_(1, 0)
        a('buffer_store_dword v14, off, s[%d:%d], 0 sc1' % (SW, SW + 3))
        self.exec_all()
        a.label(D)
        if self.stamps:
            a.wait_vm()
            self.stamp('end')
            a('v_writelane_b32 v15, s%d, 63' % sFAIL)
            a('v_writelane_b32 v15, s%d, 62' % sSLOW)
            a('s_lshl_b32 s%d, s2, 2' % sT[0])
            a('s_add_u32 s%d, s%d, s%d' % (sT[0], sT[0], sW))
            a('s_lshl_b32 s%d, s%d, 8' % (sT[0], sT[0]))
            a('s_add_u32 s%d, s%d, 0x%x' % (sT[0], sT[0], DBG))
            a('v_lshlrev_b32 v14, 2, v0')
            a('buffer_store_dword v15, v14, s[%d:%d], s%d offen' % (SW, SW + 3, sT[0]))
            hd = self.o.get('hd', 0)
            if hd:
                a('s_load_dwordx2 s[%d:%d], s[0:1], 72' % (sT[0], sT[1]))
                a.wait_lg()
                self.srd(SJ, sT[0], 64)
                sh = 0 if hd in (1, 3) else 11
                a('v_subrev_u32 v13, %d, v0' % sh)
                a('v_max_i32 v13, 0, v13')
                a('v_lshlrev_b32 v13, 2, v13')
                if hd in (1, 2):
                    a('v_not_b32 v12, v15')
                    a('v_cmp_eq_u32 vcc, 0, v0')
                    a('v_cndmask_b32 v12, v15, v12, vcc')
                    op = 'umax'
                else:
                    a('v_readlane_b32 s%d, v15, 0' % sT[2])
                    a('v_subrev_u32 v12, s%d, v15' % sT[2])
                    a('v_cmp_eq_u32 vcc, 0, v15')
                    a('v_cndmask_b32 v12, v12, 0, vcc') if 0 else a('v_cndmask_b32 v12, v12, v15, vcc')
                    op = 'add'
                self.exec_('0xffff' if sh == 0 else '0x%x' % (1 | (0x7fff << 12)), 0)
                a('buffer_atomic_%s v12, v13, s[%d:%d], 0 offen' % (op, SJ, SJ + 3))
                self.exec_all()
        a.label('L_end')
        a('s_endpgm')
        for c in self.cold: c()
        a.label('CODE_END')
        a('s_endpgm')

from gen2 import add_phases
add_phases(Gen, globals())

def build(stamps=False, opt=None):
    g = Gen(stamps, opt)
    g.run()
    body = g.a.finish()
    hdr = '''; fused adaLN block: persistent single launch, 256 workgroups (one per CU)
; @launch grid=(256,1,1) block=(256,1,1) lds=163840
.amdgcn_target "amdgcn-amd-amdhsa--gfx950"
.text
.globl {n}_kernel
.p2align 8
.type {n}_kernel,@function
{n}_kernel:
'''.format(n=NAME)
    tail = '''
.section .rodata,"a"
.p2align 6
.amdhsa_kernel {n}_kernel
  .amdhsa_next_free_vgpr 512
  .amdhsa_next_free_sgpr 102
  .amdhsa_accum_offset 256
  .amdhsa_group_segment_fixed_size 0
  .amdhsa_kernarg_size 88
  .amdhsa_user_sgpr_count 2
  .amdhsa_user_sgpr_kernarg_segment_ptr 1
  .amdhsa_system_sgpr_workgroup_id_x 1
.end_amdhsa_kernel
'''.format(n=NAME)
    return hdr + body + tail, g

def parse(kvs):
    o = {}
    for kv in kvs:
        k, v = kv.split('=', 1)
        o[k] = int(v) if v.lstrip('-').isdigit() else v.replace('+', ' ')
    return o

if __name__ == '__main__':
    if len(sys.argv) > 2 and sys.argv[1] == 'var':
        o = parse(sys.argv[3:])
        txt, g = build(True, o)
        open('v_%s.s' % sys.argv[2], 'w').write(txt)
        open('v_%s.names' % sys.argv[2], 'w').write('\n'.join(g.names))
        txt, g = build(False, o)
        open('p_%s.s' % sys.argv[2], 'w').write(txt)
    else:
        out = 'cdna_kernels/%s.s' % NAME
        txt, g = build(False)
        open(out, 'w').write(txt)
        print('written', out, len(txt), 'bytes; nops', g.a.npad)
```

```python
import sys, os, math
sys.path.insert(0, os.path.dirname(os.path.abspath(__file__)))
from asmlib import *

NAME = 'adaLN_cond__sliding_local_dilated__dense_activation_silu__prompt'

JF   = 0x1000
CF   = 0x60000
FO   = 0x2000
FY   = 0xA000
FH   = 0x12000
FX   = 0x1A000
XI   = 0x22000
MODP = 0x24000
ST   = 0x40000
W2T  = 0x80000
W4T  = W2T + 819200
WO_  = W4T + 1966080
WY   = WO_ + 2621440
WH   = WY + 2621440
WHB  = WH + 6291456
W1C  = WHB + 2621440
DBG  = W1C + 2457600
WSZ  = DBG + 1024 * 256

RGN   = 38400
SPARE = 153600
HST   = SPARE + 8192
MRED  = SPARE + 8704
HP    = 76800
EX    = 76800 + 12288
RED   = 92160
X1S   = 122880
UT    = 143360
GA_, C2F, GB_, C2B, S2B = SPARE, SPARE + 2560, SPARE + 5120, SPARE + 7680, SPARE + 8960
TOFF = [0, 48, 80, 128, 32, 160, 208, 192]

sW, sC, sJ, sTAG, sCI = 3, 4, 5, 6, 7
pX, pQ, pWO, pW1, pW2, pC, pWM, pOUT, pWS = 8, 10, 12, 16, 18, 20, 22, 24, 28
SX, SQ, SW, SO, S1, SJ = 32, 36, 40, 44, 48, 52
sRG, sCG = 30, 31
sP = [56, 57, 58, 59, 60, 61, 62, 63, 64, 65, 66, 67]
sB3M, sB4O = 68, 69
sG0, sG1 = 70, 72
jD = [74, 75, 76]; jS = [77, 78, 79]
sJ0, sJ1 = 100, 101
sTQ = 100
sNM = 80
sMO = 81
sRB = 82
sXO = 83
sB1 = 84
sPROD = 85
sT = [86, 87, 88, 89, 90, 91, 92, 93]
sCNT = 94
sONE = 95
sHI = 96
sFAIL = 97
sSLOW = 14
sN = 15
sTILE = 26
sSL2 = 27

LOG2E = 1.4426950408889634
def f2u(x):
    import struct
    return struct.unpack('<I', struct.pack('<f', x))[0]

DEF = dict(bpol='sc1', jpol='nt', hpol='', fast=0, cwarm=1, wpol='sc1', w1pol='', apol='sc1', spol='', touch=0, early=3, mw=1, lin=1, gp0=12, t2='x', t3a='x', t3b='x', t4a='x', t4b='x', fine=0, exp='',
           nb1=4, nb2=30, nbn=38, cpol='', ra1=4, la1=10, jfi=9, jfc=12, g_pump=4, at_pump=21,
           la2=12, la3=12, la4=12, ra3=3, o_pre=0, p2_pump=10, y_pre=0, p3_pump=60, h_pre=0)

class Gen:
    def __init__(self, stamps=False, opt=None):
        self.a = Asm()
        self.stamps = stamps
        self.o = dict(DEF); self.o.update(opt or {})
        self.nst = 0
        self.fq = []
        self.cold = []
        self.level = 0

    def stamp(self, name, idx=None):
        if not self.stamps: return
        a = self.a
        idx = self.nst if idx is None else idx
        a.c('stamp %d %s' % (idx, name))
        a('s_memrealtime s[98:99]')
        a.wait_lg()
        a('v_writelane_b32 v15, s98, %d' % idx)
        if idx >= self.nst:
            self.names = getattr(self, 'names', []) + [name]
            self.nst = idx + 1

    def srd(self, d, p, n):
        a = self.a
        a('s_mov_b32 s%d, s%d' % (d, p))
        a('s_and_b32 s%d, s%d, 0xffff' % (d + 1, p + 1))
        a('s_mov_b32 s%d, %d' % (d + 2, n))
        a('s_mov_b32 s%d, 0x20000' % (d + 3))

    def exec_(self, lo, hi):
        self.a('s_mov_b32 exec_lo, %s' % lo)
        self.a('s_mov_b32 exec_hi, %s' % hi)
    def exec_all(self):
        self.a('s_mov_b64 exec, -1')

    def barrier(self):
        self.a.wait_lg()
        self.a('s_barrier')

    def rowsum(self, regs, tmp):
        a = self.a
        for sw in ('v_permlane32_swap_b32', 'v_permlane16_swap_b32'):
            for i, r in enumerate(regs): a('v_mov_b32 v%d, v%d' % (tmp + i, r))
            for i, r in enumerate(regs): a('%s v%d, v%d' % (sw, r, tmp + i))
            for i, r in enumerate(regs): a('v_add_f32 v%d, v%d, v%d' % (r, r, tmp + i))

    def finstats(self, s1, s2, t):
        a = self.a
        a('v_mul_f32 v%d, 0x%x, v%d' % (s1, f2u(1 / 640), s1))
        a('v_mul_f32 v%d, v%d, v%d' % (t, s1, s1))
        a('v_fma_f32 v%d, v%d, s%d, -v%d' % (s2, s2, sT[7], t))
        a('v_max_f32 v%d, 0, v%d' % (s2, s2))
        a('v_add_f32 v%d, 0x%x, v%d' % (s2, f2u(1e-5), s2))
        a('v_rsq_f32 v%d, v%d' % (s2, s2))

    def poll(self, vaddr, soff, vt):
        a = self.a
        L, D = a.newlabel('poll'), a.newlabel('pdone')
        a('s_mov_b32 s%d, 0x8000' % sCNT)
        a.label(L)
        a('buffer_load_dword v%d, v%d, s[%d:%d], s%d offen sc1' % (vt, vaddr, SW, SW + 3, soff))
        a.wait_vm()
        a('v_cmp_ne_u32 vcc, s%d, v%d' % (sTAG, vt))
        a('s_cbranch_vccz %s' % D)
        a('s_sub_u32 s%d, s%d, 1' % (sCNT, sCNT))
        a('s_cmp_lg_u32 s%d, 0' % sCNT)
        a('s_cbranch_scc1 %s' % L)
        a.label(D)

    def mod_issue(self, vecs, r0, vaddr, tag, NP=2):
        a = self.a
        for i, vec in enumerate(vecs):
            for p in range(NP):
                a('s_mov_b32 s%d, 0x%x' % (sT[0], MODP + p * 15360 + vec * 2560))
                a('buffer_load_dwordx4 %s, v%d, s[%d:%d], s%d offen sc1' % (V(r0 + 4 * NP * i + 4 * p, 4), vaddr, SW, SW + 3, sT[0]), tag)

    def mod_check(self, vecs, r0, vaddr, tag, t, NP=2):
        a = self.a
        L, C, D = a.newlabel('mchk'), a.newlabel('mcold'), a.newlabel('mok')
        N = 4 * NP * len(vecs)
        a('s_mov_b32 s%d, 0x8000' % sCNT)
        for e in range(4): a('s_bfe_u32 s%d, s%d, 0x%x' % (sT[1 + e], sTAG, 0x80000 + 8 * e))
        a.wait_vm(tag)
        a.label(L)
        for x in range(N):
            a('v_xor_b32 v%d, s%d, v%d' % (r0 + x, sT[1 + (x & 3)], r0 + x))
            if x == 1: a('v_or_b32 v%d, v%d, v%d' % (t, r0, r0 + 1))
            elif x & 1: a('v_or3_b32 v%d, v%d, v%d, v%d' % (t, t, r0 + x - 1, r0 + x))
        a('v_cmp_ne_u32_sdwa vcc, v%d, v%d src0_sel:BYTE_0 src1_sel:BYTE_3' % (t, 0))
        a('s_cbranch_vccnz %s' % C)
        a.label(D)
        def cold():
            a.label(C)
            a('s_add_u32 s%d, s%d, 1' % (sFAIL, sFAIL))
            a('s_sub_u32 s%d, s%d, 1' % (sCNT, sCNT))
            a('s_cmp_eq_u32 s%d, 0' % sCNT)
            a('s_cbranch_scc1 %s' % D)
            self.mod_issue(vecs, r0, vaddr, None, NP)
            a('s_waitcnt vmcnt(0)')
            a('s_branch %s' % L)
        self.cold.append(cold)
        for p in range(1, NP):
            for i in range(len(vecs)):
                r = r0 + 4 * NP * i
                for e in (0, 2): a('v_pk_add_f32 %s, %s, %s' % (V(r + e, 2), V(r + e, 2), V(r + 4 * p + e, 2)))
        for i in range(len(vecs)):
            r = r0 + 4 * NP * i
            a('v_cvt_pk_bf16_f32 v%d, v%d, v%d' % (r, r, r + 1))
            a('v_cvt_pk_bf16_f32 v%d, v%d, v%d' % (r + 1, r + 2, r + 3))

    def unpack4(self, d, s):
        a = self.a
        a('v_lshlrev_b32 v%d, 16, v%d' % (d, s))
        a('v_and_b32 v%d, s%d, v%d' % (d + 1, sHI, s))
        a('v_lshlrev_b32 v%d, 16, v%d' % (d + 2, s + 1))
        a('v_and_b32 v%d, s%d, v%d' % (d + 3, sHI, s + 1))

    def plus1(self, r):
        a = self.a
        self.unpack4(r + 4, r)
        for e in range(4): a('v_add_f32 v%d, 1.0, v%d' % (r + 4 + e, r + 4 + e))
        a('v_cvt_pk_bf16_f32 v%d, v%d, v%d' % (r, r + 4, r + 5))
        a('v_cvt_pk_bf16_f32 v%d, v%d, v%d' % (r + 1, r + 6, r + 7))

    def mfma(self, d, wa, act, first=False):
        c = '0' if first else R(d, 4)
        return 'v_mfma_f32_16x16x32_bf16 %s, %s, %s, %s' % (R(d, 4), R(wa, 4), R(act, 4), c)

    def pump(self, k=1):
        while k > 0 and self.fq and self.fq[0][0] <= self.level:
            self.fq.pop(0)[1]()
            k -= 1
    def flush(self, name):
        while any(e[2] == name for e in self.fq):
            assert self.fq[0][0] <= self.level
            self.fq.pop(0)[1]()

    def st2(self, texts, tag=None, sl=None):
        a = self.a
        if not self.o['fast']:
            for t in texts:
                if t.startswith('buffer'): a(t + ' sc1', tag)
                else: a(t)
            return
        Ls, Ld = a.newlabel('slow'), a.newlabel('sdone')
        a('s_cmp_lg_u32 s%d, 0' % (sSLOW if sl is None else sl))
        a('s_cbranch_scc1 %s' % Ls)
        for t in texts: a(t + (' ' + self.o['spol'] if t.startswith('buffer') else ''), tag)
        a.label(Ld)
        def cold():
            a.label(Ls)
            a('s_nop 4')
            for t in texts: a.items.append(Ins(t + (' sc1' if t.startswith('buffer') else '')))
            a('s_nop 1')
            a('s_branch %s' % Ld)
        self.cold.append(cold)

    def flagstore(self, soff, sl=None):
        a = self.a
        D = a.newlabel('pub')
        a('s_cmp_lg_u32 s%d, 0' % sW)
        a('s_cbranch_scc1 %s' % D)
        a('v_mov_b32 v14, s%d' % sTAG)
        self.exec_(1, 0)
        save = list(a.vm)
        self.st2(['buffer_store_dword v14, off, s[%d:%d], s%d' % (SW, SW + 3, soff)], None, sl)
        a.vm = save
        self.exec_all()
        a.label(D)

    def publish(self, base, tag=None, touch=None):
        a = self.a
        a('s_lshl_b32 s%d, s%d, 7' % (sT[0], sCI))
        a('s_add_u32 s%d, s%d, 0x%x' % (sT[0], sT[0], base))
        if touch and self.o['touch']: touch[0]()
        a.wait_vm(tag)
        if touch and self.o['touch']: touch[1]()
        self.barrier()
        self.flagstore(sT[0])

    def xi_issue(self, tag):
        a = self.a
        a('s_lshl_b32 s%d, s%d, 7' % (sT[0], sC))
        a('s_add_u32 s%d, s%d, 0x%x' % (sT[0], sT[0], XI))
        a('v_lshlrev_b32 v32, 2, v2')
        a('buffer_load_dword v33, v32, s[%d:%d], s%d offen sc1' % (SW, SW + 3, sT[0]), tag)
    def xi_check(self, tag):
        a = self.a
        L, D = a.newlabel('xi'), a.newlabel('xiok')
        a.wait_vm(tag)
        a('s_mov_b32 s%d, 0x8000' % sCNT)
        a.label(L)
        a('v_subrev_u32 v33, s%d, v33' % sTAG)
        a('v_cmp_lt_u32 vcc, 15, v33')
        a('s_cbranch_vccz %s' % D)
        a('s_sub_u32 s%d, s%d, 1' % (sCNT, sCNT))
        a('s_cmp_eq_u32 s%d, 0' % sCNT)
        a('s_cbranch_scc1 %s' % D)
        save = list(a.vm)
        self.xi_issue(None)
        a('s_waitcnt vmcnt(0)')
        a.vm = save
        a('s_branch %s' % L)
        a.label(D)
        a('v_readfirstlane_b32 s%d, v33' % sT[0])
        a('v_cmp_ne_u32 vcc, s%d, v33' % sT[0])
        a('s_or_b32 s%d, vcc_lo, vcc_hi' % sSLOW)

    def b1_one(self, x, force=False, mask=None):
        a = self.a
        if force or x % 4 == 0:
            a('s_add_u32 m0, s%d, %d' % (sRB, 4096 * (x // 4)))
            a('s_add_u32 s%d, s%d, %d' % (sT[7], sB1, 4096 * (x // 4)))
        if mask is not None: a('s_mov_b32 exec_lo, s%d' % mask)
        if x == 37: a('s_mov_b32 exec_hi, 0')
        elif mask is not None: a('s_mov_b32 exec_hi, s%d' % mask)
        a('buffer_load_dwordx4 v1, s[%d:%d], s%d offen offset:%d %s lds' % (SW, SW + 3, sT[7], 1024 * (x & 3), self.o['bpol']), 'b1_%d' % (2 * x // 15))
        if x == 37 or mask is not None: self.exec_all()
    def b1_issue(self, x0, x1):
        for x in range(x0, x1): self.b1_one(x, x == x0)

    def xi_publish(self):
        a = self.a
        a.wait_lg()
        a('s_add_u32 s%d, s%d, 0x9e3779b9' % (sTAG, sTAG))
        a('s_getreg_b32 s%d, hwreg(HW_REG_XCC_ID, 0, 4)' % sT[1])
        a('s_add_u32 s%d, s%d, s%d' % (sT[1], sT[1], sTAG))
        a('v_mov_b32 v14, s%d' % sT[1])
        a('s_lshl_b32 s%d, s%d, 7' % (sT[0], sC))
        a('s_lshl2_add_u32 s%d, s%d, s%d' % (sT[0], sJ, sT[0]))
        a('s_add_u32 s%d, s%d, 0x%x' % (sT[0], sT[0], XI))
        a('s_cmp_eq_u32 s%d, 0' % sW)
        a('s_cselect_b32 exec_lo, 1, 0')
        a('s_mov_b32 exec_hi, 0')
        a('buffer_store_dword v14, off, s[%d:%d], s%d sc1' % (SW, SW + 3, sT[0]))
        self.exec_all()

    def prologue(self):
        a = self.a
        a('s_cmp_ge_u32 s2, 256')
        a('s_cbranch_scc1 L_end')
        a('s_load_dwordx16 s[8:23], s[0:1], 0')
        a('s_load_dwordx4 s[24:27], s[0:1], 64')
        a('s_load_dwordx2 s[28:29], s[0:1], 80')
        if self.o['cwarm']:
            a('s_getpc_b64 s[%d:%d]' % (SJ, SJ + 1))
            a('s_and_b32 s%d, s%d, 0xffff' % (SJ + 1, SJ + 1))
            a('s_mov_b32 s%d, CODE_END-%s_kernel-64' % (SJ + 2, NAME))
            a('s_mov_b32 s%d, 0x20000' % (SJ + 3))
            a('s_bfe_u32 s%d, s2, 0x10003' % sT[0])
            a('s_lshl_b32 s%d, s%d, 15' % (sT[0], sT[0]))
            a('v_lshl_add_u32 v1, v0, 7, s%d' % sT[0])
            a('buffer_load_dword v255, v1, s[%d:%d], 0 offen' % (SJ, SJ + 3), 'cw')
        a('v_lshrrev_b32 v1, 6, v0')
        a('v_and_b32 v0, 63, v0')
        a('v_readfirstlane_b32 s%d, v1' % sW)
        a('v_lshlrev_b32 v1, 4, v0')
        if self.stamps: a('v_mov_b32 v15, 0')
        a('s_mov_b32 s%d, 0' % sFAIL)
        a('s_and_b32 s%d, s2, 7' % sT[0])
        a('s_lshr_b32 s%d, s2, 7' % sT[1])
        a('s_lshl1_add_u32 s%d, s%d, s%d' % (sC, sT[0], sT[1]))
        a('s_bfe_u32 s%d, s2, 0x40003' % sJ)
        a('s_lshl4_add_u32 s%d, s%d, s%d' % (sCI, sC, sJ))
        a('s_lshr_b32 s%d, s%d, 3' % (sRG, sJ))
        a('s_and_b32 s%d, s%d, 7' % (sCG, sJ))
        a('s_mov_b32 s%d, 0x3f803f80' % sONE)
        a('s_mov_b32 s%d, 0xffff0000' % sHI)
        a('s_mul_i32 s%d, s%d, %d' % (sRB, sW, RGN))
        a('s_mul_i32 s%d, s%d, 153600' % (sB1, sJ))
        a('s_add_u32 s%d, s%d, s%d' % (sB1, sB1, sRB))
        a('s_add_u32 s%d, s%d, 0x%x' % (sB1, sB1, W1C))
        a('v_and_b32 v2, 15, v0')
        a('v_lshrrev_b32 v3, 4, v0')
        a('v_lshrrev_b32 v36, 5, v0')
        a('v_bfe_u32 v37, v0, 3, 2')
        a('v_lshl_add_u32 v36, v36, 3, v37')
        a('v_and_b32 v37, 0x70, v1')
        a('v_mul_u32_u24 v38, 7680, v36')
        a('v_add_u32 v38, v38, v37')
        a('v_mul_u32_u24 v39, 1280, v36')
        a('v_add_u32 v39, v39, v37')
        a('v_lshlrev_b32 v41, 2, v0')
        a('v_mul_u32_u24 v6, 52, v0')
        a('v_lshrrev_b32 v6, 8, v6')
        a('v_mul_u32_u24 v6, 1200, v6')
        a('v_add_u32 v6, v6, v1')
        a('v_mul_u32_u24 v43, 1280, v2')
        a('v_lshl_add_u32 v43, v3, 4, v43')
        a('s_lshr_b32 s%d, s%d, 1' % (sT[2], sJ))
        a('s_lshl3_add_u32 s%d, s%d, s%d' % (sT[3], sT[1], sT[2]))
        a('s_lshl3_add_u32 s%d, s%d, s%d' % (sT[3], sT[3], sT[0]))
        a('s_lshl3_add_u32 s%d, s%d, s%d' % (sXO, sC, sT[2]))
        a('s_xor_b32 s%d, s%d, s%d' % (sT[1], sT[1], sJ))
        a('s_and_b32 s%d, s%d, 1' % (sT[1], sT[1]))
        a('s_sub_u32 s%d, 0, s%d' % (sPROD, sT[1]))
        Lp, Ld = a.newlabel('prod'), a.newlabel('join')
        a('s_cbranch_scc1 %s' % Lp)
        save = (list(a.vm), list(a.lg))
        self.plain()
        a('s_branch %s' % Ld)
        a.vm, a.lg = save
        a.label(Lp)
        self.producer()
        a.label(Ld)

    def staging(self):
        a = self.a
        a('s_lshl_b32 s%d, s%d, 11' % (sT[0], sW))
        a('s_add_u32 s%d, s%d, %d' % (sT[0], sT[0], SPARE))
        a('v_and_b32 v42, 0x30, v0')
        a('v_lshlrev_b32 v42, 1, v42')
        a('v_xor_b32 v42, v42, v1')
        a('v_add_u32 v42, s%d, v42' % sT[0])
        a('v_lshrrev_b32 v140, 2, v0')
        a('v_and_b32 v141, 6, v140')
        a('v_lshlrev_b32 v141, 4, v141')
        a('v_lshl_add_u32 v140, v140, 7, v141')
        a('v_and_b32 v141, 3, v0')
        a('v_lshl_add_u32 v140, v141, 3, v140')
        a('v_add_u32 v140, s%d, v140' % sT[0])
        for T in range(1, 4): a('v_xor_b32 v%d, %d, v140' % (140 + T, 32 * T))
        a('v_add_u32 v41, s%d, v41' % sT[0])
        a('v_lshl_add_u32 v45, v3, 4, s%d' % sT[0])
        a('v_lshl_add_u32 v145, v3, 6, s%d' % sT[0])
        a('s_lshl_b32 s%d, s%d, 8' % (sT[0], sW))
        a('s_add_u32 s%d, s%d, %d' % (sT[0], sT[0], MRED))
        a('v_lshl_add_u32 v144, v3, 4, s%d' % sT[0])
        a('v_lshlrev_b32 v146, 4, v2')
        a('v_add_u32 v147, %d, v146' % MRED)
    def silu(self, nu):
        a = self.a
        a.wait_vm('c')
        a('v_lshlrev_b32 v46, 16, v44')
        a('v_and_b32 v47, s%d, v44' % sHI)
        for r in (46, 47): a('v_mul_f32 v%d, 0x%x, v%d' % (r + 2, f2u(-LOG2E), r))
        for r in (46, 47): a('v_exp_f32 v%d, v%d' % (r + 2, r + 2))
        for r in (46, 47): a('v_add_f32 v%d, 1.0, v%d' % (r + 2, r + 2))
        for r in (46, 47): a('v_rcp_f32 v%d, v%d' % (r + 2, r + 2))
        for r in (46, 47): a('v_mul_f32 v%d, v%d, v%d' % (r, r, r + 2))
        a('v_cvt_pk_bf16_f32 v44, v46, v47')
        a('ds_write_b32 v41, v44')
        for u in range(nu):
            a('ds_read_b128 %s, v45 offset:%d' % (V(128 + 4 * u, 4), 64 * u), 'silu')
    def mod_write(self):
        a = self.a
        self.exec_('0x00010001', '0x00010001')
        a('s_nop 6')
        for T in range(4): a('ds_write_b128 v144, %s offset:%d' % (V(60 + 4 * T, 4), 64 * T))
        self.exec_all()
    def mod_publish(self):
        a = self.a
        MA = 60
        Ld = a.newlabel('nomod')
        a('s_cmp_eq_u32 s%d, 0' % sNM)
        a('s_cselect_b32 s%d, 1, s%d' % (sT[5], sW))
        a('s_cmp_lg_u32 s%d, 0' % sT[5])
        a('s_cbranch_scc1 %s' % Ld)
        for i in range(4): a('ds_read_b128 %s, v147 offset:%d' % (V(MA + 4 * i, 4), 256 * i))
        a('s_mov_b32 s%d, 0xffffff00' % sT[0])
        for e in range(4): a('s_bfe_u32 s%d, s%d, 0x%x' % (sT[1 + e], sTAG, 0x80000 + 8 * e))
        a.wait_lg()
        for hh in (0, 2):
            a('v_pk_add_f32 %s, %s, %s' % (V(MA + hh, 2), V(MA + hh, 2), V(MA + 4 + hh, 2)))
            a('v_pk_add_f32 %s, %s, %s' % (V(MA + 8 + hh, 2), V(MA + 8 + hh, 2), V(MA + 12 + hh, 2)))
        for hh in (0, 2):
            a('v_pk_add_f32 %s, %s, %s' % (V(MA + hh, 2), V(MA + hh, 2), V(MA + 8 + hh, 2)))
        for e in range(4): a('v_and_b32 v%d, s%d, v%d' % (MA + e, sT[0], MA + e))
        for e in range(4): a('v_or_b32 v%d, s%d, v%d' % (MA + e, sT[1 + e], MA + e))
        a('s_mov_b64 exec, 0xffff')
        a.items.append(Ins('buffer_store_dwordx4 %s, v146, s[%d:%d], s%d offen sc1' % (V(MA, 4), SW, SW + 3, sMO)))
        self.exec_all()
        a.label(Ld)
    def cf_addr(self):
        a = self.a
        a('s_lshl2_add_u32 s%d, s%d, s%d' % (sT[6], sJ, sW))
        a('s_lshl_b32 s%d, s%d, 10' % (sT[6], sT[6]))
        a('s_add_u32 s%d, s%d, 0x%x' % (sT[6], sT[6], CF))
        a('v_and_b32 v50, 7, v0')
        a('v_lshlrev_b32 v50, 7, v50')

    def plain(self):
        a = self.a
        a('s_mul_i32 s%d, s%d, 205' % (sT[0], sT[3]))
        a('s_lshr_b32 s%d, s%d, 10' % (sT[0], sT[0]))
        a('s_mul_i32 s%d, s%d, 5' % (sT[1], sT[0]))
        a('s_sub_u32 s%d, s%d, s%d' % (sT[1], sT[3], sT[1]))
        a('s_lshl2_add_u32 s%d, s%d, s%d' % (sT[2], sT[1], sW))
        a('s_lshl_b32 s%d, s%d, 6' % (sT[6], sT[2]))
        a('s_mul_i32 s%d, s%d, %d' % (sT[5], sT[2], 32 * 7680))
        a('s_lshl_b32 s%d, s%d, 7' % (sT[4], sT[0]))
        a('s_add_u32 s%d, s%d, s%d' % (sT[5], sT[5], sT[4]))
        a('s_mul_i32 s%d, s%d, 15360' % (sMO, sT[1]))
        a('s_lshl1_add_u32 s%d, s%d, s%d' % (sMO, sT[4], sMO))
        a('s_add_u32 s%d, s%d, 0x%x' % (sMO, sMO, MODP))
        a('s_cmp_lt_u32 s%d, 100' % sT[3])
        a('s_cselect_b32 s%d, -1, 0' % sNM)
        a('v_add_u32 v44, s%d, v41' % sT[6])
        a('s_lshr_b32 s%d, s%d, 2' % (sT[0], sT[3]))
        a('s_and_b32 s%d, s%d, 3' % (sT[1], sT[3]))
        a('s_lshl2_add_u32 s%d, s%d, s%d' % (sT[1], sT[1], sW))
        a('s_mul_i32 s%d, s%d, %d' % (sT[2], sT[0], 20 * 3840))
        a('s_mul_i32 s%d, s%d, 80' % (sT[4], sT[1]))
        a('s_add_u32 s%d, s%d, s%d' % (sT[2], sT[2], sT[4]))
        a('s_lshl_b32 s%d, s%d, 5' % (sT[1], sT[1]))
        a('s_add_u32 s%d, s%d, s%d' % (sT[1], sT[1], sT[0]))
        a('s_mul_i32 s%d, s%d, 4800' % (jD[0], sT[1]))
        a('s_add_u32 s%d, s%d, 0x%x' % (jD[0], jD[0], W1C))
        a('s_lshl_b32 s%d, s%d, 7' % (jD[1], sT[1]))
        a('s_add_u32 s%d, s%d, 0x%x' % (jD[1], jD[1], CF))
        a.wait_lg()
        self.stamp('karg', 0)
        a('s_load_dword s%d, s[%d:%d], 0' % (sTAG, pWS, pWS + 1))
        a('s_mov_b32 s%d, 0' % sN)
        self.srd(S1, pC, 1280)
        a('buffer_load_dword v44, v44, s[%d:%d], 0 offen' % (S1, S1 + 3), 'c')
        self.srd(SJ, pWM, 640 * 7680)
        self.exec_('s%d' % sNM, 's%d' % sNM)
        self.unit_load(176, 38, sT[5], 7680, 'm0')
        self.srd(SQ, pQ, 640 * 3840)
        self.exec_(-1, '0x0fffffff')
        for x in range(5):
            a('buffer_load_dwordx4 %s, v6, s[%d:%d], s%d offen %s' % (V(192 + 4 * x, 4), SQ, SQ + 3, sT[2], self.o['cpol']), 'cp')
            if x < 4: a('s_add_u32 s%d, s%d, %d' % (sT[2], sT[2], 4 * 3840))
        self.exec_all()
        self.srd(SW, pWS, WSZ)
        self.srd(SX, pX, 2048 * 1280)
        self.staging()
        self.xi_publish()
        self.stamp('issued', 1)
        self.setup()
        self.silu(1)
        self.stamp('c', 2)
        a.wait_vm('m0')
        self.unit_tr(176, 96)
        a.wait_lg()
        for T in range(4): a(self.mfma(60 + 4 * T, 96 + 4 * T, 128, first=True))
        self.mod_write()
        self.barrier()
        self.mod_publish()
        self.stamp('mpub', 3)
        a.wait_vm('cp')
        a('s_mov_b32 exec_hi, 0x0fffffff')
        for x in range(5):
            a('buffer_store_dwordx4 %s, v1, s[%d:%d], s%d offen offset:%d sc1' % (V(192 + 4 * x, 4), SW, SW + 3, jD[0], 960 * x), 'cs')
        self.cf_addr()
        a('v_mov_b32 v14, s%d' % sTAG)
        a('s_mov_b64 exec, 1')
        a.wait_vm()
        a('buffer_store_dword v14, off, s[%d:%d], s%d sc1' % (SW, SW + 3, jD[1]))
        self.exec_all()
        self.stamp('pre', 4)
        a('v_and_b32 v50, 7, v0')
        a('v_lshlrev_b32 v50, 7, v50')
        self.xi_issue('xi')
        self.poll(50, sT[6], 51)
        self.stamp('modok', 5)
        self.b1_issue(0, self.o['nbn'])
        self.xi_check('xi')

    def unit_load(self, dst, va, soff, pitch, tag):
        a = self.a
        for q in range(4):
            h, gp = q >> 1, q & 1
            if isinstance(pitch, int):
                a('s_add_u32 s%d, s%d, %d' % (sT[7], soff, (16 * gp + 4 * h) * pitch))
            else:
                a('s_mul_i32 s%d, %s, %d' % (sT[7], pitch, 16 * gp + 4 * h))
                a('s_add_u32 s%d, s%d, s%d' % (sT[7], sT[7], soff))
            a('buffer_load_dwordx4 %s, v%d, s[%d:%d], s%d offen %s' % (R(dst + 4 * q, 4), va, SJ, SJ + 3, sT[7], self.o['jpol']), tag)
    def unit_tr(self, src, f):
        a = self.a
        for h in range(2):
            for gp in range(2): a('ds_write_b128 v42, %s offset:%d' % (R(src + 8 * h + 4 * gp, 4), 1024 * gp))
            for T in range(4): a('ds_read_b64_tr_b16 %s, v%d' % (V(f + 4 * T + 2 * h, 2), 140 + T), 'jf%d' % f)
    def unit_store(self, f, mask, dst):
        a = self.a
        self.exec_('s%d' % mask, 's%d' % mask)
        for T in range(4):
            a('buffer_store_dwordx4 %s, v1, s[%d:%d], s%d offen offset:%d sc1' % (V(f + 4 * T, 4), SW, SW + 3, dst, 1024 * T), 'jst')
        self.exec_all()

    def producer(self):
        a = self.a
        ML, XR_, XF_, MA, SF, MG = 256, 76, 176, 60, 128, 216
        E = self.o['early']
        a('s_mul_i32 s%d, s%d, %d' % (sT[5], sXO, 16 * 1280))
        a('s_mul_i32 s%d, s%d, 320' % (sT[1], sW))
        a('s_add_u32 s%d, s%d, s%d' % (sT[5], sT[5], sT[1]))
        a('s_lshr_b32 s%d, s%d, 1' % (sT[0], sT[3]))
        a('s_and_b32 s%d, s%d, 1' % (sT[1], sT[3]))
        a('s_sub_u32 s%d, 3, s%d' % (sNM, sT[1]))
        a('s_mul_i32 s%d, s%d, s%d' % (sT[2], sNM, sW))
        a('s_mul_i32 s%d, s%d, 12' % (sT[4], sT[1]))
        a('s_add_u32 s%d, s%d, s%d' % (sT[2], sT[2], sT[4]))
        a('s_lshl_b32 s%d, s%d, 6' % (sT[6], sT[2]))
        a('v_add_u32 v44, s%d, v41' % sT[6])
        a('s_mul_i32 s%d, s%d, %d' % (sT[6], sT[2], 32 * 7680))
        a('s_lshl_b32 s%d, s%d, 7' % (sT[4], sT[0]))
        a('s_add_u32 s%d, s%d, 2560' % (sT[4], sT[4]))
        a('s_add_u32 s%d, s%d, s%d' % (sT[6], sT[6], sT[4]))
        a('s_mul_i32 s%d, s%d, 15360' % (sMO, sT[1]))
        a('s_lshl1_add_u32 s%d, s%d, s%d' % (sMO, sT[4], sMO))
        a('s_add_u32 s%d, s%d, 0x%x' % (sMO, sMO, MODP))
        a('s_sub_u32 s%d, s%d, 2' % (sT[0], sT[0]))
        a('s_mul_i32 s%d, s%d, 3' % (sT[1], sT[3]))
        a('s_sub_u32 s%d, s%d, 200' % (sT[1], sT[1]))
        a('s_cmp_lt_u32 s%d, 80' % sT[3])
        a('s_cselect_b32 s%d, s%d, 0' % (sNM, sNM))
        a('s_cselect_b32 s%d, s%d, s%d' % (sT[0], sT[0], sT[1]))
        a.wait_lg()
        self.stamp('karg', 0)
        a('s_load_dword s%d, s[%d:%d], 0' % (sTAG, pWS, pWS + 1))
        a('s_mov_b32 s%d, s%d' % (sN, sT[3]))
        self.srd(SX, pX, 2048 * 1280)
        for s in range(5):
            a('buffer_load_dwordx4 %s, v43, s[%d:%d], s%d offen offset:%d %s' % (V(XR_ + 4 * s, 4), SX, SX + 3, sT[5], 64 * s, self.o['hpol']), 'xt')
        self.srd(S1, pC, 1280)
        a('buffer_load_dword v44, v44, s[%d:%d], 0 offen' % (S1, S1 + 3), 'c')
        for i in range(184): assert (i * 205) >> 11 == i // 10
        a('s_mov_b32 s%d, 0x20000' % (SJ + 3))
        def slot(u):
            a('s_add_u32 s%d, s%d, %d' % (sT[1], sJ0, u))
            if self.o['lin']:
                a('s_lshl2_add_u32 s%d, s%d, s%d' % (sT[3], sT[1], sW))
                a('s_mul_i32 s%d, s%d, 6554' % (sT[4], sT[3]))
                a('s_lshr_b32 s%d, s%d, 16' % (sT[4], sT[4]))
                a('s_mul_i32 s%d, s%d, 10' % (sT[2], sT[4]))
                a('s_sub_u32 s%d, s%d, s%d' % (sT[3], sT[3], sT[2]))
                a('s_lshr_b32 s%d, s%d, 2' % (sT[2], sT[4]))
            else:
                a('s_mul_i32 s%d, s%d, 205' % (sT[2], sT[1]))
                a('s_lshr_b32 s%d, s%d, 11' % (sT[2], sT[2]))
                a('s_mul_i32 s%d, s%d, 10' % (sT[3], sT[2]))
                a('s_sub_u32 s%d, s%d, s%d' % (sT[3], sT[1], sT[3]))
                a('s_lshl2_add_u32 s%d, s%d, s%d' % (sT[4], sT[2], sW))
            a('s_mul_i32 s%d, s%d, 40960' % (sT[4], sT[4]))
            a('s_lshl_b32 s%d, s%d, 12' % (jD[u], sT[3]))
            a('s_add_u32 s%d, s%d, s%d' % (jD[u], jD[u], sT[4]))
            a('s_add_u32 s%d, s%d, 0x%x' % (jD[u], jD[u], W2T))
            a('s_lshl_b32 s%d, s%d, 7' % (sT[3], sT[3]))
            a('s_add_u32 s%d, s%d, s%d' % (sT[4], sT[4], sT[3]))
            a('s_sub_u32 s%d, s%d, 819200' % (sT[3], sT[4]))
            a('s_cmp_lt_u32 s%d, 170' % sT[1])
            a('s_cselect_b32 s%d, -1, 0' % jS[u])
            a('s_cmp_lt_u32 s%d, 5' % sT[2])
            a('s_cselect_b32 s%d, s%d, s%d' % (SJ, pWO, pW2))
            a('s_cselect_b32 s%d, s%d, s%d' % (SJ + 1, pWO + 1, pW2 + 1))
            a('s_cselect_b32 s%d, 5, 12' % sT[2])
            a('s_cselect_b32 s%d, s%d, s%d' % (sT[4], sT[4], sT[3]))
            a('s_cmp_gt_u32 s%d, %d' % (sNM, u))
            a('s_cselect_b32 s%d, s%d, s%d' % (SJ, pWM, SJ))
            a('s_cselect_b32 s%d, s%d, s%d' % (SJ + 1, pWM + 1, SJ + 1))
            a('s_cselect_b32 s%d, 30, s%d' % (sT[2], sT[2]))
            a('s_cselect_b32 s%d, s%d, s%d' % (sT[4], sJ1, sT[4]))
            a('s_cselect_b32 s%d, 6, 1' % sT[3])
            a('s_cselect_b32 s%d, -1, s%d' % (sT[1], jS[u]))
            a('s_cselect_b32 s%d, 0, s%d' % (jS[u], jS[u]))
            a('s_cselect_b64 vcc, -1, 0')
            a('s_and_b32 s%d, s%d, 0xffff' % (SJ + 1, SJ + 1))
            a('s_mul_i32 s%d, s%d, 163840' % (SJ + 2, sT[2]))
            a('s_mul_i32 s%d, s%d, 1280' % (sT[3], sT[3]))
            a('v_cndmask_b32 v40, v39, v38, vcc')
            self.exec_('s%d' % sT[1], 's%d' % sT[1])
            self.unit_load(ML + 16 * u, 40, sT[4], 's%d' % sT[3], 'm%d' % u)
            self.exec_all()
            a('s_add_u32 s%d, s%d, %d' % (sJ1, sJ1, 32 * 7680))
        a('s_mov_b32 s%d, s%d' % (sJ0, sT[0]))
        a('s_mov_b32 s%d, s%d' % (sJ1, sT[6]))
        if E > 0: slot(0)
        self.srd(SW, pWS, WSZ)
        self.staging()
        self.xi_publish()
        self.stamp('issued', 1)
        self.setup()
        a('s_lshl2_add_u32 s%d, s%d, s%d' % (sTILE, sXO, sW))
        a('s_mul_i32 s%d, s%d, 5120' % (sTILE, sTILE))
        a('s_add_u32 s%d, s%d, 0x%x' % (sTILE, sTILE, WHB))
        a('v_mov_b32 v34, 0')
        a('v_mov_b32 v35, 0')
        a('s_lshl_b32 s%d, s%d, 7' % (sT[0], sW))
        a('s_add_u32 s%d, s%d, %d' % (sT[0], sT[0], HST))
        a('v_lshl_add_u32 v60, v2, 3, s%d' % sT[0])
        a('v_lshlrev_b32 v61, 3, v2')
        a('v_add_u32 v61, %d, v61' % HST)
        a('v_lshlrev_b32 v46, 7, v0')
        if self.o['fast']:
            a('s_mov_b32 exec_hi, 0xff')
            a('buffer_load_dword v254, v46, s[%d:%d], s%d offen' % (SW, SW + 3, sTILE))
            a('s_mov_b32 exec_hi, -1')
        a.wait_vm('xt')
        self.stamp('c', 2)
        for u in range(1, E): slot(u)
        self.xi_issue('xi')
        for d in range(20):
            a('v_dot2c_f32_bf16 v34, s%d, v%d' % (sONE, XR_ + d))
            a('v_dot2c_f32_bf16 v35, v%d, v%d' % (XR_ + d, XR_ + d))
        self.rowsum([34, 35], 36)
        a('ds_write_b64 v60, v[34:35]')
        self.barrier()
        for i in range(4): a('ds_read_b64 %s, v61 offset:%d' % (V(62 + 2 * i, 2), 128 * i))
        self.stamp('mpub', 3)
        for d in range(20):
            a('v_lshlrev_b32 v%d, 16, v%d' % (XF_ + 2 * d, XR_ + d))
            a('v_and_b32 v%d, s%d, v%d' % (XF_ + 1 + 2 * d, sHI, XR_ + d))
        a.wait_lg()
        a('v_pk_add_f32 v[62:63], v[62:63], v[64:65]')
        a('v_pk_add_f32 v[66:67], v[66:67], v[68:69]')
        a('v_pk_add_f32 v[34:35], v[62:63], v[66:67]')

        a('s_mov_b32 s%d, 0x%x' % (sT[7], f2u(1 / 640)))
        self.finstats(34, 35, 36)
        a('v_mul_f32 v34, -v34, v35')
        for d in range(20):
            a('v_pk_fma_f32 %s, %s, v[34:35], v[34:35] op_sel:[0,1,0] op_sel_hi:[1,1,0]' % (V(XF_ + 2 * d, 2), V(XF_ + 2 * d, 2)))
        a('v_and_b32 v60, 16, v7')
        a('v_lshlrev_b32 v61, 1, v7')
        a('v_sub_u32 v60, v61, v60')
        a('s_mul_i32 s%d, s%d, 768' % (sT[0], sW))
        a('s_add_u32 s%d, s%d, %d' % (sT[0], sT[0], SPARE))
        a('v_add_u32 v60, s%d, v60' % sT[0])
        if self.o['mw'] >= 0: a.wait_vm('m%d' % self.o['mw'])
        self.mod_issue([0, 1], MG, 7, 'mod', 5)
        self.xi_check('xi')
        a('s_cmp_ge_u32 s%d, 14' % sJ)
        a('s_cselect_b32 s%d, 1, s%d' % (sSL2, sSLOW))
        self.stamp('pre', 4)
        self.mod_check([0, 1], MG, 7, 'mod', 36, 5)
        self.stamp('modok', 5)
        self.plus1(MG + 20)
        self.unpack4(52, MG)
        self.unpack4(56, MG + 20)
        a('ds_write_b128 v60, v[56:59]')
        a('ds_write_b128 v60, v[52:55] offset:32')
        MSR = [96, 112, 60, 216, 232]
        for s in range(5):
            for x in range(4):
                a('ds_read_b128 %s, v145 offset:%d' % (V(MSR[s] + 4 * x, 4), 256 * s + 16 * x), 'ms%d' % s)
        for s in range(5):
            a.wait_lg('ms%d' % s)
            b, r = MSR[s], XF_ + 8 * s
            for d in range(4):
                a('v_pk_fma_f32 %s, %s, %s, %s' % (V(r + 2 * d, 2), V(r + 2 * d, 2), V(b + 2 * d, 2), V(b + 8 + 2 * d, 2)))
            for d, (e0, e1) in enumerate(((0, 2), (4, 6), (1, 3), (5, 7))):
                a('v_cvt_pk_bf16_f32 v%d, v%d, v%d' % (XR_ + 4 * s + d, r + e0, r + e1))
        self.st2(['buffer_store_dwordx4 %s, v%d, s[%d:%d], s%d offen offset:%d' % (V(XR_ + 4 * s, 4), 1 if s < 4 else 5, SW, SW + 3, sTILE, 1024 * (s & 3)) for s in range(5)], 'hst', sSL2)
        self.cf_addr()
        a('buffer_load_dword v51, v50, s[%d:%d], s%d offen sc1' % (SW, SW + 3, sT[6]), 'cf')
        for u in range(E, 3): slot(u)
        F = [96, 112, 224]
        self.silu(3)
        for u in range(E): self.unit_tr(ML + 16 * u, F[u])
        a('s_lshl_b32 s%d, s%d, 7' % (sT[0], sXO))
        a('s_add_u32 s%d, s%d, 0x%x' % (sT[0], sT[0], FX))
        a('v_lshlrev_b32 v46, 7, v0')
        a.wait_vm('hst')
        if self.o['touch']:
            a('s_mov_b32 exec_hi, 0xff')
            a('buffer_load_dword v254, v46, s[%d:%d], s%d offen sc1' % (SW, SW + 3, sTILE))
            a('s_mov_b32 exec_hi, -1')
        a('s_barrier')
        self.flagstore(sT[0], sSL2)
        self.stamp('hpub', 6)
        for u in range(E, 3):
            a.wait_vm('m%d' % u)
            self.unit_tr(ML + 16 * u, F[u])
        Lc = a.newlabel('cfok')
        a.wait_vm('cf')
        a('v_cmp_ne_u32 vcc, s%d, v51' % sTAG)
        a('s_cbranch_vccz %s' % Lc)
        self.poll(50, sT[6], 51)
        a.label(Lc)
        self.stamp('jobs', 7)
        self.b1_issue(0, self.o['nb1'])
        a.wait_lg()
        for u in range(3):
            if u == 2:
                Ls = a.newlabel('nomf')
                a('s_cmp_lg_u32 s%d, 3' % sNM)
                a('s_cbranch_scc1 %s' % Ls)
            for T in range(4): a(self.mfma(MA + 4 * T, F[u] + 4 * T, SF + 4 * u, first=(u == 0)))
            if u == 2: a.label(Ls)
            self.unit_store(F[u], jS[u], jD[u])
        self.mod_write()
        self.barrier()
        self.mod_publish()
        self.b1_issue(self.o['nb1'], self.o['nb2'])

    def jobflag(self):
        a = self.a
        a('s_lshl_b32 s%d, s%d, 2' % (sT[2], sN))
        a('s_add_u32 s%d, s%d, 0x%x' % (sT[2], sT[2], JF))
        a('v_mov_b32 v14, s%d' % sTAG)
        a('s_cmp_eq_u32 s%d, 1' % sW)
        a('s_cselect_b32 s%d, s%d, 0' % (sT[3], sPROD))
        a('s_and_b32 exec_lo, s%d, 1' % sT[3])
        a('s_mov_b32 exec_hi, 0')
        a('buffer_store_dword v14, off, s[%d:%d], s%d sc1' % (SW, SW + 3, sT[2]))
        self.exec_all()

    def setup(self):
        a = self.a
        self.srd(SO, pOUT, 2048 * 1280)
        a('v_min_u32 v7, 39, v0')
        a('s_mul_i32 s%d, s%d, 40' % (sT[0], sW))
        a('v_add_lshl_u32 v7, v7, s%d, 4' % sT[0])
        a('v_add_u32 v5, 4096, v1')
        a('v_lshrrev_b32 v148, 2, v0')
        a('v_mul_u32_u24 v148, 480, v148')
        a('v_and_b32 v149, 3, v0')
        a('v_lshl_add_u32 v8, v149, 3, v148')
        a('v_and_b32 v149, 2, v0')
        a('v_lshl_add_u32 v152, v149, 5, v8')
        for i in range(1, 4):
            a('v_add_u32 v%d, %d, v8' % (8 + i, RGN * i))
            a('v_add_u32 v%d, %d, v152' % (152 + i, RGN * i))
        a('v_add_u32 v12, s%d, v8' % sRB)
        a('v_add_u32 v156, s%d, v152' % sRB)
        a('s_lshr_b32 s%d, s%d, 1' % (sT[0], sW))
        a('s_mul_i32 s%d, s%d, %d' % (sT[0], sT[0], RGN - 12288))
        a('s_mul_i32 s%d, s%d, 6144' % (sT[1], sW))
        a('s_add_u32 s%d, s%d, s%d' % (sT[0], sT[0], sT[1]))
        a('s_add_u32 s%d, s%d, %d' % (sT[0], sT[0], HP))
        a('v_add_u32 v4, s%d, v1' % sT[0])
        a('s_cmp_eq_u32 s%d, 1' % sW)
        a('s_cselect_b32 s%d, 512, 0' % sT[0])
        a('v_or_b32 v157, s%d, v1' % sT[0])
        a('s_lshl_b32 s%d, s%d, 10' % (sT[0], sW))
        a('s_add_u32 s%d, s%d, %d' % (sT[0], sT[0], HP))
        a('v_add_u32 v157, s%d, v157' % sT[0])
        a('s_add_u32 s%d, s%d, 4' % (sT[1], sW))
        a('s_min_u32 s%d, s%d, 5' % (sT[1], sT[1]))
        a('s_lshl_b32 s%d, s%d, 10' % (sT[0], sT[1]))
        a('s_add_u32 s%d, s%d, %d' % (sT[0], sT[0], HP))
        a('v_add_u32 v158, s%d, v1' % sT[0])
        a('s_lshl_b32 s%d, s%d, 9' % (sT[0], sW))
        a('s_add_u32 s%d, s%d, %d' % (sT[0], sT[0], EX))
        a('v_lshl_add_u32 v159, v0, 3, s%d' % sT[0])
        a('s_lshl_b32 s%d, s%d, 9' % (sT[0], sT[1]))
        a('s_add_u32 s%d, s%d, %d' % (sT[0], sT[0], EX))
        a('v_lshl_add_u32 v160, v0, 3, s%d' % sT[0])
        a('s_mul_i32 s%d, s%d, 3072' % (sT[0], sW))
        a('s_add_u32 s%d, s%d, %d' % (sT[0], sT[0], EX))
        a('v_lshl_add_u32 v161, v0, 3, s%d' % sT[0])
        a('v_and_b32 v148, 1, v3')
        a('v_lshrrev_b32 v149, 1, v3')
        a('v_mad_u32_u24 v162, v148, 3, v149')
        a('v_lshlrev_b32 v150, 4, v2')
        a('v_lshl_add_u32 v162, v162, 8, v150')
        a('v_mul_u32_u24 v149, 20480, v149')
        a('v_lshl_add_u32 v163, v148, 3, v150')
        a('v_add_u32 v163, v163, v149')
        NEG = 0xff61b1e6
        a('s_or_b32 s%d, s%d, s%d' % (sT[0], sC, sW))
        a('s_cselect_b32 s%d, 0, 0x%x' % (sT[0], NEG))
        a('s_mov_b32 s%d, 0x80000001' % sT[1])
        a('s_mov_b32 s%d, 0x80000000' % sT[2])
        a('s_mov_b32 s%d, 0x07070303' % sT[3])
        a('v_mov_b32 v150, 0x%x' % NEG)
        a('v_lshlrev_b32 v148, 2, v3')
        a('v_sub_u32 v148, v2, v148')
        for e in range(4):
            a('v_subrev_u32 v149, %d, v148' % e)
            a('v_and_b32 v149, s%d, v149' % sT[1])
            a('v_cmp_ne_u32 vcc, 0, v149')
            a('v_cndmask_b32 v%d, 0, v150, vcc' % (16 + e))
            a('v_cmp_ne_u32 vcc, s%d, v149' % sT[2])
            a('v_cndmask_b32 v%d, 0, v150, vcc' % (20 + e))
            a('v_or_b32 v%d, s%d, v%d' % (24 + e, sT[0], 20 + e))
        for x, r in enumerate((20, 22, 16, 18)):
            a('v_perm_b32 v%d, v%d, v%d, s%d' % (28 + x, r + 1, r, sT[3]))
        a('s_mov_b64 s[%d:%d], 0xffff' % (sG0, sG0 + 1))
        a('s_mov_b32 s%d, 0xffff0000' % sG1)
        a('s_mov_b32 s%d, 0' % (sG1 + 1))
        a('s_lshl2_add_u32 s%d, s%d, s%d' % (sT[0], sC, sW))
        a('s_mul_i32 s%d, s%d, 40960' % (sT[0], sT[0]))
        for t in range(2):
            for i in range(4): a('s_add_u32 s%d, s%d, 0x%x' % (sP[4 * t + i], sT[0], WHB + 20480 * t + 5120 * i))
        a('s_mul_i32 s%d, s%d, 1280' % (sT[1], sJ))
        a('s_add_u32 s%d, s%d, s%d' % (sP[9], sT[0], sT[1]))
        a('s_add_u32 s%d, s%d, 0x%x' % (sP[9], sP[9], WO_))
        a('s_lshl_b32 s%d, s%d, 3' % (sT[0], sC))
        a('s_max_u32 s%d, s%d, 1' % (sT[1], sT[0]))
        a('s_sub_u32 s%d, s%d, 1' % (sT[1], sT[1]))
        a('s_lshl2_add_u32 s%d, s%d, s%d' % (sT[2], sT[1], sW))
        a('s_mul_i32 s%d, s%d, 5120' % (sT[2], sT[2]))
        a('s_add_u32 s%d, s%d, 0x%x' % (sP[8], sT[2], WHB))
        a('s_lshl1_add_u32 s%d, s%d, s%d' % (sT[0], sW, sT[0]))
        a('v_add_u32 v13, s%d, v0' % sT[0])
        a('v_mov_b32 v148, s%d' % sT[1])
        a('v_cmp_gt_u32 vcc, 2, v0')
        a('v_cndmask_b32 v13, v148, v13, vcc')
        a('v_lshlrev_b32 v13, 7, v13')
        self.w_addr()

    def p1_gemm(self):
        a = self.a
        o = self.o
        ACC, HACC, BB, HB, HA = 32, 96, 120, 176, 200
        HT = [2, 4, 3, 5, 6, 7]
        steps = [(s, i) for s in range(5) for i in range(4)]
        def bread(n, T, h):
            s, i = steps[n]
            a('ds_read_b64_tr_b16 %s, v%d offset:%d' % (R(BB + 4 * T + 2 * h, 2), (152 if T == 4 else 8) + i, 7680 * s + 240 * h + TOFF[T]), 'B%d_%d' % (n, T))
        def hread(s, x, h):
            a('ds_read_b64_tr_b16 %s, v%d offset:%d' % (R(HB + 4 * x + 2 * h, 2), 156 if HT[x] == 4 else 12, 7680 * s + 240 * h + TOFF[HT[x]]), 'HB%d' % s)
        areg = lambda x: 220 + 4 * x if x < 8 else 256 + 4 * (x - 8)
        def aload(x):
            s, i = steps[x >> 1]
            if 'noA1' in o['exp']: return
            self.ld(areg(x), 1024 * s, sP[4 * (x & 1) + i], 'A%d' % x, o['apol'])
        def mm(d, w, act, T, first):
            return self.mfma(d, act, w, first) if T >= 5 else self.mfma(d, w, act, first)
        a('s_mov_b32 s%d, 0x%x' % (sT[0], FX))
        self.stamp('b1i')
        self.poll(13, sT[0], 32)
        self.stamp('gemm0')
        aq = list(range(40))
        for _ in range(o['la1']): aload(aq.pop(0))
        self.ld(HA, 0, sP[8], 'HA0')
        a('s_barrier')
        for T in range(8):
            for h in range(2): bread(0, T, h)
        self.jobflag()
        b1f = lambda x: (lambda: self.b1_one(x, x == o['nb2'], sPROD if x < o['nbn'] else None))
        b1q = list(range(o['nb2'], 38))
        hrd = {1: (0, 0, 6), 3: (1, 0, 3), 4: (1, 3, 6), 6: (2, 0, 3), 7: (2, 3, 6), 9: (3, 0, 3), 10: (3, 3, 6), 12: (4, 0, 6)}
        hmm = {2: 0, 5: 1, 8: 2, 11: 3, 13: 4}
        HOFF = [0, 6144, 38400, 44544]
        for n in range(20):
            s, i = steps[n]
            if n == 6: a.wait_vm('b1_2')
            if n == 9: a.wait_vm('b1_3')
            if n == 12:
                assert not b1q
                a.wait_vm('b1_4')
            if n == 7 and o['nb2'] < 23: a('s_barrier')
            if n == 11:
                a('s_barrier'); self.level = 1
            if n == 15:
                a.wait_lg('hp'); a('s_barrier'); self.level = 2
            vm, ot = [], []
            k = 2 if (b1q and n >= 1) else o['ra1']
            for _ in range(k):
                if aq: vm.append(lambda x=aq.pop(0): aload(x))
            if n >= 1:
                for _ in range(2):
                    if b1q: vm.append(b1f(b1q.pop(0)))
            if 1 <= n < 5: vm.append(lambda: self.ld(HA + 4 * n, 1024 * n, sP[8], 'HA%d' % n))
            if n in hrd:
                hs, x0, x1 = hrd[n]
                ot += [lambda x=x, h=h: hread(hs, x, h) for x in range(x0, x1) for h in range(2)]
            hm = []
            if n in hmm:
                hs = hmm[n]
                hm = [mm(HACC + 4 * x, HB + 4 * x, HA + 4 * hs, HT[x], hs == 0) for x in range(6)]
            if n == 14:
                ot += [lambda: None] * 3 + [lambda x=x: a('ds_write_b128 v4, %s offset:%d' % (R(HACC + 4 * x, 4), 1024 * x), 'hp') for x in range(6)]
                pre = self.p2_pre()
            if n >= 14:
                vm += pre[:3]; pre = pre[3:]
            if n == 15:
                ot += [lambda y=y, p=p: a('ds_read_b128 %s, v%d offset:%d' % (V(HB + 16 * y + 4 * p, 4), 157 + y, HOFF[p]), 'hr') for y in range(2) for p in range(4)]
            if n in (16, 17):
                b = HB + 16 * (n - 16)
                if n == 16: a.wait_lg('hr')
                ot += [lambda e=e, p=p: a('v_add_f32 v%d, v%d, v%d' % (b + 8 * p + e, b + 8 * p + e, b + 8 * p + 4 + e)) for p in range(2) for e in range(4)]
                ot += [lambda e=e: a('v_add_f32 v%d, v%d, v%d' % (b + e, b + e, b + 8 + e)) for e in range(4)]
                ot += [lambda e=e: a('v_cvt_pk_bf16_f32 v%d, v%d, v%d' % (b + e, b + 2 * e, b + 2 * e + 1)) for e in range(2)]
                ot += [lambda: a('ds_write_b64 v%d, %s' % (159 + n - 16, V(b, 2)))]
            if n == o['jfi']: vm.append(lambda: self.jf_issue())
            if n == o['jfc']:
                self.jf_check()
                self.queue_after_jobs()
            vm += self.touches('g%d' % n)
            if n >= o['gp0']:
                vm += [self.pump] * max(0, o['g_pump'] - (len(vm) if n < 14 else 1))
            ngap = 16 + len(hm)
            slots = [[] for _ in range(ngap)]
            for q, f in enumerate(vm): slots[(q * ngap + ngap // 2) // len(vm)].append(f)
            free = [g for g in range(ngap) if not slots[g]]
            if len(free) < len(ot): free = list(range(ngap))
            for q, f in enumerate(ot): slots[free[q * len(free) // len(ot)]].append(f)
            a.wait_vm('A%d' % (2 * n + 1))
            for T in range(8):
                if T % 2 == 0: a.wait_lg('B%d_%d' % (n, T + 1 if T < 6 else T))
                if T == 7: a.wait_lg('B%d_7' % n)
                for t in range(2):
                    a(mm(ACC + 32 * t + 4 * T, BB + 4 * T, areg(2 * n + t), T, n == 0))
                    if T > 0 and n + 1 < 20: bread(n + 1, T - 1, t)
                    if T == 0 and n > 0: bread(n, 7, t)
                    for f in slots.pop(0): f()
                if hm and T >= 2:
                    if T == 2:
                        a.wait_vm('HA%d' % hs); a.wait_lg('HB%d' % hs)
                    a(hm.pop(0))
                    for f in slots.pop(0): f()
            assert not slots and not hm
        assert not aq and not b1q and not pre
        self.stamp('gemm1')

    def p1_attn(self):
        a = self.a
        ACC, S_, P_, X_ = 32, 176, 64, 80
        K = lambda t: 102 + 6 * t
        Vv = lambda y, t: 116 + 6 * y + 2 * t
        Q = lambda t, h: 132 + 8 * t + 4 * h
        np_ = [self.o['at_pump']]
        def pump(k=1):
            k = min(k, np_[0]); np_[0] -= k; self.pump(k)
        def cvt(d, r):
            a('v_cvt_pk_bf16_f32 v%d, v%d, v%d' % (d, r, r + 1))
            a('v_cvt_pk_bf16_f32 v%d, v%d, v%d' % (d + 1, r + 2, r + 3))
        def kv(t):
            r = ACC + 32 * t
            cvt(K(t), r + 8); cvt(K(t) + 4, r + 12)
            cvt(K(t) + 2, r + 16); cvt(148 + 2 * t, r + 16)
            cvt(Vv(0, t), r + 20)
            for e in range(2): a('v_permlane32_swap_b32 v%d, v%d' % (148 + 2 * t + e, K(t) + 2 + e))
            cvt(Vv(1, t), r + 24); cvt(Vv(2, t), r + 28)
        def qq(t):
            r = ACC + 32 * t
            cvt(Q(t, 0), r); cvt(Q(t, 1) + 2, r + 4)
            for e in range(2):
                a('v_cndmask_b32 v%d, 0, v%d, s[%d:%d]' % (Q(t, 0) + 2 + e, 148 + 2 * t + e, sG0, sG0 + 1))
                a('v_cndmask_b32 v%d, 0, v%d, s[%d:%d]' % (Q(t, 1) + e, 148 + 2 * t + e, sG1, sG1 + 1))
        def smm(u, cur):
            t, h = u >> 1, u & 1
            m = 16 if cur else (24 if t == 0 else 20)
            a('v_mfma_f32_16x16x32_bf16 %s, %s, %s, %s' % (V(S_ + 8 * u + 4 * cur, 4), V(K(t - 1 + cur) + 2 * h, 4), V(Q(t, h), 4), V(m, 4)))
        kv(1)
        for x in range(3): a('ds_write_b64 v161, %s offset:%d' % (V(K(1) + 2 * x, 2), 3072 + 512 * x))
        for y in range(3): a('ds_write_b64 v161, %s offset:%d' % (V(Vv(y, 1), 2), 3072 + 1536 + 512 * y))
        for f in self.touches('a0'): f()
        pump(2)
        kv(0)
        self.barrier()
        self.level = 3
        for x in range(3): a('ds_read_b64 %s, v161 offset:%d' % (V(K(-1) + 2 * x, 2), 512 * x), 'ek')
        for y in range(3): a('ds_read_b64 %s, v161 offset:%d' % (V(Vv(y, -1), 2), 1536 + 512 * y), 'ev')
        pump(3)
        qq(1)
        for u in (2, 3): smm(u, 0); smm(u, 1)
        qq(0)
        pump(2)
        for u in (0, 1): smm(u, 1)
        a.wait_lg('ek')
        for u in (0, 1): smm(u, 0)
        self.stamp('S')
        cs = LOG2E / math.sqrt(20.0)
        a('s_mov_b32 s%d, 0x%x' % (sT[1], f2u(cs)))
        sv = lambda u, i: X_ + 2 * u + i
        M = X_ + 8
        for u in (2, 3, 0, 1):
            b = S_ + 8 * u
            for i in range(2): a('v_max3_f32 v%d, v%d, v%d, v%d' % (sv(u, i), b + 2 * i, b + 2 * i + 1, b + 4 + 2 * i))
            for i in range(2): a('v_max_f32 v%d, v%d, v%d' % (sv(u, i), sv(u, i), b + 5 + 2 * i))
            a('v_max_f32 v%d, v%d, v%d' % (M + u, sv(u, 0), sv(u, 1)))
            pump(1)
        def allred(op, mid):
            a('v_permlane32_swap_b32 v%d, v%d' % (M, M + 2))
            a('v_permlane32_swap_b32 v%d, v%d' % (M + 1, M + 3))
            pump(1)
            a('%s v%d, v%d, v%d' % (op, M, M, M + 2))
            a('%s v%d, v%d, v%d' % (op, M + 1, M + 1, M + 3))
            pump(1)
            a('v_permlane16_swap_b32 v%d, v%d' % (M, M + 1))
            a('%s v%d, v%d, v%d' % (op, M, M, M + 1))
            a(mid % (M + 1, M)); a(mid % (M + 2, M)); a(mid % (M + 3, M)); a(mid % (M, M))
            pump(1)
            a('v_permlane16_swap_b32 v%d, v%d' % (M + 2, M + 3))
            a('v_permlane16_swap_b32 v%d, v%d' % (M, M + 1))
            pump(1)
            a('v_permlane32_swap_b32 v%d, v%d' % (M, M + 2))
            a('v_permlane32_swap_b32 v%d, v%d' % (M + 1, M + 3))
        allred('v_max_f32', 'v_mul_f32 v%%d, s%d, v%%d' % sT[1])
        for u in range(4):
            for i in range(2): a('v_fma_f32 v%d, v%d, s%d, -v%d' % (sv(u, i), sv(u, i), sT[1], M + u))
        for u in range(4):
            for i in range(2): a('v_exp_f32 v%d, v%d' % (sv(u, i), sv(u, i)))
        for u in range(4): a('v_add_f32 v%d, v%d, v%d' % (M + u, sv(u, 0), sv(u, 1)))
        allred('v_add_f32', 'v_rcp_f32 v%d, v%d')
        a.wait_lg('ev')
        for u in range(4):
            t, h = u >> 1, u & 1
            for i in range(2): a('v_mul_f32 v%d, v%d, v%d' % (sv(u, i), sv(u, i), M + u))
            for i in range(2): a('v_cvt_pk_bf16_f32 v%d, v%d, v%d' % (sv(u, i), sv(u, i), sv(u, i)))
            for x in range(4): a('v_bfi_b32 v%d, v%d, 0, v%d' % (P_ + 4 * u + x, 28 + x, sv(u, x & 1)))
            if u > 0: self.pv(u - 1)
        self.pv(3)
        O = S_
        for t in range(2):
            cvt(O + 4 * t, ACC + 16 * t); cvt(O + 4 * t + 2, ACC + 16 * t + 8)
            cvt(O + 8 + 2 * t, ACC + 16 * t + 4); cvt(O + 12, ACC + 16 * t + 12)
            for e in range(2): a('v_permlane16_swap_b32 v%d, v%d' % (O + 4 * t + e, O + 4 * t + 2 + e))
            for e in range(2): a('v_cndmask_b32 v%d, v%d, v%d, s[%d:%d]' % (O + 8 + 2 * t + e, O + 8 + 2 * t + e, O + 12 + e, sG1, sG1 + 1))
        a('s_add_u32 s%d, s%d, 20480' % (sT[0], sP[9]))
        for e in range(2): a('v_permlane32_swap_b32 v%d, v%d' % (O + 8 + e, O + 10 + e))
        self.st2(['buffer_store_dwordx4 %s, v162, s[%d:%d], s%d offen' % (V(O, 4), SW, SW + 3, sP[9]),
                  'buffer_store_dwordx4 %s, v162, s[%d:%d], s%d offen' % (V(O + 4, 4), SW, SW + 3, sT[0]),
                  'buffer_store_dwordx2 %s, v163, s[%d:%d], s%d offen offset:512' % (V(O + 8, 2), SW, SW + 3, sP[9])], 'ost')
        self.stamp('attn')

    def pv(self, u):
        t, h = u >> 1, u & 1
        for x, y in enumerate((h, 2)):
            self.a('v_mfma_f32_16x16x32_bf16 %s, %s, %s, 0' % (V(32 + 8 * u + 4 * x, 4), V(114 + 6 * y + 2 * t, 4), V(64 + 4 * u, 4)))

    def finish(self):
        a = self.a
        D = a.newlabel('ep')
        a('s_or_b32 s%d, s2, s%d' % (sT[0], sW))
        a('s_cmp_lg_u32 s%d, 0' % sT[0])
        a('s_cbranch_scc1 %s' % D)
        a('v_mov_b32 v14, s%d' % sTAG)
        self.exec_(1, 0)
        a('buffer_store_dword v14, off, s[%d:%d], 0 sc1' % (SW, SW + 3))
        self.exec_all()
        a.label(D)
        if self.stamps:
            a.wait_vm()
            self.stamp('end')
            a('v_writelane_b32 v15, s%d, 63' % sFAIL)
            a('v_writelane_b32 v15, s%d, 62' % sSLOW)
            a('s_lshl_b32 s%d, s2, 2' % sT[0])
            a('s_add_u32 s%d, s%d, s%d' % (sT[0], sT[0], sW))
            a('s_lshl_b32 s%d, s%d, 8' % (sT[0], sT[0]))
            a('s_add_u32 s%d, s%d, 0x%x' % (sT[0], sT[0], DBG))
            a('v_lshlrev_b32 v14, 2, v0')
            a('buffer_store_dword v15, v14, s[%d:%d], s%d offen' % (SW, SW + 3, sT[0]))
            amp = self.o.get('amp', 0)
            if amp:
                L, E = a.newlabel('amp'), a.newlabel('ampe')
                a('v_readlane_b32 s%d, v15, 0' % sT[2])
                a('v_readlane_b32 s%d, v15, %d' % (sT[3], amp))
                a('v_readlane_b32 s%d, v15, %d' % (sT[4], self.nst - 1))
                a('s_cmp_eq_u32 s%d, 0' % sT[3])
                a('s_cbranch_scc1 %s' % E)
                a('s_sub_u32 s%d, s%d, s%d' % (sT[3], sT[3], sT[2]))
                a('s_min_u32 s%d, s%d, 6000' % (sT[3], sT[3]))
                a('s_lshl_b32 s%d, s%d, 2' % (sT[3], sT[3]))
                a('s_mov_b32 s%d, 0x100000' % sCNT)
                a.label(L)
                a('s_memrealtime s[98:99]')
                a('s_waitcnt lgkmcnt(0)')
                a('s_sub_u32 s%d, s%d, 1' % (sCNT, sCNT))
                a('s_cmp_eq_u32 s%d, 0' % sCNT)
                a('s_cbranch_scc1 %s' % E)
                a('s_sub_u32 s%d, s98, s%d' % (sT[5], sT[4]))
                a('s_cmp_lt_u32 s%d, s%d' % (sT[5], sT[3]))
                a('s_cbranch_scc1 %s' % L)
                a.label(E)
            hd = self.o.get('hd', 0)
            if hd:
                a('s_load_dwordx2 s[%d:%d], s[0:1], 72' % (sT[0], sT[1]))
                a.wait_lg()
                self.srd(SJ, sT[0], 64)
                sh = 0 if hd in (1, 3) else 11
                a('v_subrev_u32 v13, %d, v0' % sh)
                a('v_max_i32 v13, 0, v13')
                a('v_lshlrev_b32 v13, 2, v13')
                if hd in (1, 2):
                    a('v_not_b32 v12, v15')
                    a('v_cmp_eq_u32 vcc, 0, v0')
                    a('v_cndmask_b32 v12, v15, v12, vcc')
                    op = 'umax'
                else:
                    a('v_readlane_b32 s%d, v15, 0' % sT[2])
                    a('v_subrev_u32 v12, s%d, v15' % sT[2])
                    a('v_cmp_eq_u32 vcc, 0, v15')
                    a('v_cndmask_b32 v12, v12, 0, vcc') if 0 else a('v_cndmask_b32 v12, v12, v15, vcc')
                    op = 'add'
                self.exec_('0xffff' if sh == 0 else '0x%x' % (1 | (0x7fff << 12)), 0)
                a('buffer_atomic_%s v12, v13, s[%d:%d], 0 offen' % (op, SJ, SJ + 3))
                self.exec_all()
        a.label('L_end')
        a('s_endpgm')
        for c in self.cold: c()
        a.label('CODE_END')
        a('s_endpgm')

from gen2 import add_phases
add_phases(Gen, globals())

def build(stamps=False, opt=None):
    g = Gen(stamps, opt)
    g.run()
    body = g.a.finish()
    hdr = '''; fused adaLN block: persistent single launch, 256 workgroups (one per CU)
; @launch grid=(256,1,1) block=(256,1,1) lds=163840
.amdgcn_target "amdgcn-amd-amdhsa--gfx950"
.text
.globl {n}_kernel
.p2align 8
.type {n}_kernel,@function
{n}_kernel:
'''.format(n=NAME)
    tail = '''
.section .rodata,"a"
.p2align 6
.amdhsa_kernel {n}_kernel
  .amdhsa_next_free_vgpr 512
  .amdhsa_next_free_sgpr 102
  .amdhsa_accum_offset 256
  .amdhsa_group_segment_fixed_size 0
  .amdhsa_kernarg_size 88
  .amdhsa_user_sgpr_count 2
  .amdhsa_user_sgpr_kernarg_segment_ptr 1
  .amdhsa_system_sgpr_workgroup_id_x 1
.end_amdhsa_kernel
'''.format(n=NAME)
    return hdr + body + tail, g

def parse(kvs):
    o = {}
    for kv in kvs:
        k, v = kv.split('=', 1)
        o[k] = int(v) if v.lstrip('-').isdigit() else v.replace('+', ' ')
    return o

if __name__ == '__main__':
    if len(sys.argv) > 2 and sys.argv[1] == 'var':
        o = parse(sys.argv[3:])
        txt, g = build(True, o)
        open('v_%s.s' % sys.argv[2], 'w').write(txt)
        open('v_%s.names' % sys.argv[2], 'w').write('\n'.join(g.names))
        txt, g = build(False, o)
        open('p_%s.s' % sys.argv[2], 'w').write(txt)
    else:
        out = 'cdna_kernels/%s.s' % NAME
        txt, g = build(False)
        open(out, 'w').write(txt)
        print('written', out, len(txt), 'bytes; nops', g.a.npad)
```

```python
import sys, os, math
sys.path.insert(0, os.path.dirname(os.path.abspath(__file__)))
from asmlib import *

NAME = 'adaLN_cond__sliding_local_dilated__dense_activation_silu__prompt'

JF   = 0x1000
CF   = 0x60000
FO   = 0x2000
FY   = 0xA000
FH   = 0x12000
FX   = 0x1A000
XI   = 0x22000
MODP = 0x24000
ST   = 0x40000
W2T  = 0x80000
W4T  = W2T + 819200
WO_  = W4T + 1966080
WY   = WO_ + 2621440
WH   = WY + 2621440
WHB  = WH + 6291456
W1C  = WHB + 2621440
DBG  = W1C + 2457600
WSZ  = DBG + 1024 * 256

RGN   = 38400
SPARE = 153600
HST   = SPARE + 8192
MRED  = SPARE + 8704
HP    = 76800
EX    = 76800 + 12288
RED   = 92160
X1S   = 122880
UT    = 143360
GA_, C2F, GB_, C2B, S2B = SPARE, SPARE + 2560, SPARE + 5120, SPARE + 7680, SPARE + 8960
TOFF = [0, 48, 80, 128, 32, 160, 208, 192]

sW, sC, sJ, sTAG, sCI = 3, 4, 5, 6, 7
pX, pQ, pWO, pW1, pW2, pC, pWM, pOUT, pWS = 8, 10, 12, 16, 18, 20, 22, 24, 28
SX, SQ, SW, SO, S1, SJ = 32, 36, 40, 44, 48, 52
sRG, sCG = 30, 31
sP = [56, 57, 58, 59, 60, 61, 62, 63, 64, 65, 66, 67]
sB3M, sB4O = 68, 69
sG0, sG1 = 70, 72
jD = [74, 75, 76]; jS = [77, 78, 79]
sJ0, sJ1 = 100, 101
sTQ = 100
sNM = 80
sMO = 81
sRB = 82
sXO = 83
sB1 = 84
sPROD = 85
sT = [86, 87, 88, 89, 90, 91, 92, 93]
sCNT = 94
sONE = 95
sHI = 96
sFAIL = 97
sSLOW = 14
sN = 15
sTILE = 26
sSL2 = 27

LOG2E = 1.4426950408889634
def f2u(x):
    import struct
    return struct.unpack('<I', struct.pack('<f', x))[0]

DEF = dict(bpol='sc1', jpol='nt', hpol='', fast=0, cwarm=1, wpol='sc1', w1pol='', apol='sc1', spol='', touch=0, early=3, mw=1, lin=1, gp0=12, t2='x', t3a='x', t3b='x', t4a='x', t4b='x', fine=0, exp='',
           nb1=4, nb2=30, nbn=38, cpol='', ra1=4, la1=10, jfi=9, jfc=12, g_pump=4, at_pump=21,
           la2=12, la3=12, la4=12, ra3=3, o_pre=0, p2_pump=10, y_pre=0, p3_pump=60, h_pre=0)

class Gen:
    def __init__(self, stamps=False, opt=None):
        self.a = Asm()
        self.stamps = stamps
        self.o = dict(DEF); self.o.update(opt or {})
        self.nst = 0
        self.fq = []
        self.cold = []
        self.level = 0

    def stamp(self, name, idx=None):
        if not self.stamps: return
        a = self.a
        idx = self.nst if idx is None else idx
        a.c('stamp %d %s' % (idx, name))
        if name == 'karg':
            a.wait_lg()
            a('v_writelane_b32 v15, s98, 40')
        a('s_memrealtime s[98:99]')
        a.wait_lg()
        a('v_writelane_b32 v15, s98, %d' % idx)
        if idx >= self.nst:
            self.names = getattr(self, 'names', []) + [name]
            self.nst = idx + 1

    def srd(self, d, p, n):
        a = self.a
        a('s_mov_b32 s%d, s%d' % (d, p))
        a('s_and_b32 s%d, s%d, 0xffff' % (d + 1, p + 1))
        a('s_mov_b32 s%d, %d' % (d + 2, n))
        a('s_mov_b32 s%d, 0x20000' % (d + 3))

    def exec_(self, lo, hi):
        self.a('s_mov_b32 exec_lo, %s' % lo)
        self.a('s_mov_b32 exec_hi, %s' % hi)
    def exec_all(self):
        self.a('s_mov_b64 exec, -1')

    def barrier(self):
        self.a.wait_lg()
        self.a('s_barrier')

    def rowsum(self, regs, tmp):
        a = self.a
        for sw in ('v_permlane32_swap_b32', 'v_permlane16_swap_b32'):
            for i, r in enumerate(regs): a('v_mov_b32 v%d, v%d' % (tmp + i, r))
            for i, r in enumerate(regs): a('%s v%d, v%d' % (sw, r, tmp + i))
            for i, r in enumerate(regs): a('v_add_f32 v%d, v%d, v%d' % (r, r, tmp + i))

    def finstats(self, s1, s2, t):
        a = self.a
        a('v_mul_f32 v%d, 0x%x, v%d' % (s1, f2u(1 / 640), s1))
        a('v_mul_f32 v%d, v%d, v%d' % (t, s1, s1))
        a('v_fma_f32 v%d, v%d, s%d, -v%d' % (s2, s2, sT[7], t))
        a('v_max_f32 v%d, 0, v%d' % (s2, s2))
        a('v_add_f32 v%d, 0x%x, v%d' % (s2, f2u(1e-5), s2))
        a('v_rsq_f32 v%d, v%d' % (s2, s2))

    def poll(self, vaddr, soff, vt):
        a = self.a
        L, D = a.newlabel('poll'), a.newlabel('pdone')
        a('s_mov_b32 s%d, 0x8000' % sCNT)
        a.label(L)
        a('buffer_load_dword v%d, v%d, s[%d:%d], s%d offen sc1' % (vt, vaddr, SW, SW + 3, soff))
        a.wait_vm()
        a('v_cmp_ne_u32 vcc, s%d, v%d' % (sTAG, vt))
        a('s_cbranch_vccz %s' % D)
        a('s_sub_u32 s%d, s%d, 1' % (sCNT, sCNT))
        a('s_cmp_lg_u32 s%d, 0' % sCNT)
        a('s_cbranch_scc1 %s' % L)
        a.label(D)

    def mod_issue(self, vecs, r0, vaddr, tag, NP=2):
        a = self.a
        for i, vec in enumerate(vecs):
            for p in range(NP):
                a('s_mov_b32 s%d, 0x%x' % (sT[0], MODP + p * 15360 + vec * 2560))
                a('buffer_load_dwordx4 %s, v%d, s[%d:%d], s%d offen sc1' % (V(r0 + 4 * NP * i + 4 * p, 4), vaddr, SW, SW + 3, sT[0]), tag)

    def mod_check(self, vecs, r0, vaddr, tag, t, NP=2):
        a = self.a
        L, C, D = a.newlabel('mchk'), a.newlabel('mcold'), a.newlabel('mok')
        N = 4 * NP * len(vecs)
        a('s_mov_b32 s%d, 0x8000' % sCNT)
        for e in range(4): a('s_bfe_u32 s%d, s%d, 0x%x' % (sT[1 + e], sTAG, 0x80000 + 8 * e))
        a.wait_vm(tag)
        a.label(L)
        for x in range(N):
            a('v_xor_b32 v%d, s%d, v%d' % (r0 + x, sT[1 + (x & 3)], r0 + x))
            if x == 1: a('v_or_b32 v%d, v%d, v%d' % (t, r0, r0 + 1))
            elif x & 1: a('v_or3_b32 v%d, v%d, v%d, v%d' % (t, t, r0 + x - 1, r0 + x))
        a('v_cmp_ne_u32_sdwa vcc, v%d, v%d src0_sel:BYTE_0 src1_sel:BYTE_3' % (t, 0))
        a('s_cbranch_vccnz %s' % C)
        a.label(D)
        def cold():
            a.label(C)
            a('s_add_u32 s%d, s%d, 1' % (sFAIL, sFAIL))
            a('s_sub_u32 s%d, s%d, 1' % (sCNT, sCNT))
            a('s_cmp_eq_u32 s%d, 0' % sCNT)
            a('s_cbranch_scc1 %s' % D)
            self.mod_issue(vecs, r0, vaddr, None, NP)
            a('s_waitcnt vmcnt(0)')
            a('s_branch %s' % L)
        self.cold.append(cold)
        for p in range(1, NP):
            for i in range(len(vecs)):
                r = r0 + 4 * NP * i
                for e in (0, 2): a('v_pk_add_f32 %s, %s, %s' % (V(r + e, 2), V(r + e, 2), V(r + 4 * p + e, 2)))
        for i in range(len(vecs)):
            r = r0 + 4 * NP * i
            a('v_cvt_pk_bf16_f32 v%d, v%d, v%d' % (r, r, r + 1))
            a('v_cvt_pk_bf16_f32 v%d, v%d, v%d' % (r + 1, r + 2, r + 3))

    def unpack4(self, d, s):
        a = self.a
        a('v_lshlrev_b32 v%d, 16, v%d' % (d, s))
        a('v_and_b32 v%d, s%d, v%d' % (d + 1, sHI, s))
        a('v_lshlrev_b32 v%d, 16, v%d' % (d + 2, s + 1))
        a('v_and_b32 v%d, s%d, v%d' % (d + 3, sHI, s + 1))

    def plus1(self, r):
        a = self.a
        self.unpack4(r + 4, r)
        for e in range(4): a('v_add_f32 v%d, 1.0, v%d' % (r + 4 + e, r + 4 + e))
        a('v_cvt_pk_bf16_f32 v%d, v%d, v%d' % (r, r + 4, r + 5))
        a('v_cvt_pk_bf16_f32 v%d, v%d, v%d' % (r + 1, r + 6, r + 7))

    def mfma(self, d, wa, act, first=False):
        c = '0' if first else R(d, 4)
        return 'v_mfma_f32_16x16x32_bf16 %s, %s, %s, %s' % (R(d, 4), R(wa, 4), R(act, 4), c)

    def pump(self, k=1):
        while k > 0 and self.fq and self.fq[0][0] <= self.level:
            self.fq.pop(0)[1]()
            k -= 1
    def flush(self, name):
        while any(e[2] == name for e in self.fq):
            assert self.fq[0][0] <= self.level
            self.fq.pop(0)[1]()

    def st2(self, texts, tag=None, sl=None):
        a = self.a
        if not self.o['fast']:
            for t in texts:
                if t.startswith('buffer'): a(t + ' sc1', tag)
                else: a(t)
            return
        Ls, Ld = a.newlabel('slow'), a.newlabel('sdone')
        a('s_cmp_lg_u32 s%d, 0' % (sSLOW if sl is None else sl))
        a('s_cbranch_scc1 %s' % Ls)
        for t in texts: a(t + (' ' + self.o['spol'] if t.startswith('buffer') else ''), tag)
        a.label(Ld)
        def cold():
            a.label(Ls)
            a('s_nop 4')
            for t in texts: a.items.append(Ins(t + (' sc1' if t.startswith('buffer') else '')))
            a('s_nop 1')
            a('s_branch %s' % Ld)
        self.cold.append(cold)

    def flagstore(self, soff, sl=None):
        a = self.a
        D = a.newlabel('pub')
        a('s_cmp_lg_u32 s%d, 0' % sW)
        a('s_cbranch_scc1 %s' % D)
        a('v_mov_b32 v14, s%d' % sTAG)
        self.exec_(1, 0)
        save = list(a.vm)
        self.st2(['buffer_store_dword v14, off, s[%d:%d], s%d' % (SW, SW + 3, soff)], None, sl)
        a.vm = save
        self.exec_all()
        a.label(D)

    def publish(self, base, tag=None, touch=None):
        a = self.a
        a('s_lshl_b32 s%d, s%d, 7' % (sT[0], sCI))
        a('s_add_u32 s%d, s%d, 0x%x' % (sT[0], sT[0], base))
        if touch and self.o['touch']: touch[0]()
        a.wait_vm(tag)
        if touch and self.o['touch']: touch[1]()
        self.barrier()
        self.flagstore(sT[0])

    def xi_issue(self, tag):
        a = self.a
        a('s_lshl_b32 s%d, s%d, 7' % (sT[0], sC))
        a('s_add_u32 s%d, s%d, 0x%x' % (sT[0], sT[0], XI))
        a('v_lshlrev_b32 v32, 2, v2')
        a('buffer_load_dword v33, v32, s[%d:%d], s%d offen sc1' % (SW, SW + 3, sT[0]), tag)
    def xi_check(self, tag):
        a = self.a
        L, D = a.newlabel('xi'), a.newlabel('xiok')
        a.wait_vm(tag)
        a('s_mov_b32 s%d, 0x8000' % sCNT)
        a.label(L)
        a('v_subrev_u32 v33, s%d, v33' % sTAG)
        a('v_cmp_lt_u32 vcc, 15, v33')
        a('s_cbranch_vccz %s' % D)
        a('s_sub_u32 s%d, s%d, 1' % (sCNT, sCNT))
        a('s_cmp_eq_u32 s%d, 0' % sCNT)
        a('s_cbranch_scc1 %s' % D)
        save = list(a.vm)
        self.xi_issue(None)
        a('s_waitcnt vmcnt(0)')
        a.vm = save
        a('s_branch %s' % L)
        a.label(D)
        a('v_readfirstlane_b32 s%d, v33' % sT[0])
        a('v_cmp_ne_u32 vcc, s%d, v33' % sT[0])
        a('s_or_b32 s%d, vcc_lo, vcc_hi' % sSLOW)

    def b1_one(self, x, force=False, mask=None):
        a = self.a
        if force or x % 4 == 0:
            a('s_add_u32 m0, s%d, %d' % (sRB, 4096 * (x // 4)))
            a('s_add_u32 s%d, s%d, %d' % (sT[7], sB1, 4096 * (x // 4)))
        if mask is not None: a('s_mov_b32 exec_lo, s%d' % mask)
        if x == 37: a('s_mov_b32 exec_hi, 0')
        elif mask is not None: a('s_mov_b32 exec_hi, s%d' % mask)
        a('buffer_load_dwordx4 v1, s[%d:%d], s%d offen offset:%d %s lds' % (SW, SW + 3, sT[7], 1024 * (x & 3), self.o['bpol']), 'b1_%d' % (2 * x // 15))
        if x == 37 or mask is not None: self.exec_all()
    def b1_issue(self, x0, x1):
        for x in range(x0, x1): self.b1_one(x, x == x0)

    def xi_publish(self):
        a = self.a
        a.wait_lg()
        a('s_add_u32 s%d, s%d, 0x9e3779b9' % (sTAG, sTAG))
        a('s_getreg_b32 s%d, hwreg(HW_REG_XCC_ID, 0, 4)' % sT[1])
        a('s_add_u32 s%d, s%d, s%d' % (sT[1], sT[1], sTAG))
        a('v_mov_b32 v14, s%d' % sT[1])
        a('s_lshl_b32 s%d, s%d, 7' % (sT[0], sC))
        a('s_lshl2_add_u32 s%d, s%d, s%d' % (sT[0], sJ, sT[0]))
        a('s_add_u32 s%d, s%d, 0x%x' % (sT[0], sT[0], XI))
        a('s_cmp_eq_u32 s%d, 0' % sW)
        a('s_cselect_b32 exec_lo, 1, 0')
        a('s_mov_b32 exec_hi, 0')
        a('buffer_store_dword v14, off, s[%d:%d], s%d sc1' % (SW, SW + 3, sT[0]))
        self.exec_all()

    def prologue(self):
        a = self.a
        a('s_cmp_ge_u32 s2, 256')
        a('s_cbranch_scc1 L_end')
        if self.stamps: a('s_memrealtime s[98:99]')
        a('s_load_dwordx16 s[8:23], s[0:1], 0')
        a('s_load_dwordx4 s[24:27], s[0:1], 64')
        a('s_load_dwordx2 s[28:29], s[0:1], 80')
        if self.o['cwarm']:
            a('s_getpc_b64 s[%d:%d]' % (SJ, SJ + 1))
            a('s_and_b32 s%d, s%d, 0xffff' % (SJ + 1, SJ + 1))
            a('s_mov_b32 s%d, CODE_END-%s_kernel-64' % (SJ + 2, NAME))
            a('s_mov_b32 s%d, 0x20000' % (SJ + 3))
            a('s_bfe_u32 s%d, s2, 0x10003' % sT[0])
            a('s_lshl_b32 s%d, s%d, 15' % (sT[0], sT[0]))
            a('v_lshl_add_u32 v1, v0, 7, s%d' % sT[0])
            a('buffer_load_dword v255, v1, s[%d:%d], 0 offen' % (SJ, SJ + 3), 'cw')
        a('v_lshrrev_b32 v1, 6, v0')
        a('v_and_b32 v0, 63, v0')
        a('v_readfirstlane_b32 s%d, v1' % sW)
        a('v_lshlrev_b32 v1, 4, v0')
        if self.stamps: a('v_mov_b32 v15, 0')
        a('s_mov_b32 s%d, 0' % sFAIL)
        a('s_and_b32 s%d, s2, 7' % sT[0])
        a('s_lshr_b32 s%d, s2, 7' % sT[1])
        a('s_lshl1_add_u32 s%d, s%d, s%d' % (sC, sT[0], sT[1]))
        a('s_bfe_u32 s%d, s2, 0x40003' % sJ)
        a('s_lshl4_add_u32 s%d, s%d, s%d' % (sCI, sC, sJ))
        a('s_lshr_b32 s%d, s%d, 3' % (sRG, sJ))
        a('s_and_b32 s%d, s%d, 7' % (sCG, sJ))
        a('s_mov_b32 s%d, 0x3f803f80' % sONE)
        a('s_mov_b32 s%d, 0xffff0000' % sHI)
        a('s_mul_i32 s%d, s%d, %d' % (sRB, sW, RGN))
        a('s_mul_i32 s%d, s%d, 153600' % (sB1, sJ))
        a('s_add_u32 s%d, s%d, s%d' % (sB1, sB1, sRB))
        a('s_add_u32 s%d, s%d, 0x%x' % (sB1, sB1, W1C))
        a('v_and_b32 v2, 15, v0')
        a('v_lshrrev_b32 v3, 4, v0')
        a('v_lshrrev_b32 v36, 5, v0')
        a('v_bfe_u32 v37, v0, 3, 2')
        a('v_lshl_add_u32 v36, v36, 3, v37')
        a('v_and_b32 v37, 0x70, v1')
        a('v_mul_u32_u24 v38, 7680, v36')
        a('v_add_u32 v38, v38, v37')
        a('v_mul_u32_u24 v39, 1280, v36')
        a('v_add_u32 v39, v39, v37')
        a('v_lshlrev_b32 v41, 2, v0')
        a('v_mul_u32_u24 v6, 52, v0')
        a('v_lshrrev_b32 v6, 8, v6')
        a('v_mul_u32_u24 v6, 1200, v6')
        a('v_add_u32 v6, v6, v1')
        a('v_mul_u32_u24 v43, 1280, v2')
        a('v_lshl_add_u32 v43, v3, 4, v43')
        a('s_lshr_b32 s%d, s%d, 1' % (sT[2], sJ))
        a('s_lshl3_add_u32 s%d, s%d, s%d' % (sT[3], sT[1], sT[2]))
        a('s_lshl3_add_u32 s%d, s%d, s%d' % (sT[3], sT[3], sT[0]))
        a('s_lshl3_add_u32 s%d, s%d, s%d' % (sXO, sC, sT[2]))
        a('s_xor_b32 s%d, s%d, s%d' % (sT[1], sT[1], sJ))
        a('s_and_b32 s%d, s%d, 1' % (sT[1], sT[1]))
        a('s_sub_u32 s%d, 0, s%d' % (sPROD, sT[1]))
        Lp, Ld = a.newlabel('prod'), a.newlabel('join')
        a('s_cbranch_scc1 %s' % Lp)
        save = (list(a.vm), list(a.lg))
        self.plain()
        a('s_branch %s' % Ld)
        a.vm, a.lg = save
        a.label(Lp)
        self.producer()
        a.label(Ld)

    def staging(self):
        a = self.a
        a('s_lshl_b32 s%d, s%d, 11' % (sT[0], sW))
        a('s_add_u32 s%d, s%d, %d' % (sT[0], sT[0], SPARE))
        a('v_and_b32 v42, 0x30, v0')
        a('v_lshlrev_b32 v42, 1, v42')
        a('v_xor_b32 v42, v42, v1')
        a('v_add_u32 v42, s%d, v42' % sT[0])
        a('v_lshrrev_b32 v140, 2, v0')
        a('v_and_b32 v141, 6, v140')
        a('v_lshlrev_b32 v141, 4, v141')
        a('v_lshl_add_u32 v140, v140, 7, v141')
        a('v_and_b32 v141, 3, v0')
        a('v_lshl_add_u32 v140, v141, 3, v140')
        a('v_add_u32 v140, s%d, v140' % sT[0])
        for T in range(1, 4): a('v_xor_b32 v%d, %d, v140' % (140 + T, 32 * T))
        a('v_add_u32 v41, s%d, v41' % sT[0])
        a('v_lshl_add_u32 v45, v3, 4, s%d' % sT[0])
        a('v_lshl_add_u32 v145, v3, 6, s%d' % sT[0])
        a('s_lshl_b32 s%d, s%d, 8' % (sT[0], sW))
        a('s_add_u32 s%d, s%d, %d' % (sT[0], sT[0], MRED))
        a('v_lshl_add_u32 v144, v3, 4, s%d' % sT[0])
        a('v_lshlrev_b32 v146, 4, v2')
        a('v_add_u32 v147, %d, v146' % MRED)
    def silu(self, nu):
        a = self.a
        a.wait_vm('c')
        a('v_lshlrev_b32 v46, 16, v44')
        a('v_and_b32 v47, s%d, v44' % sHI)
        for r in (46, 47): a('v_mul_f32 v%d, 0x%x, v%d' % (r + 2, f2u(-LOG2E), r))
        for r in (46, 47): a('v_exp_f32 v%d, v%d' % (r + 2, r + 2))
        for r in (46, 47): a('v_add_f32 v%d, 1.0, v%d' % (r + 2, r + 2))
        for r in (46, 47): a('v_rcp_f32 v%d, v%d' % (r + 2, r + 2))
        for r in (46, 47): a('v_mul_f32 v%d, v%d, v%d' % (r, r, r + 2))
        a('v_cvt_pk_bf16_f32 v44, v46, v47')
        a('ds_write_b32 v41, v44')
        for u in range(nu):
            a('ds_read_b128 %s, v45 offset:%d' % (V(128 + 4 * u, 4), 64 * u), 'silu')
    def mod_write(self):
        a = self.a
        self.exec_('0x00010001', '0x00010001')
        a('s_nop 6')
        for T in range(4): a('ds_write_b128 v144, %s offset:%d' % (V(60 + 4 * T, 4), 64 * T))
        self.exec_all()
    def mod_publish(self):
        a = self.a
        MA = 60
        Ld = a.newlabel('nomod')
        a('s_cmp_eq_u32 s%d, 0' % sNM)
        a('s_cselect_b32 s%d, 1, s%d' % (sT[5], sW))
        a('s_cmp_lg_u32 s%d, 0' % sT[5])
        a('s_cbranch_scc1 %s' % Ld)
        for i in range(4): a('ds_read_b128 %s, v147 offset:%d' % (V(MA + 4 * i, 4), 256 * i))
        a('s_mov_b32 s%d, 0xffffff00' % sT[0])
        for e in range(4): a('s_bfe_u32 s%d, s%d, 0x%x' % (sT[1 + e], sTAG, 0x80000 + 8 * e))
        a.wait_lg()
        for hh in (0, 2):
            a('v_pk_add_f32 %s, %s, %s' % (V(MA + hh, 2), V(MA + hh, 2), V(MA + 4 + hh, 2)))
            a('v_pk_add_f32 %s, %s, %s' % (V(MA + 8 + hh, 2), V(MA + 8 + hh, 2), V(MA + 12 + hh, 2)))
        for hh in (0, 2):
            a('v_pk_add_f32 %s, %s, %s' % (V(MA + hh, 2), V(MA + hh, 2), V(MA + 8 + hh, 2)))
        for e in range(4): a('v_and_b32 v%d, s%d, v%d' % (MA + e, sT[0], MA + e))
        for e in range(4): a('v_or_b32 v%d, s%d, v%d' % (MA + e, sT[1 + e], MA + e))
        a('s_mov_b64 exec, 0xffff')
        a.items.append(Ins('buffer_store_dwordx4 %s, v146, s[%d:%d], s%d offen sc1' % (V(MA, 4), SW, SW + 3, sMO)))
        self.exec_all()
        a.label(Ld)
    def cf_addr(self):
        a = self.a
        a('s_lshl2_add_u32 s%d, s%d, s%d' % (sT[6], sJ, sW))
        a('s_lshl_b32 s%d, s%d, 10' % (sT[6], sT[6]))
        a('s_add_u32 s%d, s%d, 0x%x' % (sT[6], sT[6], CF))
        a('v_and_b32 v50, 7, v0')
        a('v_lshlrev_b32 v50, 7, v50')

    def plain(self):
        a = self.a
        a('s_mul_i32 s%d, s%d, 205' % (sT[0], sT[3]))
        a('s_lshr_b32 s%d, s%d, 10' % (sT[0], sT[0]))
        a('s_mul_i32 s%d, s%d, 5' % (sT[1], sT[0]))
        a('s_sub_u32 s%d, s%d, s%d' % (sT[1], sT[3], sT[1]))
        a('s_lshl2_add_u32 s%d, s%d, s%d' % (sT[2], sT[1], sW))
        a('s_lshl_b32 s%d, s%d, 6' % (sT[6], sT[2]))
        a('s_mul_i32 s%d, s%d, %d' % (sT[5], sT[2], 32 * 7680))
        a('s_lshl_b32 s%d, s%d, 7' % (sT[4], sT[0]))
        a('s_add_u32 s%d, s%d, s%d' % (sT[5], sT[5], sT[4]))
        a('s_mul_i32 s%d, s%d, 15360' % (sMO, sT[1]))
        a('s_lshl1_add_u32 s%d, s%d, s%d' % (sMO, sT[4], sMO))
        a('s_add_u32 s%d, s%d, 0x%x' % (sMO, sMO, MODP))
        a('s_cmp_lt_u32 s%d, 100' % sT[3])
        a('s_cselect_b32 s%d, -1, 0' % sNM)
        a('v_add_u32 v44, s%d, v41' % sT[6])
        a('s_lshr_b32 s%d, s%d, 2' % (sT[0], sT[3]))
        a('s_and_b32 s%d, s%d, 3' % (sT[1], sT[3]))
        a('s_lshl2_add_u32 s%d, s%d, s%d' % (sT[1], sT[1], sW))
        a('s_mul_i32 s%d, s%d, %d' % (sT[2], sT[0], 20 * 3840))
        a('s_mul_i32 s%d, s%d, 80' % (sT[4], sT[1]))
        a('s_add_u32 s%d, s%d, s%d' % (sT[2], sT[2], sT[4]))
        a('s_lshl_b32 s%d, s%d, 5' % (sT[1], sT[1]))
        a('s_add_u32 s%d, s%d, s%d' % (sT[1], sT[1], sT[0]))
        a('s_mul_i32 s%d, s%d, 4800' % (jD[0], sT[1]))
        a('s_add_u32 s%d, s%d, 0x%x' % (jD[0], jD[0], W1C))
        a('s_lshl_b32 s%d, s%d, 7' % (jD[1], sT[1]))
        a('s_add_u32 s%d, s%d, 0x%x' % (jD[1], jD[1], CF))
        a.wait_lg()
        self.stamp('karg', 0)
        a('s_load_dword s%d, s[%d:%d], 0' % (sTAG, pWS, pWS + 1))
        a('s_mov_b32 s%d, 0' % sN)
        self.srd(S1, pC, 1280)
        a('buffer_load_dword v44, v44, s[%d:%d], 0 offen' % (S1, S1 + 3), 'c')
        self.srd(SJ, pWM, 640 * 7680)
        self.exec_('s%d' % sNM, 's%d' % sNM)
        self.unit_load(176, 38, sT[5], 7680, 'm0')
        self.srd(SQ, pQ, 640 * 3840)
        self.exec_(-1, '0x0fffffff')
        for x in range(5):
            a('buffer_load_dwordx4 %s, v6, s[%d:%d], s%d offen %s' % (V(192 + 4 * x, 4), SQ, SQ + 3, sT[2], self.o['cpol']), 'cp')
            if x < 4: a('s_add_u32 s%d, s%d, %d' % (sT[2], sT[2], 4 * 3840))
        self.exec_all()
        self.srd(SW, pWS, WSZ)
        self.srd(SX, pX, 2048 * 1280)
        self.staging()
        self.xi_publish()
        self.stamp('issued', 1)
        self.setup()
        self.silu(1)
        self.stamp('c', 2)
        a.wait_vm('m0')
        self.unit_tr(176, 96)
        a.wait_lg()
        for T in range(4): a(self.mfma(60 + 4 * T, 96 + 4 * T, 128, first=True))
        self.mod_write()
        self.barrier()
        self.mod_publish()
        self.stamp('mpub', 3)
        a.wait_vm('cp')
        a('s_mov_b32 exec_hi, 0x0fffffff')
        for x in range(5):
            a('buffer_store_dwordx4 %s, v1, s[%d:%d], s%d offen offset:%d sc1' % (V(192 + 4 * x, 4), SW, SW + 3, jD[0], 960 * x), 'cs')
        self.cf_addr()
        a('v_mov_b32 v14, s%d' % sTAG)
        a('s_mov_b64 exec, 1')
        a.wait_vm()
        a('buffer_store_dword v14, off, s[%d:%d], s%d sc1' % (SW, SW + 3, jD[1]))
        self.exec_all()
        self.stamp('pre', 4)
        a('v_and_b32 v50, 7, v0')
        a('v_lshlrev_b32 v50, 7, v50')
        self.xi_issue('xi')
        self.poll(50, sT[6], 51)
        self.stamp('modok', 5)
        self.b1_issue(0, self.o['nbn'])
        self.xi_check('xi')

    def unit_load(self, dst, va, soff, pitch, tag):
        a = self.a
        for q in range(4):
            h, gp = q >> 1, q & 1
            if isinstance(pitch, int):
                a('s_add_u32 s%d, s%d, %d' % (sT[7], soff, (16 * gp + 4 * h) * pitch))
            else:
                a('s_mul_i32 s%d, %s, %d' % (sT[7], pitch, 16 * gp + 4 * h))
                a('s_add_u32 s%d, s%d, s%d' % (sT[7], sT[7], soff))
            a('buffer_load_dwordx4 %s, v%d, s[%d:%d], s%d offen %s' % (R(dst + 4 * q, 4), va, SJ, SJ + 3, sT[7], self.o['jpol']), tag)
    def unit_tr(self, src, f):
        a = self.a
        for h in range(2):
            for gp in range(2): a('ds_write_b128 v42, %s offset:%d' % (R(src + 8 * h + 4 * gp, 4), 1024 * gp))
            for T in range(4): a('ds_read_b64_tr_b16 %s, v%d' % (V(f + 4 * T + 2 * h, 2), 140 + T), 'jf%d' % f)
    def unit_store(self, f, mask, dst):
        a = self.a
        self.exec_('s%d' % mask, 's%d' % mask)
        for T in range(4):
            a('buffer_store_dwordx4 %s, v1, s[%d:%d], s%d offen offset:%d sc1' % (V(f + 4 * T, 4), SW, SW + 3, dst, 1024 * T), 'jst')
        self.exec_all()

    def producer(self):
        a = self.a
        ML, XR_, XF_, MA, SF, MG = 256, 76, 176, 60, 128, 216
        E = self.o['early']
        a('s_mul_i32 s%d, s%d, %d' % (sT[5], sXO, 16 * 1280))
        a('s_mul_i32 s%d, s%d, 320' % (sT[1], sW))
        a('s_add_u32 s%d, s%d, s%d' % (sT[5], sT[5], sT[1]))
        a('s_lshr_b32 s%d, s%d, 1' % (sT[0], sT[3]))
        a('s_and_b32 s%d, s%d, 1' % (sT[1], sT[3]))
        a('s_sub_u32 s%d, 3, s%d' % (sNM, sT[1]))
        a('s_mul_i32 s%d, s%d, s%d' % (sT[2], sNM, sW))
        a('s_mul_i32 s%d, s%d, 12' % (sT[4], sT[1]))
        a('s_add_u32 s%d, s%d, s%d' % (sT[2], sT[2], sT[4]))
        a('s_lshl_b32 s%d, s%d, 6' % (sT[6], sT[2]))
        a('v_add_u32 v44, s%d, v41' % sT[6])
        a('s_mul_i32 s%d, s%d, %d' % (sT[6], sT[2], 32 * 7680))
        a('s_lshl_b32 s%d, s%d, 7' % (sT[4], sT[0]))
        a('s_add_u32 s%d, s%d, 2560' % (sT[4], sT[4]))
        a('s_add_u32 s%d, s%d, s%d' % (sT[6], sT[6], sT[4]))
        a('s_mul_i32 s%d, s%d, 15360' % (sMO, sT[1]))
        a('s_lshl1_add_u32 s%d, s%d, s%d' % (sMO, sT[4], sMO))
        a('s_add_u32 s%d, s%d, 0x%x' % (sMO, sMO, MODP))
        a('s_sub_u32 s%d, s%d, 2' % (sT[0], sT[0]))
        a('s_mul_i32 s%d, s%d, 3' % (sT[1], sT[3]))
        a('s_sub_u32 s%d, s%d, 200' % (sT[1], sT[1]))
        a('s_cmp_lt_u32 s%d, 80' % sT[3])
        a('s_cselect_b32 s%d, s%d, 0' % (sNM, sNM))
        a('s_cselect_b32 s%d, s%d, s%d' % (sT[0], sT[0], sT[1]))
        a.wait_lg()
        self.stamp('karg', 0)
        a('s_load_dword s%d, s[%d:%d], 0' % (sTAG, pWS, pWS + 1))
        a('s_mov_b32 s%d, s%d' % (sN, sT[3]))
        self.srd(SX, pX, 2048 * 1280)
        for s in range(5):
            a('buffer_load_dwordx4 %s, v43, s[%d:%d], s%d offen offset:%d %s' % (V(XR_ + 4 * s, 4), SX, SX + 3, sT[5], 64 * s, self.o['hpol']), 'xt')
        self.srd(S1, pC, 1280)
        a('buffer_load_dword v44, v44, s[%d:%d], 0 offen' % (S1, S1 + 3), 'c')
        for i in range(184): assert (i * 205) >> 11 == i // 10
        a('s_mov_b32 s%d, 0x20000' % (SJ + 3))
        def slot(u):
            a('s_add_u32 s%d, s%d, %d' % (sT[1], sJ0, u))
            if self.o['lin']:
                a('s_lshl2_add_u32 s%d, s%d, s%d' % (sT[3], sT[1], sW))
                a('s_mul_i32 s%d, s%d, 6554' % (sT[4], sT[3]))
                a('s_lshr_b32 s%d, s%d, 16' % (sT[4], sT[4]))
                a('s_mul_i32 s%d, s%d, 10' % (sT[2], sT[4]))
                a('s_sub_u32 s%d, s%d, s%d' % (sT[3], sT[3], sT[2]))
                a('s_lshr_b32 s%d, s%d, 2' % (sT[2], sT[4]))
            else:
                a('s_mul_i32 s%d, s%d, 205' % (sT[2], sT[1]))
                a('s_lshr_b32 s%d, s%d, 11' % (sT[2], sT[2]))
                a('s_mul_i32 s%d, s%d, 10' % (sT[3], sT[2]))
                a('s_sub_u32 s%d, s%d, s%d' % (sT[3], sT[1], sT[3]))
                a('s_lshl2_add_u32 s%d, s%d, s%d' % (sT[4], sT[2], sW))
            a('s_mul_i32 s%d, s%d, 40960' % (sT[4], sT[4]))
            a('s_lshl_b32 s%d, s%d, 12' % (jD[u], sT[3]))
            a('s_add_u32 s%d, s%d, s%d' % (jD[u], jD[u], sT[4]))
            a('s_add_u32 s%d, s%d, 0x%x' % (jD[u], jD[u], W2T))
            a('s_lshl_b32 s%d, s%d, 7' % (sT[3], sT[3]))
            a('s_add_u32 s%d, s%d, s%d' % (sT[4], sT[4], sT[3]))
            a('s_sub_u32 s%d, s%d, 819200' % (sT[3], sT[4]))
            a('s_cmp_lt_u32 s%d, 170' % sT[1])
            a('s_cselect_b32 s%d, -1, 0' % jS[u])
            a('s_cmp_lt_u32 s%d, 5' % sT[2])
            a('s_cselect_b32 s%d, s%d, s%d' % (SJ, pWO, pW2))
            a('s_cselect_b32 s%d, s%d, s%d' % (SJ + 1, pWO + 1, pW2 + 1))
            a('s_cselect_b32 s%d, 5, 12' % sT[2])
            a('s_cselect_b32 s%d, s%d, s%d' % (sT[4], sT[4], sT[3]))
            a('s_cmp_gt_u32 s%d, %d' % (sNM, u))
            a('s_cselect_b32 s%d, s%d, s%d' % (SJ, pWM, SJ))
            a('s_cselect_b32 s%d, s%d, s%d' % (SJ + 1, pWM + 1, SJ + 1))
            a('s_cselect_b32 s%d, 30, s%d' % (sT[2], sT[2]))
            a('s_cselect_b32 s%d, s%d, s%d' % (sT[4], sJ1, sT[4]))
            a('s_cselect_b32 s%d, 6, 1' % sT[3])
            a('s_cselect_b32 s%d, -1, s%d' % (sT[1], jS[u]))
            a('s_cselect_b32 s%d, 0, s%d' % (jS[u], jS[u]))
            a('s_cselect_b64 vcc, -1, 0')
            a('s_and_b32 s%d, s%d, 0xffff' % (SJ + 1, SJ + 1))
            a('s_mul_i32 s%d, s%d, 163840' % (SJ + 2, sT[2]))
            a('s_mul_i32 s%d, s%d, 1280' % (sT[3], sT[3]))
            a('v_cndmask_b32 v40, v39, v38, vcc')
            self.exec_('s%d' % sT[1], 's%d' % sT[1])
            self.unit_load(ML + 16 * u, 40, sT[4], 's%d' % sT[3], 'm%d' % u)
            self.exec_all()
            a('s_add_u32 s%d, s%d, %d' % (sJ1, sJ1, 32 * 7680))
        a('s_mov_b32 s%d, s%d' % (sJ0, sT[0]))
        a('s_mov_b32 s%d, s%d' % (sJ1, sT[6]))
        if E > 0: slot(0)
        self.srd(SW, pWS, WSZ)
        self.staging()
        self.xi_publish()
        self.stamp('issued', 1)
        self.setup()
        a('s_lshl2_add_u32 s%d, s%d, s%d' % (sTILE, sXO, sW))
        a('s_mul_i32 s%d, s%d, 5120' % (sTILE, sTILE))
        a('s_add_u32 s%d, s%d, 0x%x' % (sTILE, sTILE, WHB))
        a('v_mov_b32 v34, 0')
        a('v_mov_b32 v35, 0')
        a('s_lshl_b32 s%d, s%d, 7' % (sT[0], sW))
        a('s_add_u32 s%d, s%d, %d' % (sT[0], sT[0], HST))
        a('v_lshl_add_u32 v60, v2, 3, s%d' % sT[0])
        a('v_lshlrev_b32 v61, 3, v2')
        a('v_add_u32 v61, %d, v61' % HST)
        a('v_lshlrev_b32 v46, 7, v0')
        if self.o['fast']:
            a('s_mov_b32 exec_hi, 0xff')
            a('buffer_load_dword v254, v46, s[%d:%d], s%d offen' % (SW, SW + 3, sTILE))
            a('s_mov_b32 exec_hi, -1')
        a.wait_vm('xt')
        self.stamp('c', 2)
        for u in range(1, E): slot(u)
        self.xi_issue('xi')
        for d in range(20):
            a('v_dot2c_f32_bf16 v34, s%d, v%d' % (sONE, XR_ + d))
            a('v_dot2c_f32_bf16 v35, v%d, v%d' % (XR_ + d, XR_ + d))
        self.rowsum([34, 35], 36)
        a('ds_write_b64 v60, v[34:35]')
        self.barrier()
        for i in range(4): a('ds_read_b64 %s, v61 offset:%d' % (V(62 + 2 * i, 2), 128 * i))
        self.stamp('mpub', 3)
        for d in range(20):
            a('v_lshlrev_b32 v%d, 16, v%d' % (XF_ + 2 * d, XR_ + d))
            a('v_and_b32 v%d, s%d, v%d' % (XF_ + 1 + 2 * d, sHI, XR_ + d))
        a.wait_lg()
        a('v_pk_add_f32 v[62:63], v[62:63], v[64:65]')
        a('v_pk_add_f32 v[66:67], v[66:67], v[68:69]')
        a('v_pk_add_f32 v[34:35], v[62:63], v[66:67]')

        a('s_mov_b32 s%d, 0x%x' % (sT[7], f2u(1 / 640)))
        self.finstats(34, 35, 36)
        a('v_mul_f32 v34, -v34, v35')
        for d in range(20):
            a('v_pk_fma_f32 %s, %s, v[34:35], v[34:35] op_sel:[0,1,0] op_sel_hi:[1,1,0]' % (V(XF_ + 2 * d, 2), V(XF_ + 2 * d, 2)))
        a('v_and_b32 v60, 16, v7')
        a('v_lshlrev_b32 v61, 1, v7')
        a('v_sub_u32 v60, v61, v60')
        a('s_mul_i32 s%d, s%d, 768' % (sT[0], sW))
        a('s_add_u32 s%d, s%d, %d' % (sT[0], sT[0], SPARE))
        a('v_add_u32 v60, s%d, v60' % sT[0])
        if self.o['mw'] >= 0: a.wait_vm('m%d' % self.o['mw'])
        self.mod_issue([0, 1], MG, 7, 'mod', 5)
        self.xi_check('xi')
        a('s_cmp_ge_u32 s%d, 14' % sJ)
        a('s_cselect_b32 s%d, 1, s%d' % (sSL2, sSLOW))
        self.stamp('pre', 4)
        self.mod_check([0, 1], MG, 7, 'mod', 36, 5)
        self.stamp('modok', 5)
        self.plus1(MG + 20)
        self.unpack4(52, MG)
        self.unpack4(56, MG + 20)
        a('ds_write_b128 v60, v[56:59]')
        a('ds_write_b128 v60, v[52:55] offset:32')
        MSR = [96, 112, 60, 216, 232]
        for s in range(5):
            for x in range(4):
                a('ds_read_b128 %s, v145 offset:%d' % (V(MSR[s] + 4 * x, 4), 256 * s + 16 * x), 'ms%d' % s)
        for s in range(5):
            a.wait_lg('ms%d' % s)
            b, r = MSR[s], XF_ + 8 * s
            for d in range(4):
                a('v_pk_fma_f32 %s, %s, %s, %s' % (V(r + 2 * d, 2), V(r + 2 * d, 2), V(b + 2 * d, 2), V(b + 8 + 2 * d, 2)))
            for d, (e0, e1) in enumerate(((0, 2), (4, 6), (1, 3), (5, 7))):
                a('v_cvt_pk_bf16_f32 v%d, v%d, v%d' % (XR_ + 4 * s + d, r + e0, r + e1))
        self.st2(['buffer_store_dwordx4 %s, v%d, s[%d:%d], s%d offen offset:%d' % (V(XR_ + 4 * s, 4), 1 if s < 4 else 5, SW, SW + 3, sTILE, 1024 * (s & 3)) for s in range(5)], 'hst', sSL2)
        self.cf_addr()
        a('buffer_load_dword v51, v50, s[%d:%d], s%d offen sc1' % (SW, SW + 3, sT[6]), 'cf')
        for u in range(E, 3): slot(u)
        F = [96, 112, 224]
        self.silu(3)
        for u in range(E): self.unit_tr(ML + 16 * u, F[u])
        a('s_lshl_b32 s%d, s%d, 7' % (sT[0], sXO))
        a('s_add_u32 s%d, s%d, 0x%x' % (sT[0], sT[0], FX))
        a('v_lshlrev_b32 v46, 7, v0')
        a.wait_vm('hst')
        if self.o['touch']:
            a('s_mov_b32 exec_hi, 0xff')
            a('buffer_load_dword v254, v46, s[%d:%d], s%d offen sc1' % (SW, SW + 3, sTILE))
            a('s_mov_b32 exec_hi, -1')
        a('s_barrier')
        self.flagstore(sT[0], sSL2)
        self.stamp('hpub', 6)
        for u in range(E, 3):
            a.wait_vm('m%d' % u)
            self.unit_tr(ML + 16 * u, F[u])
        Lc = a.newlabel('cfok')
        a.wait_vm('cf')
        a('v_cmp_ne_u32 vcc, s%d, v51' % sTAG)
        a('s_cbranch_vccz %s' % Lc)
        self.poll(50, sT[6], 51)
        a.label(Lc)
        self.stamp('jobs', 7)
        self.b1_issue(0, self.o['nb1'])
        a.wait_lg()
        for u in range(3):
            if u == 2:
                Ls = a.newlabel('nomf')
                a('s_cmp_lg_u32 s%d, 3' % sNM)
                a('s_cbranch_scc1 %s' % Ls)
            for T in range(4): a(self.mfma(MA + 4 * T, F[u] + 4 * T, SF + 4 * u, first=(u == 0)))
            if u == 2: a.label(Ls)
            self.unit_store(F[u], jS[u], jD[u])
        self.mod_write()
        self.barrier()
        self.mod_publish()
        self.b1_issue(self.o['nb1'], self.o['nb2'])

    def jobflag(self):
        a = self.a
        a('s_lshl_b32 s%d, s%d, 2' % (sT[2], sN))
        a('s_add_u32 s%d, s%d, 0x%x' % (sT[2], sT[2], JF))
        a('v_mov_b32 v14, s%d' % sTAG)
        a('s_cmp_eq_u32 s%d, 1' % sW)
        a('s_cselect_b32 s%d, s%d, 0' % (sT[3], sPROD))
        a('s_and_b32 exec_lo, s%d, 1' % sT[3])
        a('s_mov_b32 exec_hi, 0')
        a('buffer_store_dword v14, off, s[%d:%d], s%d sc1' % (SW, SW + 3, sT[2]))
        self.exec_all()

    def setup(self):
        a = self.a
        self.srd(SO, pOUT, 2048 * 1280)
        a('v_min_u32 v7, 39, v0')
        a('s_mul_i32 s%d, s%d, 40' % (sT[0], sW))
        a('v_add_lshl_u32 v7, v7, s%d, 4' % sT[0])
        a('v_add_u32 v5, 4096, v1')
        a('v_lshrrev_b32 v148, 2, v0')
        a('v_mul_u32_u24 v148, 480, v148')
        a('v_and_b32 v149, 3, v0')
        a('v_lshl_add_u32 v8, v149, 3, v148')
        a('v_and_b32 v149, 2, v0')
        a('v_lshl_add_u32 v152, v149, 5, v8')
        for i in range(1, 4):
            a('v_add_u32 v%d, %d, v8' % (8 + i, RGN * i))
            a('v_add_u32 v%d, %d, v152' % (152 + i, RGN * i))
        a('v_add_u32 v12, s%d, v8' % sRB)
        a('v_add_u32 v156, s%d, v152' % sRB)
        a('s_lshr_b32 s%d, s%d, 1' % (sT[0], sW))
        a('s_mul_i32 s%d, s%d, %d' % (sT[0], sT[0], RGN - 12288))
        a('s_mul_i32 s%d, s%d, 6144' % (sT[1], sW))
        a('s_add_u32 s%d, s%d, s%d' % (sT[0], sT[0], sT[1]))
        a('s_add_u32 s%d, s%d, %d' % (sT[0], sT[0], HP))
        a('v_add_u32 v4, s%d, v1' % sT[0])
        a('s_cmp_eq_u32 s%d, 1' % sW)
        a('s_cselect_b32 s%d, 512, 0' % sT[0])
        a('v_or_b32 v157, s%d, v1' % sT[0])
        a('s_lshl_b32 s%d, s%d, 10' % (sT[0], sW))
        a('s_add_u32 s%d, s%d, %d' % (sT[0], sT[0], HP))
        a('v_add_u32 v157, s%d, v157' % sT[0])
        a('s_add_u32 s%d, s%d, 4' % (sT[1], sW))
        a('s_min_u32 s%d, s%d, 5' % (sT[1], sT[1]))
        a('s_lshl_b32 s%d, s%d, 10' % (sT[0], sT[1]))
        a('s_add_u32 s%d, s%d, %d' % (sT[0], sT[0], HP))
        a('v_add_u32 v158, s%d, v1' % sT[0])
        a('s_lshl_b32 s%d, s%d, 9' % (sT[0], sW))
        a('s_add_u32 s%d, s%d, %d' % (sT[0], sT[0], EX))
        a('v_lshl_add_u32 v159, v0, 3, s%d' % sT[0])
        a('s_lshl_b32 s%d, s%d, 9' % (sT[0], sT[1]))
        a('s_add_u32 s%d, s%d, %d' % (sT[0], sT[0], EX))
        a('v_lshl_add_u32 v160, v0, 3, s%d' % sT[0])
        a('s_mul_i32 s%d, s%d, 3072' % (sT[0], sW))
        a('s_add_u32 s%d, s%d, %d' % (sT[0], sT[0], EX))
        a('v_lshl_add_u32 v161, v0, 3, s%d' % sT[0])
        a('v_and_b32 v148, 1, v3')
        a('v_lshrrev_b32 v149, 1, v3')
        a('v_mad_u32_u24 v162, v148, 3, v149')
        a('v_lshlrev_b32 v150, 4, v2')
        a('v_lshl_add_u32 v162, v162, 8, v150')
        a('v_mul_u32_u24 v149, 20480, v149')
        a('v_lshl_add_u32 v163, v148, 3, v150')
        a('v_add_u32 v163, v163, v149')
        NEG = 0xff61b1e6
        a('s_or_b32 s%d, s%d, s%d' % (sT[0], sC, sW))
        a('s_cselect_b32 s%d, 0, 0x%x' % (sT[0], NEG))
        a('s_mov_b32 s%d, 0x80000001' % sT[1])
        a('s_mov_b32 s%d, 0x80000000' % sT[2])
        a('s_mov_b32 s%d, 0x07070303' % sT[3])
        a('v_mov_b32 v150, 0x%x' % NEG)
        a('v_lshlrev_b32 v148, 2, v3')
        a('v_sub_u32 v148, v2, v148')
        for e in range(4):
            a('v_subrev_u32 v149, %d, v148' % e)
            a('v_and_b32 v149, s%d, v149' % sT[1])
            a('v_cmp_ne_u32 vcc, 0, v149')
            a('v_cndmask_b32 v%d, 0, v150, vcc' % (16 + e))
            a('v_cmp_ne_u32 vcc, s%d, v149' % sT[2])
            a('v_cndmask_b32 v%d, 0, v150, vcc' % (20 + e))
            a('v_or_b32 v%d, s%d, v%d' % (24 + e, sT[0], 20 + e))
        for x, r in enumerate((20, 22, 16, 18)):
            a('v_perm_b32 v%d, v%d, v%d, s%d' % (28 + x, r + 1, r, sT[3]))
        a('s_mov_b64 s[%d:%d], 0xffff' % (sG0, sG0 + 1))
        a('s_mov_b32 s%d, 0xffff0000' % sG1)
        a('s_mov_b32 s%d, 0' % (sG1 + 1))
        a('s_lshl2_add_u32 s%d, s%d, s%d' % (sT[0], sC, sW))
        a('s_mul_i32 s%d, s%d, 40960' % (sT[0], sT[0]))
        for t in range(2):
            for i in range(4): a('s_add_u32 s%d, s%d, 0x%x' % (sP[4 * t + i], sT[0], WHB + 20480 * t + 5120 * i))
        a('s_mul_i32 s%d, s%d, 1280' % (sT[1], sJ))
        a('s_add_u32 s%d, s%d, s%d' % (sP[9], sT[0], sT[1]))
        a('s_add_u32 s%d, s%d, 0x%x' % (sP[9], sP[9], WO_))
        a('s_lshl_b32 s%d, s%d, 3' % (sT[0], sC))
        a('s_max_u32 s%d, s%d, 1' % (sT[1], sT[0]))
        a('s_sub_u32 s%d, s%d, 1' % (sT[1], sT[1]))
        a('s_lshl2_add_u32 s%d, s%d, s%d' % (sT[2], sT[1], sW))
        a('s_mul_i32 s%d, s%d, 5120' % (sT[2], sT[2]))
        a('s_add_u32 s%d, s%d, 0x%x' % (sP[8], sT[2], WHB))
        a('s_lshl1_add_u32 s%d, s%d, s%d' % (sT[0], sW, sT[0]))
        a('v_add_u32 v13, s%d, v0' % sT[0])
        a('v_mov_b32 v148, s%d' % sT[1])
        a('v_cmp_gt_u32 vcc, 2, v0')
        a('v_cndmask_b32 v13, v148, v13, vcc')
        a('v_lshlrev_b32 v13, 7, v13')
        self.w_addr()

    def p1_gemm(self):
        a = self.a
        o = self.o
        ACC, HACC, BB, HB, HA = 32, 96, 120, 176, 200
        HT = [2, 4, 3, 5, 6, 7]
        steps = [(s, i) for s in range(5) for i in range(4)]
        def bread(n, T, h):
            s, i = steps[n]
            a('ds_read_b64_tr_b16 %s, v%d offset:%d' % (R(BB + 4 * T + 2 * h, 2), (152 if T == 4 else 8) + i, 7680 * s + 240 * h + TOFF[T]), 'B%d_%d' % (n, T))
        def hread(s, x, h):
            a('ds_read_b64_tr_b16 %s, v%d offset:%d' % (R(HB + 4 * x + 2 * h, 2), 156 if HT[x] == 4 else 12, 7680 * s + 240 * h + TOFF[HT[x]]), 'HB%d' % s)
        areg = lambda x: 220 + 4 * x if x < 8 else 256 + 4 * (x - 8)
        def aload(x):
            s, i = steps[x >> 1]
            if 'noA1' in o['exp']: return
            self.ld(areg(x), 1024 * s, sP[4 * (x & 1) + i], 'A%d' % x, o['apol'])
        def mm(d, w, act, T, first):
            return self.mfma(d, act, w, first) if T >= 5 else self.mfma(d, w, act, first)
        a('s_mov_b32 s%d, 0x%x' % (sT[0], FX))
        self.stamp('b1i')
        self.poll(13, sT[0], 32)
        self.stamp('gemm0')
        aq = list(range(40))
        for _ in range(o['la1']): aload(aq.pop(0))
        self.ld(HA, 0, sP[8], 'HA0')
        a('s_barrier')
        for T in range(8):
            for h in range(2): bread(0, T, h)
        self.jobflag()
        b1f = lambda x: (lambda: self.b1_one(x, x == o['nb2'], sPROD if x < o['nbn'] else None))
        b1q = list(range(o['nb2'], 38))
        hrd = {1: (0, 0, 6), 3: (1, 0, 3), 4: (1, 3, 6), 6: (2, 0, 3), 7: (2, 3, 6), 9: (3, 0, 3), 10: (3, 3, 6), 12: (4, 0, 6)}
        hmm = {2: 0, 5: 1, 8: 2, 11: 3, 13: 4}
        HOFF = [0, 6144, 38400, 44544]
        for n in range(20):
            s, i = steps[n]
            if n == 6: a.wait_vm('b1_2')
            if n == 9: a.wait_vm('b1_3')
            if n == 12:
                assert not b1q
                a.wait_vm('b1_4')
            if n == 7 and o['nb2'] < 23: a('s_barrier')
            if n == 11:
                a('s_barrier'); self.level = 1
            if n == 15:
                a.wait_lg('hp'); a('s_barrier'); self.level = 2
            vm, ot = [], []
            k = 2 if (b1q and n >= 1) else o['ra1']
            for _ in range(k):
                if aq: vm.append(lambda x=aq.pop(0): aload(x))
            if n >= 1:
                for _ in range(2):
                    if b1q: vm.append(b1f(b1q.pop(0)))
            if 1 <= n < 5: vm.append(lambda: self.ld(HA + 4 * n, 1024 * n, sP[8], 'HA%d' % n))
            if n in hrd:
                hs, x0, x1 = hrd[n]
                ot += [lambda x=x, h=h: hread(hs, x, h) for x in range(x0, x1) for h in range(2)]
            hm = []
            if n in hmm:
                hs = hmm[n]
                hm = [mm(HACC + 4 * x, HB + 4 * x, HA + 4 * hs, HT[x], hs == 0) for x in range(6)]
            if n == 14:
                ot += [lambda: None] * 3 + [lambda x=x: a('ds_write_b128 v4, %s offset:%d' % (R(HACC + 4 * x, 4), 1024 * x), 'hp') for x in range(6)]
                pre = self.p2_pre()
            if n >= 14:
                vm += pre[:3]; pre = pre[3:]
            if n == 15:
                ot += [lambda y=y, p=p: a('ds_read_b128 %s, v%d offset:%d' % (V(HB + 16 * y + 4 * p, 4), 157 + y, HOFF[p]), 'hr') for y in range(2) for p in range(4)]
            if n in (16, 17):
                b = HB + 16 * (n - 16)
                if n == 16: a.wait_lg('hr')
                ot += [lambda e=e, p=p: a('v_add_f32 v%d, v%d, v%d' % (b + 8 * p + e, b + 8 * p + e, b + 8 * p + 4 + e)) for p in range(2) for e in range(4)]
                ot += [lambda e=e: a('v_add_f32 v%d, v%d, v%d' % (b + e, b + e, b + 8 + e)) for e in range(4)]
                ot += [lambda e=e: a('v_cvt_pk_bf16_f32 v%d, v%d, v%d' % (b + e, b + 2 * e, b + 2 * e + 1)) for e in range(2)]
                ot += [lambda: a('ds_write_b64 v%d, %s' % (159 + n - 16, V(b, 2)))]
            if n == o['jfi']: vm.append(lambda: self.jf_issue())
            if n == o['jfc']:
                self.jf_check()
                self.queue_after_jobs()
            vm += self.touches('g%d' % n)
            if n >= o['gp0']:
                vm += [self.pump] * max(0, o['g_pump'] - (len(vm) if n < 14 else 1))
            ngap = 16 + len(hm)
            slots = [[] for _ in range(ngap)]
            for q, f in enumerate(vm): slots[(q * ngap + ngap // 2) // len(vm)].append(f)
            free = [g for g in range(ngap) if not slots[g]]
            if len(free) < len(ot): free = list(range(ngap))
            for q, f in enumerate(ot): slots[free[q * len(free) // len(ot)]].append(f)
            a.wait_vm('A%d' % (2 * n + 1))
            for T in range(8):
                if T % 2 == 0: a.wait_lg('B%d_%d' % (n, T + 1 if T < 6 else T))
                if T == 7: a.wait_lg('B%d_7' % n)
                for t in range(2):
                    a(mm(ACC + 32 * t + 4 * T, BB + 4 * T, areg(2 * n + t), T, n == 0))
                    if T > 0 and n + 1 < 20: bread(n + 1, T - 1, t)
                    if T == 0 and n > 0: bread(n, 7, t)
                    for f in slots.pop(0): f()
                if hm and T >= 2:
                    if T == 2:
                        a.wait_vm('HA%d' % hs); a.wait_lg('HB%d' % hs)
                    a(hm.pop(0))
                    for f in slots.pop(0): f()
            assert not slots and not hm
        assert not aq and not b1q and not pre
        self.stamp('gemm1')

    def p1_attn(self):
        a = self.a
        ACC, S_, P_, X_ = 32, 176, 64, 80
        K = lambda t: 102 + 6 * t
        Vv = lambda y, t: 116 + 6 * y + 2 * t
        Q = lambda t, h: 132 + 8 * t + 4 * h
        np_ = [self.o['at_pump']]
        def pump(k=1):
            k = min(k, np_[0]); np_[0] -= k; self.pump(k)
        def cvt(d, r):
            a('v_cvt_pk_bf16_f32 v%d, v%d, v%d' % (d, r, r + 1))
            a('v_cvt_pk_bf16_f32 v%d, v%d, v%d' % (d + 1, r + 2, r + 3))
        def kv(t):
            r = ACC + 32 * t
            cvt(K(t), r + 8); cvt(K(t) + 4, r + 12)
            cvt(K(t) + 2, r + 16); cvt(148 + 2 * t, r + 16)
            cvt(Vv(0, t), r + 20)
            for e in range(2): a('v_permlane32_swap_b32 v%d, v%d' % (148 + 2 * t + e, K(t) + 2 + e))
            cvt(Vv(1, t), r + 24); cvt(Vv(2, t), r + 28)
        def qq(t):
            r = ACC + 32 * t
            cvt(Q(t, 0), r); cvt(Q(t, 1) + 2, r + 4)
            for e in range(2):
                a('v_cndmask_b32 v%d, 0, v%d, s[%d:%d]' % (Q(t, 0) + 2 + e, 148 + 2 * t + e, sG0, sG0 + 1))
                a('v_cndmask_b32 v%d, 0, v%d, s[%d:%d]' % (Q(t, 1) + e, 148 + 2 * t + e, sG1, sG1 + 1))
        def smm(u, cur):
            t, h = u >> 1, u & 1
            m = 16 if cur else (24 if t == 0 else 20)
            a('v_mfma_f32_16x16x32_bf16 %s, %s, %s, %s' % (V(S_ + 8 * u + 4 * cur, 4), V(K(t - 1 + cur) + 2 * h, 4), V(Q(t, h), 4), V(m, 4)))
        kv(1)
        for x in range(3): a('ds_write_b64 v161, %s offset:%d' % (V(K(1) + 2 * x, 2), 3072 + 512 * x))
        for y in range(3): a('ds_write_b64 v161, %s offset:%d' % (V(Vv(y, 1), 2), 3072 + 1536 + 512 * y))
        for f in self.touches('a0'): f()
        pump(2)
        kv(0)
        self.barrier()
        self.level = 3
        for x in range(3): a('ds_read_b64 %s, v161 offset:%d' % (V(K(-1) + 2 * x, 2), 512 * x), 'ek')
        for y in range(3): a('ds_read_b64 %s, v161 offset:%d' % (V(Vv(y, -1), 2), 1536 + 512 * y), 'ev')
        pump(3)
        qq(1)
        for u in (2, 3): smm(u, 0); smm(u, 1)
        qq(0)
        pump(2)
        for u in (0, 1): smm(u, 1)
        a.wait_lg('ek')
        for u in (0, 1): smm(u, 0)
        self.stamp('S')
        cs = LOG2E / math.sqrt(20.0)
        a('s_mov_b32 s%d, 0x%x' % (sT[1], f2u(cs)))
        sv = lambda u, i: X_ + 2 * u + i
        M = X_ + 8
        for u in (2, 3, 0, 1):
            b = S_ + 8 * u
            for i in range(2): a('v_max3_f32 v%d, v%d, v%d, v%d' % (sv(u, i), b + 2 * i, b + 2 * i + 1, b + 4 + 2 * i))
            for i in range(2): a('v_max_f32 v%d, v%d, v%d' % (sv(u, i), sv(u, i), b + 5 + 2 * i))
            a('v_max_f32 v%d, v%d, v%d' % (M + u, sv(u, 0), sv(u, 1)))
            pump(1)
        def allred(op, mid):
            a('v_permlane32_swap_b32 v%d, v%d' % (M, M + 2))
            a('v_permlane32_swap_b32 v%d, v%d' % (M + 1, M + 3))
            pump(1)
            a('%s v%d, v%d, v%d' % (op, M, M, M + 2))
            a('%s v%d, v%d, v%d' % (op, M + 1, M + 1, M + 3))
            pump(1)
            a('v_permlane16_swap_b32 v%d, v%d' % (M, M + 1))
            a('%s v%d, v%d, v%d' % (op, M, M, M + 1))
            a(mid % (M + 1, M)); a(mid % (M + 2, M)); a(mid % (M + 3, M)); a(mid % (M, M))
            pump(1)
            a('v_permlane16_swap_b32 v%d, v%d' % (M + 2, M + 3))
            a('v_permlane16_swap_b32 v%d, v%d' % (M, M + 1))
            pump(1)
            a('v_permlane32_swap_b32 v%d, v%d' % (M, M + 2))
            a('v_permlane32_swap_b32 v%d, v%d' % (M + 1, M + 3))
        allred('v_max_f32', 'v_mul_f32 v%%d, s%d, v%%d' % sT[1])
        for u in range(4):
            for i in range(2): a('v_fma_f32 v%d, v%d, s%d, -v%d' % (sv(u, i), sv(u, i), sT[1], M + u))
        for u in range(4):
            for i in range(2): a('v_exp_f32 v%d, v%d' % (sv(u, i), sv(u, i)))
        for u in range(4): a('v_add_f32 v%d, v%d, v%d' % (M + u, sv(u, 0), sv(u, 1)))
        allred('v_add_f32', 'v_rcp_f32 v%d, v%d')
        a.wait_lg('ev')
        for u in range(4):
            t, h = u >> 1, u & 1
            for i in range(2): a('v_mul_f32 v%d, v%d, v%d' % (sv(u, i), sv(u, i), M + u))
            for i in range(2): a('v_cvt_pk_bf16_f32 v%d, v%d, v%d' % (sv(u, i), sv(u, i), sv(u, i)))
            for x in range(4): a('v_bfi_b32 v%d, v%d, 0, v%d' % (P_ + 4 * u + x, 28 + x, sv(u, x & 1)))
            if u > 0: self.pv(u - 1)
        self.pv(3)
        O = S_
        for t in range(2):
            cvt(O + 4 * t, ACC + 16 * t); cvt(O + 4 * t + 2, ACC + 16 * t + 8)
            cvt(O + 8 + 2 * t, ACC + 16 * t + 4); cvt(O + 12, ACC + 16 * t + 12)
            for e in range(2): a('v_permlane16_swap_b32 v%d, v%d' % (O + 4 * t + e, O + 4 * t + 2 + e))
            for e in range(2): a('v_cndmask_b32 v%d, v%d, v%d, s[%d:%d]' % (O + 8 + 2 * t + e, O + 8 + 2 * t + e, O + 12 + e, sG1, sG1 + 1))
        a('s_add_u32 s%d, s%d, 20480' % (sT[0], sP[9]))
        for e in range(2): a('v_permlane32_swap_b32 v%d, v%d' % (O + 8 + e, O + 10 + e))
        self.st2(['buffer_store_dwordx4 %s, v162, s[%d:%d], s%d offen' % (V(O, 4), SW, SW + 3, sP[9]),
                  'buffer_store_dwordx4 %s, v162, s[%d:%d], s%d offen' % (V(O + 4, 4), SW, SW + 3, sT[0]),
                  'buffer_store_dwordx2 %s, v163, s[%d:%d], s%d offen offset:512' % (V(O + 8, 2), SW, SW + 3, sP[9])], 'ost')
        self.stamp('attn')

    def pv(self, u):
        t, h = u >> 1, u & 1
        for x, y in enumerate((h, 2)):
            self.a('v_mfma_f32_16x16x32_bf16 %s, %s, %s, 0' % (V(32 + 8 * u + 4 * x, 4), V(114 + 6 * y + 2 * t, 4), V(64 + 4 * u, 4)))

    def finish(self):
        a = self.a
        D = a.newlabel('ep')
        a('s_or_b32 s%d, s2, s%d' % (sT[0], sW))
        a('s_cmp_lg_u32 s%d, 0' % sT[0])
        a('s_cbranch_scc1 %s' % D)
        a('v_mov_b32 v14, s%d' % sTAG)
        self.exec_(1, 0)
        a('buffer_store_dword v14, off, s[%d:%d], 0 sc1' % (SW, SW + 3))
        self.exec_all()
        a.label(D)
        if self.stamps:
            a.wait_vm()
            self.stamp('end')
            a('v_writelane_b32 v15, s%d, 63' % sFAIL)
            a('v_writelane_b32 v15, s%d, 62' % sSLOW)
            a('s_lshl_b32 s%d, s2, 2' % sT[0])
            a('s_add_u32 s%d, s%d, s%d' % (sT[0], sT[0], sW))
            a('s_lshl_b32 s%d, s%d, 8' % (sT[0], sT[0]))
            a('s_add_u32 s%d, s%d, 0x%x' % (sT[0], sT[0], DBG))
            a('v_lshlrev_b32 v14, 2, v0')
            if not self.o.get('nodbg'): a('buffer_store_dword v15, v14, s[%d:%d], s%d offen sc0 sc1' % (SW, SW + 3, sT[0]))
            amp = self.o.get('amp', 0)
            if amp:
                L, E = a.newlabel('amp'), a.newlabel('ampe')
                a('v_readlane_b32 s%d, v15, 0' % sT[2])
                a('v_readlane_b32 s%d, v15, %d' % (sT[3], amp))
                a('v_readlane_b32 s%d, v15, %d' % (sT[4], self.nst - 1))
                if amp == 40:
                    a('v_readlane_b32 s%d, v15, 40' % sT[2])
                    a('v_readlane_b32 s%d, v15, 0' % sT[3])
                if amp == 41:
                    R = a.newlabel('rr')
                    a('s_mov_b32 s%d, 40' % sCNT)
                    a.label(R)
                    a('s_mov_b32 s%d, 0x%x' % (sT[5], DBG))
                    a('buffer_load_dword v12, v14, s[%d:%d], s%d offen sc0 sc1' % (SW, SW + 3, sT[5]))
                    a('s_waitcnt vmcnt(0)')
                    a('s_sub_u32 s%d, s%d, 1' % (sCNT, sCNT))
                    a('s_cmp_lg_u32 s%d, 0' % sCNT)
                    a('s_cbranch_scc1 %s' % R)
                    a('v_readlane_b32 s%d, v12, 40' % sT[2])
                    a('v_readlane_b32 s%d, v15, 40' % sT[3])
                    a('s_sub_u32 s%d, s%d, 1000' % (sT[2], sT[2]))
                a('s_cmp_eq_u32 s%d, 0' % sT[3])
                a('s_cbranch_scc1 %s' % E)
                a('s_sub_u32 s%d, s%d, s%d' % (sT[3], sT[3], sT[2]))
                a('s_min_u32 s%d, s%d, 6000' % (sT[3], sT[3]))
                a('s_lshl_b32 s%d, s%d, 2' % (sT[3], sT[3]))
                a('s_mov_b32 s%d, 0x100000' % sCNT)
                a.label(L)
                a('s_memrealtime s[98:99]')
                a('s_waitcnt lgkmcnt(0)')
                a('s_sub_u32 s%d, s%d, 1' % (sCNT, sCNT))
                a('s_cmp_eq_u32 s%d, 0' % sCNT)
                a('s_cbranch_scc1 %s' % E)
                a('s_sub_u32 s%d, s98, s%d' % (sT[5], sT[4]))
                a('s_cmp_lt_u32 s%d, s%d' % (sT[5], sT[3]))
                a('s_cbranch_scc1 %s' % L)
                a.label(E)
            hd = self.o.get('hd', 0)
            if hd:
                a('s_load_dwordx2 s[%d:%d], s[0:1], 72' % (sT[0], sT[1]))
                a.wait_lg()
                self.srd(SJ, sT[0], 64)
                sh = 0 if hd in (1, 3) else 11
                a('v_subrev_u32 v13, %d, v0' % sh)
                a('v_max_i32 v13, 0, v13')
                a('v_lshlrev_b32 v13, 2, v13')
                if hd in (1, 2):
                    a('v_not_b32 v12, v15')
                    a('v_cmp_eq_u32 vcc, 0, v0')
                    a('v_cndmask_b32 v12, v15, v12, vcc')
                    op = 'umax'
                else:
                    a('v_readlane_b32 s%d, v15, 0' % sT[2])
                    a('v_subrev_u32 v12, s%d, v15' % sT[2])
                    a('v_cmp_eq_u32 vcc, 0, v15')
                    a('v_cndmask_b32 v12, v12, 0, vcc') if 0 else a('v_cndmask_b32 v12, v12, v15, vcc')
                    op = 'add'
                self.exec_('0xffff' if sh == 0 else '0x%x' % (1 | (0x7fff << 12)), 0)
                a('buffer_atomic_%s v12, v13, s[%d:%d], 0 offen' % (op, SJ, SJ + 3))
                self.exec_all()
        a.label('L_end')
        a('s_endpgm')
        for c in self.cold: c()
        a.label('CODE_END')
        a('s_endpgm')

from gen2 import add_phases
add_phases(Gen, globals())

def build(stamps=False, opt=None):
    g = Gen(stamps, opt)
    g.run()
    body = g.a.finish()
    hdr = '''; fused adaLN block: persistent single launch, 256 workgroups (one per CU)
; @launch grid=(256,1,1) block=(256,1,1) lds=163840
.amdgcn_target "amdgcn-amd-amdhsa--gfx950"
.text
.globl {n}_kernel
.p2align 8
.type {n}_kernel,@function
{n}_kernel:
'''.format(n=NAME)
    tail = '''
.section .rodata,"a"
.p2align 6
.amdhsa_kernel {n}_kernel
  .amdhsa_next_free_vgpr 512
  .amdhsa_next_free_sgpr 102
  .amdhsa_accum_offset 256
  .amdhsa_group_segment_fixed_size 0
  .amdhsa_kernarg_size 88
  .amdhsa_user_sgpr_count 2
  .amdhsa_user_sgpr_kernarg_segment_ptr 1
  .amdhsa_system_sgpr_workgroup_id_x 1
.end_amdhsa_kernel
'''.format(n=NAME)
    return hdr + body + tail, g

def parse(kvs):
    o = {}
    for kv in kvs:
        k, v = kv.split('=', 1)
        o[k] = int(v) if v.lstrip('-').isdigit() else v.replace('+', ' ')
    return o

if __name__ == '__main__':
    if len(sys.argv) > 2 and sys.argv[1] == 'var':
        o = parse(sys.argv[3:])
        txt, g = build(True, o)
        open('v_%s.s' % sys.argv[2], 'w').write(txt)
        open('v_%s.names' % sys.argv[2], 'w').write('\n'.join(g.names))
        txt, g = build(False, o)
        open('p_%s.s' % sys.argv[2], 'w').write(txt)
    else:
        out = 'cdna_kernels/%s.s' % NAME
        txt, g = build(False)
        open(out, 'w').write(txt)
        print('written', out, len(txt), 'bytes; nops', g.a.npad)
```

```python
import sys, os, math
sys.path.insert(0, os.path.dirname(os.path.abspath(__file__)))
from asmlib import *

NAME = 'adaLN_cond__sliding_local_dilated__dense_activation_silu__prompt'

JF   = 0x1000
CF   = 0x60000
FO   = 0x2000
FY   = 0xA000
FH   = 0x12000
FX   = 0x1A000
XI   = 0x22000
MODP = 0x24000
ST   = 0x40000
W2T  = 0x80000
W4T  = W2T + 819200
WO_  = W4T + 1966080
WY   = WO_ + 2621440
WH   = WY + 2621440
WHB  = WH + 6291456
W1C  = WHB + 2621440
DBG  = W1C + 2457600 + 256
WSZ  = DBG + 1024 * 256

RGN   = 38400
SPARE = 153600
HST   = SPARE + 8192
MRED  = SPARE + 8704
HP    = 76800
EX    = 76800 + 12288
RED   = 92160
X1S   = 122880
UT    = 143360
GA_, C2F, GB_, C2B, S2B = SPARE, SPARE + 2560, SPARE + 5120, SPARE + 7680, SPARE + 8960
TOFF = [0, 48, 80, 128, 32, 160, 208, 192]

sW, sC, sJ, sTAG, sCI = 3, 4, 5, 6, 7
pX, pQ, pWO, pW1, pW2, pC, pWM, pOUT, pWS = 8, 10, 12, 16, 18, 20, 22, 24, 28
SX, SQ, SW, SO, S1, SJ = 32, 36, 40, 44, 48, 52
sRG, sCG = 30, 31
sP = [56, 57, 58, 59, 60, 61, 62, 63, 64, 65, 66, 67]
sB3M, sB4O = 68, 69
sG0, sG1 = 70, 72
jD = [74, 75, 76]; jS = [77, 78, 79]
sJ0, sJ1 = 100, 101
sTQ = 100
sNM = 80
sMO = 81
sRB = 82
sXO = 83
sB1 = 84
sPROD = 85
sT = [86, 87, 88, 89, 90, 91, 92, 93]
sCNT = 94
sONE = 95
sHI = 96
sFAIL = 97
sSLOW = 14
sN = 15
sTILE = 26
sSL2 = 27

LOG2E = 1.4426950408889634
def f2u(x):
    import struct
    return struct.unpack('<I', struct.pack('<f', x))[0]

DEF = dict(bpol='sc1', jpol='nt', hpol='', fast=0, cwarm=1, wpol='sc1', w1pol='', apol='sc1', spol='', touch=0, early=3, mw=1, lin=1, gp0=12, t2='x', t3a='x', t3b='x', t4a='x', t4b='x', fine=0, exp='',
           nb1=4, nb2=30, nbn=38, cpol='', ra1=4, la1=10, jfi=9, jfc=12, g_pump=4, at_pump=21,
           la2=12, la3=12, la4=12, ra3=3, o_pre=0, p2_pump=10, y_pre=0, p3_pump=60, h_pre=0)

class Gen:
    def __init__(self, stamps=False, opt=None):
        self.a = Asm()
        self.stamps = stamps
        self.o = dict(DEF); self.o.update(opt or {})
        self.nst = 0
        self.fq = []
        self.cold = []
        self.level = 0

    def stamp(self, name, idx=None):
        if not self.stamps: return
        a = self.a
        idx = self.nst if idx is None else idx
        a.c('stamp %d %s' % (idx, name))
        if name == 'karg':
            a.wait_lg()
            a('v_writelane_b32 v15, s98, 40')
        a('s_memrealtime s[98:99]')
        a.wait_lg()
        a('v_writelane_b32 v15, s98, %d' % idx)
        if name == 'gemm0' and self.o.get('amp', 0) in (42, 43):
            a('s_mov_b32 s98, 0x%x' % (DBG - 256))
            a('s_or_b32 s99, s2, s%d' % sW)
            a('s_cmp_eq_u32 s99, 0')
            a('s_cselect_b32 exec_hi, 256, 0')
            a('s_mov_b32 exec_lo, 0')
            a('buffer_store_dword v15, off, s[%d:%d], s98 sc0 sc1' % (SW, SW + 3))
            a('s_mov_b64 exec, -1')
        if idx >= self.nst:
            self.names = getattr(self, 'names', []) + [name]
            self.nst = idx + 1

    def srd(self, d, p, n):
        a = self.a
        a('s_mov_b32 s%d, s%d' % (d, p))
        a('s_and_b32 s%d, s%d, 0xffff' % (d + 1, p + 1))
        a('s_mov_b32 s%d, %d' % (d + 2, n))
        a('s_mov_b32 s%d, 0x20000' % (d + 3))

    def exec_(self, lo, hi):
        self.a('s_mov_b32 exec_lo, %s' % lo)
        self.a('s_mov_b32 exec_hi, %s' % hi)
    def exec_all(self):
        self.a('s_mov_b64 exec, -1')

    def barrier(self):
        self.a.wait_lg()
        self.a('s_barrier')

    def rowsum(self, regs, tmp):
        a = self.a
        for sw in ('v_permlane32_swap_b32', 'v_permlane16_swap_b32'):
            for i, r in enumerate(regs): a('v_mov_b32 v%d, v%d' % (tmp + i, r))
            for i, r in enumerate(regs): a('%s v%d, v%d' % (sw, r, tmp + i))
            for i, r in enumerate(regs): a('v_add_f32 v%d, v%d, v%d' % (r, r, tmp + i))

    def finstats(self, s1, s2, t):
        a = self.a
        a('v_mul_f32 v%d, 0x%x, v%d' % (s1, f2u(1 / 640), s1))
        a('v_mul_f32 v%d, v%d, v%d' % (t, s1, s1))
        a('v_fma_f32 v%d, v%d, s%d, -v%d' % (s2, s2, sT[7], t))
        a('v_max_f32 v%d, 0, v%d' % (s2, s2))
        a('v_add_f32 v%d, 0x%x, v%d' % (s2, f2u(1e-5), s2))
        a('v_rsq_f32 v%d, v%d' % (s2, s2))

    def poll(self, vaddr, soff, vt):
        a = self.a
        L, D = a.newlabel('poll'), a.newlabel('pdone')
        a('s_mov_b32 s%d, 0x8000' % sCNT)
        a.label(L)
        a('buffer_load_dword v%d, v%d, s[%d:%d], s%d offen sc1' % (vt, vaddr, SW, SW + 3, soff))
        a.wait_vm()
        a('v_cmp_ne_u32 vcc, s%d, v%d' % (sTAG, vt))
        a('s_cbranch_vccz %s' % D)
        a('s_sub_u32 s%d, s%d, 1' % (sCNT, sCNT))
        a('s_cmp_lg_u32 s%d, 0' % sCNT)
        a('s_cbranch_scc1 %s' % L)
        a.label(D)

    def mod_issue(self, vecs, r0, vaddr, tag, NP=2):
        a = self.a
        for i, vec in enumerate(vecs):
            for p in range(NP):
                a('s_mov_b32 s%d, 0x%x' % (sT[0], MODP + p * 15360 + vec * 2560))
                a('buffer_load_dwordx4 %s, v%d, s[%d:%d], s%d offen sc1' % (V(r0 + 4 * NP * i + 4 * p, 4), vaddr, SW, SW + 3, sT[0]), tag)

    def mod_check(self, vecs, r0, vaddr, tag, t, NP=2):
        a = self.a
        L, C, D = a.newlabel('mchk'), a.newlabel('mcold'), a.newlabel('mok')
        N = 4 * NP * len(vecs)
        a('s_mov_b32 s%d, 0x8000' % sCNT)
        for e in range(4): a('s_bfe_u32 s%d, s%d, 0x%x' % (sT[1 + e], sTAG, 0x80000 + 8 * e))
        a.wait_vm(tag)
        a.label(L)
        for x in range(N):
            a('v_xor_b32 v%d, s%d, v%d' % (r0 + x, sT[1 + (x & 3)], r0 + x))
            if x == 1: a('v_or_b32 v%d, v%d, v%d' % (t, r0, r0 + 1))
            elif x & 1: a('v_or3_b32 v%d, v%d, v%d, v%d' % (t, t, r0 + x - 1, r0 + x))
        a('v_cmp_ne_u32_sdwa vcc, v%d, v%d src0_sel:BYTE_0 src1_sel:BYTE_3' % (t, 0))
        a('s_cbranch_vccnz %s' % C)
        a.label(D)
        def cold():
            a.label(C)
            a('s_add_u32 s%d, s%d, 1' % (sFAIL, sFAIL))
            a('s_sub_u32 s%d, s%d, 1' % (sCNT, sCNT))
            a('s_cmp_eq_u32 s%d, 0' % sCNT)
            a('s_cbranch_scc1 %s' % D)
            self.mod_issue(vecs, r0, vaddr, None, NP)
            a('s_waitcnt vmcnt(0)')
            a('s_branch %s' % L)
        self.cold.append(cold)
        for p in range(1, NP):
            for i in range(len(vecs)):
                r = r0 + 4 * NP * i
                for e in (0, 2): a('v_pk_add_f32 %s, %s, %s' % (V(r + e, 2), V(r + e, 2), V(r + 4 * p + e, 2)))
        for i in range(len(vecs)):
            r = r0 + 4 * NP * i
            a('v_cvt_pk_bf16_f32 v%d, v%d, v%d' % (r, r, r + 1))
            a('v_cvt_pk_bf16_f32 v%d, v%d, v%d' % (r + 1, r + 2, r + 3))

    def unpack4(self, d, s):
        a = self.a
        a('v_lshlrev_b32 v%d, 16, v%d' % (d, s))
        a('v_and_b32 v%d, s%d, v%d' % (d + 1, sHI, s))
        a('v_lshlrev_b32 v%d, 16, v%d' % (d + 2, s + 1))
        a('v_and_b32 v%d, s%d, v%d' % (d + 3, sHI, s + 1))

    def plus1(self, r):
        a = self.a
        self.unpack4(r + 4, r)
        for e in range(4): a('v_add_f32 v%d, 1.0, v%d' % (r + 4 + e, r + 4 + e))
        a('v_cvt_pk_bf16_f32 v%d, v%d, v%d' % (r, r + 4, r + 5))
        a('v_cvt_pk_bf16_f32 v%d, v%d, v%d' % (r + 1, r + 6, r + 7))

    def mfma(self, d, wa, act, first=False):
        c = '0' if first else R(d, 4)
        return 'v_mfma_f32_16x16x32_bf16 %s, %s, %s, %s' % (R(d, 4), R(wa, 4), R(act, 4), c)

    def pump(self, k=1):
        while k > 0 and self.fq and self.fq[0][0] <= self.level:
            self.fq.pop(0)[1]()
            k -= 1
    def flush(self, name):
        while any(e[2] == name for e in self.fq):
            assert self.fq[0][0] <= self.level
            self.fq.pop(0)[1]()

    def st2(self, texts, tag=None, sl=None):
        a = self.a
        if not self.o['fast']:
            for t in texts:
                if t.startswith('buffer'): a(t + ' sc1', tag)
                else: a(t)
            return
        Ls, Ld = a.newlabel('slow'), a.newlabel('sdone')
        a('s_cmp_lg_u32 s%d, 0' % (sSLOW if sl is None else sl))
        a('s_cbranch_scc1 %s' % Ls)
        for t in texts: a(t + (' ' + self.o['spol'] if t.startswith('buffer') else ''), tag)
        a.label(Ld)
        def cold():
            a.label(Ls)
            a('s_nop 4')
            for t in texts: a.items.append(Ins(t + (' sc1' if t.startswith('buffer') else '')))
            a('s_nop 1')
            a('s_branch %s' % Ld)
        self.cold.append(cold)

    def flagstore(self, soff, sl=None):
        a = self.a
        D = a.newlabel('pub')
        a('s_cmp_lg_u32 s%d, 0' % sW)
        a('s_cbranch_scc1 %s' % D)
        a('v_mov_b32 v14, s%d' % sTAG)
        self.exec_(1, 0)
        save = list(a.vm)
        self.st2(['buffer_store_dword v14, off, s[%d:%d], s%d' % (SW, SW + 3, soff)], None, sl)
        a.vm = save
        self.exec_all()
        a.label(D)

    def publish(self, base, tag=None, touch=None):
        a = self.a
        a('s_lshl_b32 s%d, s%d, 7' % (sT[0], sCI))
        a('s_add_u32 s%d, s%d, 0x%x' % (sT[0], sT[0], base))
        if touch and self.o['touch']: touch[0]()
        a.wait_vm(tag)
        if touch and self.o['touch']: touch[1]()
        self.barrier()
        self.flagstore(sT[0])

    def xi_issue(self, tag):
        a = self.a
        a('s_lshl_b32 s%d, s%d, 7' % (sT[0], sC))
        a('s_add_u32 s%d, s%d, 0x%x' % (sT[0], sT[0], XI))
        a('v_lshlrev_b32 v32, 2, v2')
        a('buffer_load_dword v33, v32, s[%d:%d], s%d offen sc1' % (SW, SW + 3, sT[0]), tag)
    def xi_check(self, tag):
        a = self.a
        L, D = a.newlabel('xi'), a.newlabel('xiok')
        a.wait_vm(tag)
        a('s_mov_b32 s%d, 0x8000' % sCNT)
        a.label(L)
        a('v_subrev_u32 v33, s%d, v33' % sTAG)
        a('v_cmp_lt_u32 vcc, 15, v33')
        a('s_cbranch_vccz %s' % D)
        a('s_sub_u32 s%d, s%d, 1' % (sCNT, sCNT))
        a('s_cmp_eq_u32 s%d, 0' % sCNT)
        a('s_cbranch_scc1 %s' % D)
        save = list(a.vm)
        self.xi_issue(None)
        a('s_waitcnt vmcnt(0)')
        a.vm = save
        a('s_branch %s' % L)
        a.label(D)
        a('v_readfirstlane_b32 s%d, v33' % sT[0])
        a('v_cmp_ne_u32 vcc, s%d, v33' % sT[0])
        a('s_or_b32 s%d, vcc_lo, vcc_hi' % sSLOW)

    def b1_one(self, x, force=False, mask=None):
        a = self.a
        if force or x % 4 == 0:
            a('s_add_u32 m0, s%d, %d' % (sRB, 4096 * (x // 4)))
            a('s_add_u32 s%d, s%d, %d' % (sT[7], sB1, 4096 * (x // 4)))
        if mask is not None: a('s_mov_b32 exec_lo, s%d' % mask)
        if x == 37: a('s_mov_b32 exec_hi, 0')
        elif mask is not None: a('s_mov_b32 exec_hi, s%d' % mask)
        a('buffer_load_dwordx4 v1, s[%d:%d], s%d offen offset:%d %s lds' % (SW, SW + 3, sT[7], 1024 * (x & 3), self.o['bpol']), 'b1_%d' % (2 * x // 15))
        if x == 37 or mask is not None: self.exec_all()
    def b1_issue(self, x0, x1):
        for x in range(x0, x1): self.b1_one(x, x == x0)

    def xi_publish(self):
        a = self.a
        a.wait_lg()
        a('s_add_u32 s%d, s%d, 0x9e3779b9' % (sTAG, sTAG))
        a('s_getreg_b32 s%d, hwreg(HW_REG_XCC_ID, 0, 4)' % sT[1])
        a('s_add_u32 s%d, s%d, s%d' % (sT[1], sT[1], sTAG))
        a('v_mov_b32 v14, s%d' % sT[1])
        a('s_lshl_b32 s%d, s%d, 7' % (sT[0], sC))
        a('s_lshl2_add_u32 s%d, s%d, s%d' % (sT[0], sJ, sT[0]))
        a('s_add_u32 s%d, s%d, 0x%x' % (sT[0], sT[0], XI))
        a('s_cmp_eq_u32 s%d, 0' % sW)
        a('s_cselect_b32 exec_lo, 1, 0')
        a('s_mov_b32 exec_hi, 0')
        a('buffer_store_dword v14, off, s[%d:%d], s%d sc1' % (SW, SW + 3, sT[0]))
        self.exec_all()

    def prologue(self):
        a = self.a
        a('s_cmp_ge_u32 s2, 256')
        a('s_cbranch_scc1 L_end')
        if self.stamps: a('s_memrealtime s[98:99]')
        a('s_load_dwordx16 s[8:23], s[0:1], 0')
        a('s_load_dwordx4 s[24:27], s[0:1], 64')
        a('s_load_dwordx2 s[28:29], s[0:1], 80')
        if self.o['cwarm']:
            a('s_getpc_b64 s[%d:%d]' % (SJ, SJ + 1))
            a('s_and_b32 s%d, s%d, 0xffff' % (SJ + 1, SJ + 1))
            a('s_mov_b32 s%d, CODE_END-%s_kernel-64' % (SJ + 2, NAME))
            a('s_mov_b32 s%d, 0x20000' % (SJ + 3))
            a('s_bfe_u32 s%d, s2, 0x10003' % sT[0])
            a('s_lshl_b32 s%d, s%d, 15' % (sT[0], sT[0]))
            a('v_lshl_add_u32 v1, v0, 7, s%d' % sT[0])
            a('buffer_load_dword v255, v1, s[%d:%d], 0 offen' % (SJ, SJ + 3), 'cw')
        a('v_lshrrev_b32 v1, 6, v0')
        a('v_and_b32 v0, 63, v0')
        a('v_readfirstlane_b32 s%d, v1' % sW)
        a('v_lshlrev_b32 v1, 4, v0')
        if self.stamps: a('v_mov_b32 v15, 0')
        a('s_mov_b32 s%d, 0' % sFAIL)
        a('s_and_b32 s%d, s2, 7' % sT[0])
        a('s_lshr_b32 s%d, s2, 7' % sT[1])
        a('s_lshl1_add_u32 s%d, s%d, s%d' % (sC, sT[0], sT[1]))
        a('s_bfe_u32 s%d, s2, 0x40003' % sJ)
        a('s_lshl4_add_u32 s%d, s%d, s%d' % (sCI, sC, sJ))
        a('s_lshr_b32 s%d, s%d, 3' % (sRG, sJ))
        a('s_and_b32 s%d, s%d, 7' % (sCG, sJ))
        a('s_mov_b32 s%d, 0x3f803f80' % sONE)
        a('s_mov_b32 s%d, 0xffff0000' % sHI)
        a('s_mul_i32 s%d, s%d, %d' % (sRB, sW, RGN))
        a('s_mul_i32 s%d, s%d, 153600' % (sB1, sJ))
        a('s_add_u32 s%d, s%d, s%d' % (sB1, sB1, sRB))
        a('s_add_u32 s%d, s%d, 0x%x' % (sB1, sB1, W1C))
        a('v_and_b32 v2, 15, v0')
        a('v_lshrrev_b32 v3, 4, v0')
        a('v_lshrrev_b32 v36, 5, v0')
        a('v_bfe_u32 v37, v0, 3, 2')
        a('v_lshl_add_u32 v36, v36, 3, v37')
        a('v_and_b32 v37, 0x70, v1')
        a('v_mul_u32_u24 v38, 7680, v36')
        a('v_add_u32 v38, v38, v37')
        a('v_mul_u32_u24 v39, 1280, v36')
        a('v_add_u32 v39, v39, v37')
        a('v_lshlrev_b32 v41, 2, v0')
        a('v_mul_u32_u24 v6, 52, v0')
        a('v_lshrrev_b32 v6, 8, v6')
        a('v_mul_u32_u24 v6, 1200, v6')
        a('v_add_u32 v6, v6, v1')
        a('v_mul_u32_u24 v43, 1280, v2')
        a('v_lshl_add_u32 v43, v3, 4, v43')
        a('s_lshr_b32 s%d, s%d, 1' % (sT[2], sJ))
        a('s_lshl3_add_u32 s%d, s%d, s%d' % (sT[3], sT[1], sT[2]))
        a('s_lshl3_add_u32 s%d, s%d, s%d' % (sT[3], sT[3], sT[0]))
        a('s_lshl3_add_u32 s%d, s%d, s%d' % (sXO, sC, sT[2]))
        a('s_xor_b32 s%d, s%d, s%d' % (sT[1], sT[1], sJ))
        a('s_and_b32 s%d, s%d, 1' % (sT[1], sT[1]))
        a('s_sub_u32 s%d, 0, s%d' % (sPROD, sT[1]))
        Lp, Ld = a.newlabel('prod'), a.newlabel('join')
        a('s_cbranch_scc1 %s' % Lp)
        save = (list(a.vm), list(a.lg))
        self.plain()
        a('s_branch %s' % Ld)
        a.vm, a.lg = save
        a.label(Lp)
        self.producer()
        a.label(Ld)

    def staging(self):
        a = self.a
        a('s_lshl_b32 s%d, s%d, 11' % (sT[0], sW))
        a('s_add_u32 s%d, s%d, %d' % (sT[0], sT[0], SPARE))
        a('v_and_b32 v42, 0x30, v0')
        a('v_lshlrev_b32 v42, 1, v42')
        a('v_xor_b32 v42, v42, v1')
        a('v_add_u32 v42, s%d, v42' % sT[0])
        a('v_lshrrev_b32 v140, 2, v0')
        a('v_and_b32 v141, 6, v140')
        a('v_lshlrev_b32 v141, 4, v141')
        a('v_lshl_add_u32 v140, v140, 7, v141')
        a('v_and_b32 v141, 3, v0')
        a('v_lshl_add_u32 v140, v141, 3, v140')
        a('v_add_u32 v140, s%d, v140' % sT[0])
        for T in range(1, 4): a('v_xor_b32 v%d, %d, v140' % (140 + T, 32 * T))
        a('v_add_u32 v41, s%d, v41' % sT[0])
        a('v_lshl_add_u32 v45, v3, 4, s%d' % sT[0])
        a('v_lshl_add_u32 v145, v3, 6, s%d' % sT[0])
        a('s_lshl_b32 s%d, s%d, 8' % (sT[0], sW))
        a('s_add_u32 s%d, s%d, %d' % (sT[0], sT[0], MRED))
        a('v_lshl_add_u32 v144, v3, 4, s%d' % sT[0])
        a('v_lshlrev_b32 v146, 4, v2')
        a('v_add_u32 v147, %d, v146' % MRED)
    def silu(self, nu):
        a = self.a
        a.wait_vm('c')
        a('v_lshlrev_b32 v46, 16, v44')
        a('v_and_b32 v47, s%d, v44' % sHI)
        for r in (46, 47): a('v_mul_f32 v%d, 0x%x, v%d' % (r + 2, f2u(-LOG2E), r))
        for r in (46, 47): a('v_exp_f32 v%d, v%d' % (r + 2, r + 2))
        for r in (46, 47): a('v_add_f32 v%d, 1.0, v%d' % (r + 2, r + 2))
        for r in (46, 47): a('v_rcp_f32 v%d, v%d' % (r + 2, r + 2))
        for r in (46, 47): a('v_mul_f32 v%d, v%d, v%d' % (r, r, r + 2))
        a('v_cvt_pk_bf16_f32 v44, v46, v47')
        a('ds_write_b32 v41, v44')
        for u in range(nu):
            a('ds_read_b128 %s, v45 offset:%d' % (V(128 + 4 * u, 4), 64 * u), 'silu')
    def mod_write(self):
        a = self.a
        self.exec_('0x00010001', '0x00010001')
        a('s_nop 6')
        for T in range(4): a('ds_write_b128 v144, %s offset:%d' % (V(60 + 4 * T, 4), 64 * T))
        self.exec_all()
    def mod_publish(self):
        a = self.a
        MA = 60
        Ld = a.newlabel('nomod')
        a('s_cmp_eq_u32 s%d, 0' % sNM)
        a('s_cselect_b32 s%d, 1, s%d' % (sT[5], sW))
        a('s_cmp_lg_u32 s%d, 0' % sT[5])
        a('s_cbranch_scc1 %s' % Ld)
        for i in range(4): a('ds_read_b128 %s, v147 offset:%d' % (V(MA + 4 * i, 4), 256 * i))
        a('s_mov_b32 s%d, 0xffffff00' % sT[0])
        for e in range(4): a('s_bfe_u32 s%d, s%d, 0x%x' % (sT[1 + e], sTAG, 0x80000 + 8 * e))
        a.wait_lg()
        for hh in (0, 2):
            a('v_pk_add_f32 %s, %s, %s' % (V(MA + hh, 2), V(MA + hh, 2), V(MA + 4 + hh, 2)))
            a('v_pk_add_f32 %s, %s, %s' % (V(MA + 8 + hh, 2), V(MA + 8 + hh, 2), V(MA + 12 + hh, 2)))
        for hh in (0, 2):
            a('v_pk_add_f32 %s, %s, %s' % (V(MA + hh, 2), V(MA + hh, 2), V(MA + 8 + hh, 2)))
        for e in range(4): a('v_and_b32 v%d, s%d, v%d' % (MA + e, sT[0], MA + e))
        for e in range(4): a('v_or_b32 v%d, s%d, v%d' % (MA + e, sT[1 + e], MA + e))
        a('s_mov_b64 exec, 0xffff')
        a.items.append(Ins('buffer_store_dwordx4 %s, v146, s[%d:%d], s%d offen sc1' % (V(MA, 4), SW, SW + 3, sMO)))
        self.exec_all()
        a.label(Ld)
    def cf_addr(self):
        a = self.a
        a('s_lshl2_add_u32 s%d, s%d, s%d' % (sT[6], sJ, sW))
        a('s_lshl_b32 s%d, s%d, 10' % (sT[6], sT[6]))
        a('s_add_u32 s%d, s%d, 0x%x' % (sT[6], sT[6], CF))
        a('v_and_b32 v50, 7, v0')
        a('v_lshlrev_b32 v50, 7, v50')

    def plain(self):
        a = self.a
        a('s_mul_i32 s%d, s%d, 205' % (sT[0], sT[3]))
        a('s_lshr_b32 s%d, s%d, 10' % (sT[0], sT[0]))
        a('s_mul_i32 s%d, s%d, 5' % (sT[1], sT[0]))
        a('s_sub_u32 s%d, s%d, s%d' % (sT[1], sT[3], sT[1]))
        a('s_lshl2_add_u32 s%d, s%d, s%d' % (sT[2], sT[1], sW))
        a('s_lshl_b32 s%d, s%d, 6' % (sT[6], sT[2]))
        a('s_mul_i32 s%d, s%d, %d' % (sT[5], sT[2], 32 * 7680))
        a('s_lshl_b32 s%d, s%d, 7' % (sT[4], sT[0]))
        a('s_add_u32 s%d, s%d, s%d' % (sT[5], sT[5], sT[4]))
        a('s_mul_i32 s%d, s%d, 15360' % (sMO, sT[1]))
        a('s_lshl1_add_u32 s%d, s%d, s%d' % (sMO, sT[4], sMO))
        a('s_add_u32 s%d, s%d, 0x%x' % (sMO, sMO, MODP))
        a('s_cmp_lt_u32 s%d, 100' % sT[3])
        a('s_cselect_b32 s%d, -1, 0' % sNM)
        a('v_add_u32 v44, s%d, v41' % sT[6])
        a('s_lshr_b32 s%d, s%d, 2' % (sT[0], sT[3]))
        a('s_and_b32 s%d, s%d, 3' % (sT[1], sT[3]))
        a('s_lshl2_add_u32 s%d, s%d, s%d' % (sT[1], sT[1], sW))
        a('s_mul_i32 s%d, s%d, %d' % (sT[2], sT[0], 20 * 3840))
        a('s_mul_i32 s%d, s%d, 80' % (sT[4], sT[1]))
        a('s_add_u32 s%d, s%d, s%d' % (sT[2], sT[2], sT[4]))
        a('s_lshl_b32 s%d, s%d, 5' % (sT[1], sT[1]))
        a('s_add_u32 s%d, s%d, s%d' % (sT[1], sT[1], sT[0]))
        a('s_mul_i32 s%d, s%d, 4800' % (jD[0], sT[1]))
        a('s_add_u32 s%d, s%d, 0x%x' % (jD[0], jD[0], W1C))
        a('s_lshl_b32 s%d, s%d, 7' % (jD[1], sT[1]))
        a('s_add_u32 s%d, s%d, 0x%x' % (jD[1], jD[1], CF))
        a.wait_lg()
        self.stamp('karg', 0)
        a('s_load_dword s%d, s[%d:%d], 0' % (sTAG, pWS, pWS + 1))
        a('s_mov_b32 s%d, 0' % sN)
        self.srd(S1, pC, 1280)
        a('buffer_load_dword v44, v44, s[%d:%d], 0 offen' % (S1, S1 + 3), 'c')
        self.srd(SJ, pWM, 640 * 7680)
        self.exec_('s%d' % sNM, 's%d' % sNM)
        self.unit_load(176, 38, sT[5], 7680, 'm0')
        self.srd(SQ, pQ, 640 * 3840)
        self.exec_(-1, '0x0fffffff')
        for x in range(5):
            a('buffer_load_dwordx4 %s, v6, s[%d:%d], s%d offen %s' % (V(192 + 4 * x, 4), SQ, SQ + 3, sT[2], self.o['cpol']), 'cp')
            if x < 4: a('s_add_u32 s%d, s%d, %d' % (sT[2], sT[2], 4 * 3840))
        self.exec_all()
        self.srd(SW, pWS, WSZ)
        self.srd(SX, pX, 2048 * 1280)
        self.staging()
        self.xi_publish()
        self.stamp('issued', 1)
        self.setup()
        self.silu(1)
        self.stamp('c', 2)
        a.wait_vm('m0')
        self.unit_tr(176, 96)
        a.wait_lg()
        for T in range(4): a(self.mfma(60 + 4 * T, 96 + 4 * T, 128, first=True))
        self.mod_write()
        self.barrier()
        self.mod_publish()
        self.stamp('mpub', 3)
        a.wait_vm('cp')
        a('s_mov_b32 exec_hi, 0x0fffffff')
        for x in range(5):
            a('buffer_store_dwordx4 %s, v1, s[%d:%d], s%d offen offset:%d sc1' % (V(192 + 4 * x, 4), SW, SW + 3, jD[0], 960 * x), 'cs')
        self.cf_addr()
        a('v_mov_b32 v14, s%d' % sTAG)
        a('s_mov_b64 exec, 1')
        a.wait_vm()
        a('buffer_store_dword v14, off, s[%d:%d], s%d sc1' % (SW, SW + 3, jD[1]))
        self.exec_all()
        self.stamp('pre', 4)
        a('v_and_b32 v50, 7, v0')
        a('v_lshlrev_b32 v50, 7, v50')
        self.xi_issue('xi')
        self.poll(50, sT[6], 51)
        self.stamp('modok', 5)
        self.b1_issue(0, self.o['nbn'])
        self.xi_check('xi')

    def unit_load(self, dst, va, soff, pitch, tag):
        a = self.a
        for q in range(4):
            h, gp = q >> 1, q & 1
            if isinstance(pitch, int):
                a('s_add_u32 s%d, s%d, %d' % (sT[7], soff, (16 * gp + 4 * h) * pitch))
            else:
                a('s_mul_i32 s%d, %s, %d' % (sT[7], pitch, 16 * gp + 4 * h))
                a('s_add_u32 s%d, s%d, s%d' % (sT[7], sT[7], soff))
            a('buffer_load_dwordx4 %s, v%d, s[%d:%d], s%d offen %s' % (R(dst + 4 * q, 4), va, SJ, SJ + 3, sT[7], self.o['jpol']), tag)
    def unit_tr(self, src, f):
        a = self.a
        for h in range(2):
            for gp in range(2): a('ds_write_b128 v42, %s offset:%d' % (R(src + 8 * h + 4 * gp, 4), 1024 * gp))
            for T in range(4): a('ds_read_b64_tr_b16 %s, v%d' % (V(f + 4 * T + 2 * h, 2), 140 + T), 'jf%d' % f)
    def unit_store(self, f, mask, dst):
        a = self.a
        self.exec_('s%d' % mask, 's%d' % mask)
        for T in range(4):
            a('buffer_store_dwordx4 %s, v1, s[%d:%d], s%d offen offset:%d sc1' % (V(f + 4 * T, 4), SW, SW + 3, dst, 1024 * T), 'jst')
        self.exec_all()

    def producer(self):
        a = self.a
        ML, XR_, XF_, MA, SF, MG = 256, 76, 176, 60, 128, 216
        E = self.o['early']
        a('s_mul_i32 s%d, s%d, %d' % (sT[5], sXO, 16 * 1280))
        a('s_mul_i32 s%d, s%d, 320' % (sT[1], sW))
        a('s_add_u32 s%d, s%d, s%d' % (sT[5], sT[5], sT[1]))
        a('s_lshr_b32 s%d, s%d, 1' % (sT[0], sT[3]))
        a('s_and_b32 s%d, s%d, 1' % (sT[1], sT[3]))
        a('s_sub_u32 s%d, 3, s%d' % (sNM, sT[1]))
        a('s_mul_i32 s%d, s%d, s%d' % (sT[2], sNM, sW))
        a('s_mul_i32 s%d, s%d, 12' % (sT[4], sT[1]))
        a('s_add_u32 s%d, s%d, s%d' % (sT[2], sT[2], sT[4]))
        a('s_lshl_b32 s%d, s%d, 6' % (sT[6], sT[2]))
        a('v_add_u32 v44, s%d, v41' % sT[6])
        a('s_mul_i32 s%d, s%d, %d' % (sT[6], sT[2], 32 * 7680))
        a('s_lshl_b32 s%d, s%d, 7' % (sT[4], sT[0]))
        a('s_add_u32 s%d, s%d, 2560' % (sT[4], sT[4]))
        a('s_add_u32 s%d, s%d, s%d' % (sT[6], sT[6], sT[4]))
        a('s_mul_i32 s%d, s%d, 15360' % (sMO, sT[1]))
        a('s_lshl1_add_u32 s%d, s%d, s%d' % (sMO, sT[4], sMO))
        a('s_add_u32 s%d, s%d, 0x%x' % (sMO, sMO, MODP))
        a('s_sub_u32 s%d, s%d, 2' % (sT[0], sT[0]))
        a('s_mul_i32 s%d, s%d, 3' % (sT[1], sT[3]))
        a('s_sub_u32 s%d, s%d, 200' % (sT[1], sT[1]))
        a('s_cmp_lt_u32 s%d, 80' % sT[3])
        a('s_cselect_b32 s%d, s%d, 0' % (sNM, sNM))
        a('s_cselect_b32 s%d, s%d, s%d' % (sT[0], sT[0], sT[1]))
        a.wait_lg()
        self.stamp('karg', 0)
        a('s_load_dword s%d, s[%d:%d], 0' % (sTAG, pWS, pWS + 1))
        a('s_mov_b32 s%d, s%d' % (sN, sT[3]))
        self.srd(SX, pX, 2048 * 1280)
        for s in range(5):
            a('buffer_load_dwordx4 %s, v43, s[%d:%d], s%d offen offset:%d %s' % (V(XR_ + 4 * s, 4), SX, SX + 3, sT[5], 64 * s, self.o['hpol']), 'xt')
        self.srd(S1, pC, 1280)
        a('buffer_load_dword v44, v44, s[%d:%d], 0 offen' % (S1, S1 + 3), 'c')
        for i in range(184): assert (i * 205) >> 11 == i // 10
        a('s_mov_b32 s%d, 0x20000' % (SJ + 3))
        def slot(u):
            a('s_add_u32 s%d, s%d, %d' % (sT[1], sJ0, u))
            if self.o['lin']:
                a('s_lshl2_add_u32 s%d, s%d, s%d' % (sT[3], sT[1], sW))
                a('s_mul_i32 s%d, s%d, 6554' % (sT[4], sT[3]))
                a('s_lshr_b32 s%d, s%d, 16' % (sT[4], sT[4]))
                a('s_mul_i32 s%d, s%d, 10' % (sT[2], sT[4]))
                a('s_sub_u32 s%d, s%d, s%d' % (sT[3], sT[3], sT[2]))
                a('s_lshr_b32 s%d, s%d, 2' % (sT[2], sT[4]))
            else:
                a('s_mul_i32 s%d, s%d, 205' % (sT[2], sT[1]))
                a('s_lshr_b32 s%d, s%d, 11' % (sT[2], sT[2]))
                a('s_mul_i32 s%d, s%d, 10' % (sT[3], sT[2]))
                a('s_sub_u32 s%d, s%d, s%d' % (sT[3], sT[1], sT[3]))
                a('s_lshl2_add_u32 s%d, s%d, s%d' % (sT[4], sT[2], sW))
            a('s_mul_i32 s%d, s%d, 40960' % (sT[4], sT[4]))
            a('s_lshl_b32 s%d, s%d, 12' % (jD[u], sT[3]))
            a('s_add_u32 s%d, s%d, s%d' % (jD[u], jD[u], sT[4]))
            a('s_add_u32 s%d, s%d, 0x%x' % (jD[u], jD[u], W2T))
            a('s_lshl_b32 s%d, s%d, 7' % (sT[3], sT[3]))
            a('s_add_u32 s%d, s%d, s%d' % (sT[4], sT[4], sT[3]))
            a('s_sub_u32 s%d, s%d, 819200' % (sT[3], sT[4]))
            a('s_cmp_lt_u32 s%d, 170' % sT[1])
            a('s_cselect_b32 s%d, -1, 0' % jS[u])
            a('s_cmp_lt_u32 s%d, 5' % sT[2])
            a('s_cselect_b32 s%d, s%d, s%d' % (SJ, pWO, pW2))
            a('s_cselect_b32 s%d, s%d, s%d' % (SJ + 1, pWO + 1, pW2 + 1))
            a('s_cselect_b32 s%d, 5, 12' % sT[2])
            a('s_cselect_b32 s%d, s%d, s%d' % (sT[4], sT[4], sT[3]))
            a('s_cmp_gt_u32 s%d, %d' % (sNM, u))
            a('s_cselect_b32 s%d, s%d, s%d' % (SJ, pWM, SJ))
            a('s_cselect_b32 s%d, s%d, s%d' % (SJ + 1, pWM + 1, SJ + 1))
            a('s_cselect_b32 s%d, 30, s%d' % (sT[2], sT[2]))
            a('s_cselect_b32 s%d, s%d, s%d' % (sT[4], sJ1, sT[4]))
            a('s_cselect_b32 s%d, 6, 1' % sT[3])
            a('s_cselect_b32 s%d, -1, s%d' % (sT[1], jS[u]))
            a('s_cselect_b32 s%d, 0, s%d' % (jS[u], jS[u]))
            a('s_cselect_b64 vcc, -1, 0')
            a('s_and_b32 s%d, s%d, 0xffff' % (SJ + 1, SJ + 1))
            a('s_mul_i32 s%d, s%d, 163840' % (SJ + 2, sT[2]))
            a('s_mul_i32 s%d, s%d, 1280' % (sT[3], sT[3]))
            a('v_cndmask_b32 v40, v39, v38, vcc')
            self.exec_('s%d' % sT[1], 's%d' % sT[1])
            self.unit_load(ML + 16 * u, 40, sT[4], 's%d' % sT[3], 'm%d' % u)
            self.exec_all()
            a('s_add_u32 s%d, s%d, %d' % (sJ1, sJ1, 32 * 7680))
        a('s_mov_b32 s%d, s%d' % (sJ0, sT[0]))
        a('s_mov_b32 s%d, s%d' % (sJ1, sT[6]))
        if E > 0: slot(0)
        self.srd(SW, pWS, WSZ)
        self.staging()
        self.xi_publish()
        self.stamp('issued', 1)
        self.setup()
        a('s_lshl2_add_u32 s%d, s%d, s%d' % (sTILE, sXO, sW))
        a('s_mul_i32 s%d, s%d, 5120' % (sTILE, sTILE))
        a('s_add_u32 s%d, s%d, 0x%x' % (sTILE, sTILE, WHB))
        a('v_mov_b32 v34, 0')
        a('v_mov_b32 v35, 0')
        a('s_lshl_b32 s%d, s%d, 7' % (sT[0], sW))
        a('s_add_u32 s%d, s%d, %d' % (sT[0], sT[0], HST))
        a('v_lshl_add_u32 v60, v2, 3, s%d' % sT[0])
        a('v_lshlrev_b32 v61, 3, v2')
        a('v_add_u32 v61, %d, v61' % HST)
        a('v_lshlrev_b32 v46, 7, v0')
        if self.o['fast']:
            a('s_mov_b32 exec_hi, 0xff')
            a('buffer_load_dword v254, v46, s[%d:%d], s%d offen' % (SW, SW + 3, sTILE))
            a('s_mov_b32 exec_hi, -1')
        a.wait_vm('xt')
        self.stamp('c', 2)
        for u in range(1, E): slot(u)
        self.xi_issue('xi')
        for d in range(20):
            a('v_dot2c_f32_bf16 v34, s%d, v%d' % (sONE, XR_ + d))
            a('v_dot2c_f32_bf16 v35, v%d, v%d' % (XR_ + d, XR_ + d))
        self.rowsum([34, 35], 36)
        a('ds_write_b64 v60, v[34:35]')
        self.barrier()
        for i in range(4): a('ds_read_b64 %s, v61 offset:%d' % (V(62 + 2 * i, 2), 128 * i))
        self.stamp('mpub', 3)
        for d in range(20):
            a('v_lshlrev_b32 v%d, 16, v%d' % (XF_ + 2 * d, XR_ + d))
            a('v_and_b32 v%d, s%d, v%d' % (XF_ + 1 + 2 * d, sHI, XR_ + d))
        a.wait_lg()
        a('v_pk_add_f32 v[62:63], v[62:63], v[64:65]')
        a('v_pk_add_f32 v[66:67], v[66:67], v[68:69]')
        a('v_pk_add_f32 v[34:35], v[62:63], v[66:67]')

        a('s_mov_b32 s%d, 0x%x' % (sT[7], f2u(1 / 640)))
        self.finstats(34, 35, 36)
        a('v_mul_f32 v34, -v34, v35')
        for d in range(20):
            a('v_pk_fma_f32 %s, %s, v[34:35], v[34:35] op_sel:[0,1,0] op_sel_hi:[1,1,0]' % (V(XF_ + 2 * d, 2), V(XF_ + 2 * d, 2)))
        a('v_and_b32 v60, 16, v7')
        a('v_lshlrev_b32 v61, 1, v7')
        a('v_sub_u32 v60, v61, v60')
        a('s_mul_i32 s%d, s%d, 768' % (sT[0], sW))
        a('s_add_u32 s%d, s%d, %d' % (sT[0], sT[0], SPARE))
        a('v_add_u32 v60, s%d, v60' % sT[0])
        if self.o['mw'] >= 0: a.wait_vm('m%d' % self.o['mw'])
        self.mod_issue([0, 1], MG, 7, 'mod', 5)
        self.xi_check('xi')
        a('s_cmp_ge_u32 s%d, 14' % sJ)
        a('s_cselect_b32 s%d, 1, s%d' % (sSL2, sSLOW))
        self.stamp('pre', 4)
        self.mod_check([0, 1], MG, 7, 'mod', 36, 5)
        self.stamp('modok', 5)
        self.plus1(MG + 20)
        self.unpack4(52, MG)
        self.unpack4(56, MG + 20)
        a('ds_write_b128 v60, v[56:59]')
        a('ds_write_b128 v60, v[52:55] offset:32')
        MSR = [96, 112, 60, 216, 232]
        for s in range(5):
            for x in range(4):
                a('ds_read_b128 %s, v145 offset:%d' % (V(MSR[s] + 4 * x, 4), 256 * s + 16 * x), 'ms%d' % s)
        for s in range(5):
            a.wait_lg('ms%d' % s)
            b, r = MSR[s], XF_ + 8 * s
            for d in range(4):
                a('v_pk_fma_f32 %s, %s, %s, %s' % (V(r + 2 * d, 2), V(r + 2 * d, 2), V(b + 2 * d, 2), V(b + 8 + 2 * d, 2)))
            for d, (e0, e1) in enumerate(((0, 2), (4, 6), (1, 3), (5, 7))):
                a('v_cvt_pk_bf16_f32 v%d, v%d, v%d' % (XR_ + 4 * s + d, r + e0, r + e1))
        self.st2(['buffer_store_dwordx4 %s, v%d, s[%d:%d], s%d offen offset:%d' % (V(XR_ + 4 * s, 4), 1 if s < 4 else 5, SW, SW + 3, sTILE, 1024 * (s & 3)) for s in range(5)], 'hst', sSL2)
        self.cf_addr()
        a('buffer_load_dword v51, v50, s[%d:%d], s%d offen sc1' % (SW, SW + 3, sT[6]), 'cf')
        for u in range(E, 3): slot(u)
        F = [96, 112, 224]
        self.silu(3)
        for u in range(E): self.unit_tr(ML + 16 * u, F[u])
        a('s_lshl_b32 s%d, s%d, 7' % (sT[0], sXO))
        a('s_add_u32 s%d, s%d, 0x%x' % (sT[0], sT[0], FX))
        a('v_lshlrev_b32 v46, 7, v0')
        a.wait_vm('hst')
        if self.o['touch']:
            a('s_mov_b32 exec_hi, 0xff')
            a('buffer_load_dword v254, v46, s[%d:%d], s%d offen sc1' % (SW, SW + 3, sTILE))
            a('s_mov_b32 exec_hi, -1')
        a('s_barrier')
        self.flagstore(sT[0], sSL2)
        self.stamp('hpub', 6)
        for u in range(E, 3):
            a.wait_vm('m%d' % u)
            self.unit_tr(ML + 16 * u, F[u])
        Lc = a.newlabel('cfok')
        a.wait_vm('cf')
        a('v_cmp_ne_u32 vcc, s%d, v51' % sTAG)
        a('s_cbranch_vccz %s' % Lc)
        self.poll(50, sT[6], 51)
        a.label(Lc)
        self.stamp('jobs', 7)
        self.b1_issue(0, self.o['nb1'])
        a.wait_lg()
        for u in range(3):
            if u == 2:
                Ls = a.newlabel('nomf')
                a('s_cmp_lg_u32 s%d, 3' % sNM)
                a('s_cbranch_scc1 %s' % Ls)
            for T in range(4): a(self.mfma(MA + 4 * T, F[u] + 4 * T, SF + 4 * u, first=(u == 0)))
            if u == 2: a.label(Ls)
            self.unit_store(F[u], jS[u], jD[u])
        self.mod_write()
        self.barrier()
        self.mod_publish()
        self.b1_issue(self.o['nb1'], self.o['nb2'])

    def jobflag(self):
        a = self.a
        a('s_lshl_b32 s%d, s%d, 2' % (sT[2], sN))
        a('s_add_u32 s%d, s%d, 0x%x' % (sT[2], sT[2], JF))
        a('v_mov_b32 v14, s%d' % sTAG)
        a('s_cmp_eq_u32 s%d, 1' % sW)
        a('s_cselect_b32 s%d, s%d, 0' % (sT[3], sPROD))
        a('s_and_b32 exec_lo, s%d, 1' % sT[3])
        a('s_mov_b32 exec_hi, 0')
        a('buffer_store_dword v14, off, s[%d:%d], s%d sc1' % (SW, SW + 3, sT[2]))
        self.exec_all()

    def setup(self):
        a = self.a
        self.srd(SO, pOUT, 2048 * 1280)
        a('v_min_u32 v7, 39, v0')
        a('s_mul_i32 s%d, s%d, 40' % (sT[0], sW))
        a('v_add_lshl_u32 v7, v7, s%d, 4' % sT[0])
        a('v_add_u32 v5, 4096, v1')
        a('v_lshrrev_b32 v148, 2, v0')
        a('v_mul_u32_u24 v148, 480, v148')
        a('v_and_b32 v149, 3, v0')
        a('v_lshl_add_u32 v8, v149, 3, v148')
        a('v_and_b32 v149, 2, v0')
        a('v_lshl_add_u32 v152, v149, 5, v8')
        for i in range(1, 4):
            a('v_add_u32 v%d, %d, v8' % (8 + i, RGN * i))
            a('v_add_u32 v%d, %d, v152' % (152 + i, RGN * i))
        a('v_add_u32 v12, s%d, v8' % sRB)
        a('v_add_u32 v156, s%d, v152' % sRB)
        a('s_lshr_b32 s%d, s%d, 1' % (sT[0], sW))
        a('s_mul_i32 s%d, s%d, %d' % (sT[0], sT[0], RGN - 12288))
        a('s_mul_i32 s%d, s%d, 6144' % (sT[1], sW))
        a('s_add_u32 s%d, s%d, s%d' % (sT[0], sT[0], sT[1]))
        a('s_add_u32 s%d, s%d, %d' % (sT[0], sT[0], HP))
        a('v_add_u32 v4, s%d, v1' % sT[0])
        a('s_cmp_eq_u32 s%d, 1' % sW)
        a('s_cselect_b32 s%d, 512, 0' % sT[0])
        a('v_or_b32 v157, s%d, v1' % sT[0])
        a('s_lshl_b32 s%d, s%d, 10' % (sT[0], sW))
        a('s_add_u32 s%d, s%d, %d' % (sT[0], sT[0], HP))
        a('v_add_u32 v157, s%d, v157' % sT[0])
        a('s_add_u32 s%d, s%d, 4' % (sT[1], sW))
        a('s_min_u32 s%d, s%d, 5' % (sT[1], sT[1]))
        a('s_lshl_b32 s%d, s%d, 10' % (sT[0], sT[1]))
        a('s_add_u32 s%d, s%d, %d' % (sT[0], sT[0], HP))
        a('v_add_u32 v158, s%d, v1' % sT[0])
        a('s_lshl_b32 s%d, s%d, 9' % (sT[0], sW))
        a('s_add_u32 s%d, s%d, %d' % (sT[0], sT[0], EX))
        a('v_lshl_add_u32 v159, v0, 3, s%d' % sT[0])
        a('s_lshl_b32 s%d, s%d, 9' % (sT[0], sT[1]))
        a('s_add_u32 s%d, s%d, %d' % (sT[0], sT[0], EX))
        a('v_lshl_add_u32 v160, v0, 3, s%d' % sT[0])
        a('s_mul_i32 s%d, s%d, 3072' % (sT[0], sW))
        a('s_add_u32 s%d, s%d, %d' % (sT[0], sT[0], EX))
        a('v_lshl_add_u32 v161, v0, 3, s%d' % sT[0])
        a('v_and_b32 v148, 1, v3')
        a('v_lshrrev_b32 v149, 1, v3')
        a('v_mad_u32_u24 v162, v148, 3, v149')
        a('v_lshlrev_b32 v150, 4, v2')
        a('v_lshl_add_u32 v162, v162, 8, v150')
        a('v_mul_u32_u24 v149, 20480, v149')
        a('v_lshl_add_u32 v163, v148, 3, v150')
        a('v_add_u32 v163, v163, v149')
        NEG = 0xff61b1e6
        a('s_or_b32 s%d, s%d, s%d' % (sT[0], sC, sW))
        a('s_cselect_b32 s%d, 0, 0x%x' % (sT[0], NEG))
        a('s_mov_b32 s%d, 0x80000001' % sT[1])
        a('s_mov_b32 s%d, 0x80000000' % sT[2])
        a('s_mov_b32 s%d, 0x07070303' % sT[3])
        a('v_mov_b32 v150, 0x%x' % NEG)
        a('v_lshlrev_b32 v148, 2, v3')
        a('v_sub_u32 v148, v2, v148')
        for e in range(4):
            a('v_subrev_u32 v149, %d, v148' % e)
            a('v_and_b32 v149, s%d, v149' % sT[1])
            a('v_cmp_ne_u32 vcc, 0, v149')
            a('v_cndmask_b32 v%d, 0, v150, vcc' % (16 + e))
            a('v_cmp_ne_u32 vcc, s%d, v149' % sT[2])
            a('v_cndmask_b32 v%d, 0, v150, vcc' % (20 + e))
            a('v_or_b32 v%d, s%d, v%d' % (24 + e, sT[0], 20 + e))
        for x, r in enumerate((20, 22, 16, 18)):
            a('v_perm_b32 v%d, v%d, v%d, s%d' % (28 + x, r + 1, r, sT[3]))
        a('s_mov_b64 s[%d:%d], 0xffff' % (sG0, sG0 + 1))
        a('s_mov_b32 s%d, 0xffff0000' % sG1)
        a('s_mov_b32 s%d, 0' % (sG1 + 1))
        a('s_lshl2_add_u32 s%d, s%d, s%d' % (sT[0], sC, sW))
        a('s_mul_i32 s%d, s%d, 40960' % (sT[0], sT[0]))
        for t in range(2):
            for i in range(4): a('s_add_u32 s%d, s%d, 0x%x' % (sP[4 * t + i], sT[0], WHB + 20480 * t + 5120 * i))
        a('s_mul_i32 s%d, s%d, 1280' % (sT[1], sJ))
        a('s_add_u32 s%d, s%d, s%d' % (sP[9], sT[0], sT[1]))
        a('s_add_u32 s%d, s%d, 0x%x' % (sP[9], sP[9], WO_))
        a('s_lshl_b32 s%d, s%d, 3' % (sT[0], sC))
        a('s_max_u32 s%d, s%d, 1' % (sT[1], sT[0]))
        a('s_sub_u32 s%d, s%d, 1' % (sT[1], sT[1]))
        a('s_lshl2_add_u32 s%d, s%d, s%d' % (sT[2], sT[1], sW))
        a('s_mul_i32 s%d, s%d, 5120' % (sT[2], sT[2]))
        a('s_add_u32 s%d, s%d, 0x%x' % (sP[8], sT[2], WHB))
        a('s_lshl1_add_u32 s%d, s%d, s%d' % (sT[0], sW, sT[0]))
        a('v_add_u32 v13, s%d, v0' % sT[0])
        a('v_mov_b32 v148, s%d' % sT[1])
        a('v_cmp_gt_u32 vcc, 2, v0')
        a('v_cndmask_b32 v13, v148, v13, vcc')
        a('v_lshlrev_b32 v13, 7, v13')
        self.w_addr()

    def p1_gemm(self):
        a = self.a
        o = self.o
        ACC, HACC, BB, HB, HA = 32, 96, 120, 176, 200
        HT = [2, 4, 3, 5, 6, 7]
        steps = [(s, i) for s in range(5) for i in range(4)]
        def bread(n, T, h):
            s, i = steps[n]
            a('ds_read_b64_tr_b16 %s, v%d offset:%d' % (R(BB + 4 * T + 2 * h, 2), (152 if T == 4 else 8) + i, 7680 * s + 240 * h + TOFF[T]), 'B%d_%d' % (n, T))
        def hread(s, x, h):
            a('ds_read_b64_tr_b16 %s, v%d offset:%d' % (R(HB + 4 * x + 2 * h, 2), 156 if HT[x] == 4 else 12, 7680 * s + 240 * h + TOFF[HT[x]]), 'HB%d' % s)
        areg = lambda x: 220 + 4 * x if x < 8 else 256 + 4 * (x - 8)
        def aload(x):
            s, i = steps[x >> 1]
            if 'noA1' in o['exp']: return
            self.ld(areg(x), 1024 * s, sP[4 * (x & 1) + i], 'A%d' % x, o['apol'])
        def mm(d, w, act, T, first):
            return self.mfma(d, act, w, first) if T >= 5 else self.mfma(d, w, act, first)
        a('s_mov_b32 s%d, 0x%x' % (sT[0], FX))
        self.stamp('b1i')
        self.poll(13, sT[0], 32)
        self.stamp('gemm0')
        aq = list(range(40))
        for _ in range(o['la1']): aload(aq.pop(0))
        self.ld(HA, 0, sP[8], 'HA0')
        a('s_barrier')
        for T in range(8):
            for h in range(2): bread(0, T, h)
        self.jobflag()
        b1f = lambda x: (lambda: self.b1_one(x, x == o['nb2'], sPROD if x < o['nbn'] else None))
        b1q = list(range(o['nb2'], 38))
        hrd = {1: (0, 0, 6), 3: (1, 0, 3), 4: (1, 3, 6), 6: (2, 0, 3), 7: (2, 3, 6), 9: (3, 0, 3), 10: (3, 3, 6), 12: (4, 0, 6)}
        hmm = {2: 0, 5: 1, 8: 2, 11: 3, 13: 4}
        HOFF = [0, 6144, 38400, 44544]
        for n in range(20):
            s, i = steps[n]
            if n == 6: a.wait_vm('b1_2')
            if n == 9: a.wait_vm('b1_3')
            if n == 12:
                assert not b1q
                a.wait_vm('b1_4')
            if n == 7 and o['nb2'] < 23: a('s_barrier')
            if n == 11:
                a('s_barrier'); self.level = 1
            if n == 15:
                a.wait_lg('hp'); a('s_barrier'); self.level = 2
            vm, ot = [], []
            k = 2 if (b1q and n >= 1) else o['ra1']
            for _ in range(k):
                if aq: vm.append(lambda x=aq.pop(0): aload(x))
            if n >= 1:
                for _ in range(2):
                    if b1q: vm.append(b1f(b1q.pop(0)))
            if 1 <= n < 5: vm.append(lambda: self.ld(HA + 4 * n, 1024 * n, sP[8], 'HA%d' % n))
            if n in hrd:
                hs, x0, x1 = hrd[n]
                ot += [lambda x=x, h=h: hread(hs, x, h) for x in range(x0, x1) for h in range(2)]
            hm = []
            if n in hmm:
                hs = hmm[n]
                hm = [mm(HACC + 4 * x, HB + 4 * x, HA + 4 * hs, HT[x], hs == 0) for x in range(6)]
            if n == 14:
                ot += [lambda: None] * 3 + [lambda x=x: a('ds_write_b128 v4, %s offset:%d' % (R(HACC + 4 * x, 4), 1024 * x), 'hp') for x in range(6)]
                pre = self.p2_pre()
            if n >= 14:
                vm += pre[:3]; pre = pre[3:]
            if n == 15:
                ot += [lambda y=y, p=p: a('ds_read_b128 %s, v%d offset:%d' % (V(HB + 16 * y + 4 * p, 4), 157 + y, HOFF[p]), 'hr') for y in range(2) for p in range(4)]
            if n in (16, 17):
                b = HB + 16 * (n - 16)
                if n == 16: a.wait_lg('hr')
                ot += [lambda e=e, p=p: a('v_add_f32 v%d, v%d, v%d' % (b + 8 * p + e, b + 8 * p + e, b + 8 * p + 4 + e)) for p in range(2) for e in range(4)]
                ot += [lambda e=e: a('v_add_f32 v%d, v%d, v%d' % (b + e, b + e, b + 8 + e)) for e in range(4)]
                ot += [lambda e=e: a('v_cvt_pk_bf16_f32 v%d, v%d, v%d' % (b + e, b + 2 * e, b + 2 * e + 1)) for e in range(2)]
                ot += [lambda: a('ds_write_b64 v%d, %s' % (159 + n - 16, V(b, 2)))]
            if n == o['jfi']: vm.append(lambda: self.jf_issue())
            if n == o['jfc']:
                self.jf_check()
                self.queue_after_jobs()
            vm += self.touches('g%d' % n)
            if n >= o['gp0']:
                vm += [self.pump] * max(0, o['g_pump'] - (len(vm) if n < 14 else 1))
            ngap = 16 + len(hm)
            slots = [[] for _ in range(ngap)]
            for q, f in enumerate(vm): slots[(q * ngap + ngap // 2) // len(vm)].append(f)
            free = [g for g in range(ngap) if not slots[g]]
            if len(free) < len(ot): free = list(range(ngap))
            for q, f in enumerate(ot): slots[free[q * len(free) // len(ot)]].append(f)
            a.wait_vm('A%d' % (2 * n + 1))
            for T in range(8):
                if T % 2 == 0: a.wait_lg('B%d_%d' % (n, T + 1 if T < 6 else T))
                if T == 7: a.wait_lg('B%d_7' % n)
                for t in range(2):
                    a(mm(ACC + 32 * t + 4 * T, BB + 4 * T, areg(2 * n + t), T, n == 0))
                    if T > 0 and n + 1 < 20: bread(n + 1, T - 1, t)
                    if T == 0 and n > 0: bread(n, 7, t)
                    for f in slots.pop(0): f()
                if hm and T >= 2:
                    if T == 2:
                        a.wait_vm('HA%d' % hs); a.wait_lg('HB%d' % hs)
                    a(hm.pop(0))
                    for f in slots.pop(0): f()
            assert not slots and not hm
        assert not aq and not b1q and not pre
        self.stamp('gemm1')

    def p1_attn(self):
        a = self.a
        ACC, S_, P_, X_ = 32, 176, 64, 80
        K = lambda t: 102 + 6 * t
        Vv = lambda y, t: 116 + 6 * y + 2 * t
        Q = lambda t, h: 132 + 8 * t + 4 * h
        np_ = [self.o['at_pump']]
        def pump(k=1):
            k = min(k, np_[0]); np_[0] -= k; self.pump(k)
        def cvt(d, r):
            a('v_cvt_pk_bf16_f32 v%d, v%d, v%d' % (d, r, r + 1))
            a('v_cvt_pk_bf16_f32 v%d, v%d, v%d' % (d + 1, r + 2, r + 3))
        def kv(t):
            r = ACC + 32 * t
            cvt(K(t), r + 8); cvt(K(t) + 4, r + 12)
            cvt(K(t) + 2, r + 16); cvt(148 + 2 * t, r + 16)
            cvt(Vv(0, t), r + 20)
            for e in range(2): a('v_permlane32_swap_b32 v%d, v%d' % (148 + 2 * t + e, K(t) + 2 + e))
            cvt(Vv(1, t), r + 24); cvt(Vv(2, t), r + 28)
        def qq(t):
            r = ACC + 32 * t
            cvt(Q(t, 0), r); cvt(Q(t, 1) + 2, r + 4)
            for e in range(2):
                a('v_cndmask_b32 v%d, 0, v%d, s[%d:%d]' % (Q(t, 0) + 2 + e, 148 + 2 * t + e, sG0, sG0 + 1))
                a('v_cndmask_b32 v%d, 0, v%d, s[%d:%d]' % (Q(t, 1) + e, 148 + 2 * t + e, sG1, sG1 + 1))
        def smm(u, cur):
            t, h = u >> 1, u & 1
            m = 16 if cur else (24 if t == 0 else 20)
            a('v_mfma_f32_16x16x32_bf16 %s, %s, %s, %s' % (V(S_ + 8 * u + 4 * cur, 4), V(K(t - 1 + cur) + 2 * h, 4), V(Q(t, h), 4), V(m, 4)))
        kv(1)
        for x in range(3): a('ds_write_b64 v161, %s offset:%d' % (V(K(1) + 2 * x, 2), 3072 + 512 * x))
        for y in range(3): a('ds_write_b64 v161, %s offset:%d' % (V(Vv(y, 1), 2), 3072 + 1536 + 512 * y))
        for f in self.touches('a0'): f()
        pump(2)
        kv(0)
        self.barrier()
        self.level = 3
        for x in range(3): a('ds_read_b64 %s, v161 offset:%d' % (V(K(-1) + 2 * x, 2), 512 * x), 'ek')
        for y in range(3): a('ds_read_b64 %s, v161 offset:%d' % (V(Vv(y, -1), 2), 1536 + 512 * y), 'ev')
        pump(3)
        qq(1)
        for u in (2, 3): smm(u, 0); smm(u, 1)
        qq(0)
        pump(2)
        for u in (0, 1): smm(u, 1)
        a.wait_lg('ek')
        for u in (0, 1): smm(u, 0)
        self.stamp('S')
        cs = LOG2E / math.sqrt(20.0)
        a('s_mov_b32 s%d, 0x%x' % (sT[1], f2u(cs)))
        sv = lambda u, i: X_ + 2 * u + i
        M = X_ + 8
        for u in (2, 3, 0, 1):
            b = S_ + 8 * u
            for i in range(2): a('v_max3_f32 v%d, v%d, v%d, v%d' % (sv(u, i), b + 2 * i, b + 2 * i + 1, b + 4 + 2 * i))
            for i in range(2): a('v_max_f32 v%d, v%d, v%d' % (sv(u, i), sv(u, i), b + 5 + 2 * i))
            a('v_max_f32 v%d, v%d, v%d' % (M + u, sv(u, 0), sv(u, 1)))
            pump(1)
        def allred(op, mid):
            a('v_permlane32_swap_b32 v%d, v%d' % (M, M + 2))
            a('v_permlane32_swap_b32 v%d, v%d' % (M + 1, M + 3))
            pump(1)
            a('%s v%d, v%d, v%d' % (op, M, M, M + 2))
            a('%s v%d, v%d, v%d' % (op, M + 1, M + 1, M + 3))
            pump(1)
            a('v_permlane16_swap_b32 v%d, v%d' % (M, M + 1))
            a('%s v%d, v%d, v%d' % (op, M, M, M + 1))
            a(mid % (M + 1, M)); a(mid % (M + 2, M)); a(mid % (M + 3, M)); a(mid % (M, M))
            pump(1)
            a('v_permlane16_swap_b32 v%d, v%d' % (M + 2, M + 3))
            a('v_permlane16_swap_b32 v%d, v%d' % (M, M + 1))
            pump(1)
            a('v_permlane32_swap_b32 v%d, v%d' % (M, M + 2))
            a('v_permlane32_swap_b32 v%d, v%d' % (M + 1, M + 3))
        allred('v_max_f32', 'v_mul_f32 v%%d, s%d, v%%d' % sT[1])
        for u in range(4):
            for i in range(2): a('v_fma_f32 v%d, v%d, s%d, -v%d' % (sv(u, i), sv(u, i), sT[1], M + u))
        for u in range(4):
            for i in range(2): a('v_exp_f32 v%d, v%d' % (sv(u, i), sv(u, i)))
        for u in range(4): a('v_add_f32 v%d, v%d, v%d' % (M + u, sv(u, 0), sv(u, 1)))
        allred('v_add_f32', 'v_rcp_f32 v%d, v%d')
        a.wait_lg('ev')
        for u in range(4):
            t, h = u >> 1, u & 1
            for i in range(2): a('v_mul_f32 v%d, v%d, v%d' % (sv(u, i), sv(u, i), M + u))
            for i in range(2): a('v_cvt_pk_bf16_f32 v%d, v%d, v%d' % (sv(u, i), sv(u, i), sv(u, i)))
            for x in range(4): a('v_bfi_b32 v%d, v%d, 0, v%d' % (P_ + 4 * u + x, 28 + x, sv(u, x & 1)))
            if u > 0: self.pv(u - 1)
        self.pv(3)
        O = S_
        for t in range(2):
            cvt(O + 4 * t, ACC + 16 * t); cvt(O + 4 * t + 2, ACC + 16 * t + 8)
            cvt(O + 8 + 2 * t, ACC + 16 * t + 4); cvt(O + 12, ACC + 16 * t + 12)
            for e in range(2): a('v_permlane16_swap_b32 v%d, v%d' % (O + 4 * t + e, O + 4 * t + 2 + e))
            for e in range(2): a('v_cndmask_b32 v%d, v%d, v%d, s[%d:%d]' % (O + 8 + 2 * t + e, O + 8 + 2 * t + e, O + 12 + e, sG1, sG1 + 1))
        a('s_add_u32 s%d, s%d, 20480' % (sT[0], sP[9]))
        for e in range(2): a('v_permlane32_swap_b32 v%d, v%d' % (O + 8 + e, O + 10 + e))
        self.st2(['buffer_store_dwordx4 %s, v162, s[%d:%d], s%d offen' % (V(O, 4), SW, SW + 3, sP[9]),
                  'buffer_store_dwordx4 %s, v162, s[%d:%d], s%d offen' % (V(O + 4, 4), SW, SW + 3, sT[0]),
                  'buffer_store_dwordx2 %s, v163, s[%d:%d], s%d offen offset:512' % (V(O + 8, 2), SW, SW + 3, sP[9])], 'ost')
        self.stamp('attn')

    def pv(self, u):
        t, h = u >> 1, u & 1
        for x, y in enumerate((h, 2)):
            self.a('v_mfma_f32_16x16x32_bf16 %s, %s, %s, 0' % (V(32 + 8 * u + 4 * x, 4), V(114 + 6 * y + 2 * t, 4), V(64 + 4 * u, 4)))

    def finish(self):
        a = self.a
        D = a.newlabel('ep')
        a('s_or_b32 s%d, s2, s%d' % (sT[0], sW))
        a('s_cmp_lg_u32 s%d, 0' % sT[0])
        a('s_cbranch_scc1 %s' % D)
        a('v_mov_b32 v14, s%d' % sTAG)
        self.exec_(1, 0)
        a('buffer_store_dword v14, off, s[%d:%d], 0 sc1' % (SW, SW + 3))
        self.exec_all()
        a.label(D)
        if self.stamps:
            a.wait_vm()
            self.stamp('end')
            a('v_writelane_b32 v15, s%d, 63' % sFAIL)
            a('v_writelane_b32 v15, s%d, 62' % sSLOW)
            a('s_lshl_b32 s%d, s2, 2' % sT[0])
            a('s_add_u32 s%d, s%d, s%d' % (sT[0], sT[0], sW))
            a('s_lshl_b32 s%d, s%d, 8' % (sT[0], sT[0]))
            a('s_add_u32 s%d, s%d, 0x%x' % (sT[0], sT[0], DBG))
            a('v_lshlrev_b32 v14, 2, v0')
            if not self.o.get('nodbg'): a('buffer_store_dword v15, v14, s[%d:%d], s%d offen sc0 sc1' % (SW, SW + 3, sT[0]))
            amp = self.o.get('amp', 0)
            if amp:
                L, E = a.newlabel('amp'), a.newlabel('ampe')
                a('v_readlane_b32 s%d, v15, 0' % sT[2])
                a('v_readlane_b32 s%d, v15, %d' % (sT[3], amp))
                a('v_readlane_b32 s%d, v15, %d' % (sT[4], self.nst - 1))
                if amp == 40:
                    a('v_readlane_b32 s%d, v15, 40' % sT[2])
                    a('v_readlane_b32 s%d, v15, 0' % sT[3])
                if amp in (42, 43):
                    a('s_mov_b32 s%d, 0x%x' % (sT[5], DBG - 256))
                    a('buffer_load_dword v12, off, s[%d:%d], s%d sc0 sc1' % (SW, SW + 3, sT[5]))
                    a('s_waitcnt vmcnt(0)')
                    x, y = (sT[2], sT[3]) if amp == 42 else (sT[3], sT[2])
                    a('v_readlane_b32 s%d, v12, 40' % x)
                    a('v_readlane_b32 s%d, v15, 40' % y)
                    a('s_sub_u32 s%d, s%d, 1000' % (sT[2], sT[2]))
                if amp == 41:
                    R = a.newlabel('rr')
                    a('s_mov_b32 s%d, 8' % sCNT)
                    a.label(R)
                    a('s_mov_b32 s%d, 0x%x' % (sT[5], DBG))
                    a('buffer_load_dword v12, v14, s[%d:%d], s%d offen sc0 sc1' % (SW, SW + 3, sT[5]))
                    a('s_waitcnt vmcnt(0)')
                    a('s_sub_u32 s%d, s%d, 1' % (sCNT, sCNT))
                    a('s_cmp_lg_u32 s%d, 0' % sCNT)
                    a('s_cbranch_scc1 %s' % R)
                    a('v_readlane_b32 s%d, v12, 40' % sT[2])
                    a('v_readlane_b32 s%d, v15, 40' % sT[3])
                    a('s_sub_u32 s%d, s%d, 1000' % (sT[2], sT[2]))
                a('s_cmp_eq_u32 s%d, 0' % sT[3])
                a('s_cbranch_scc1 %s' % E)
                a('s_sub_u32 s%d, s%d, s%d' % (sT[3], sT[3], sT[2]))
                a('s_min_u32 s%d, s%d, 6000' % (sT[3], sT[3]))
                a('s_lshl_b32 s%d, s%d, 2' % (sT[3], sT[3]))
                a('s_mov_b32 s%d, 0x100000' % sCNT)
                a.label(L)
                a('s_memrealtime s[98:99]')
                a('s_waitcnt lgkmcnt(0)')
                a('s_sub_u32 s%d, s%d, 1' % (sCNT, sCNT))
                a('s_cmp_eq_u32 s%d, 0' % sCNT)
                a('s_cbranch_scc1 %s' % E)
                a('s_sub_u32 s%d, s98, s%d' % (sT[5], sT[4]))
                a('s_cmp_lt_u32 s%d, s%d' % (sT[5], sT[3]))
                a('s_cbranch_scc1 %s' % L)
                a.label(E)
            hd = self.o.get('hd', 0)
            if hd:
                a('s_load_dwordx2 s[%d:%d], s[0:1], 72' % (sT[0], sT[1]))
                a.wait_lg()
                self.srd(SJ, sT[0], 64)
                sh = 0 if hd in (1, 3) else 11
                a('v_subrev_u32 v13, %d, v0' % sh)
                a('v_max_i32 v13, 0, v13')
                a('v_lshlrev_b32 v13, 2, v13')
                if hd in (1, 2):
                    a('v_not_b32 v12, v15')
                    a('v_cmp_eq_u32 vcc, 0, v0')
                    a('v_cndmask_b32 v12, v15, v12, vcc')
                    op = 'umax'
                else:
                    a('v_readlane_b32 s%d, v15, 0' % sT[2])
                    a('v_subrev_u32 v12, s%d, v15' % sT[2])
                    a('v_cmp_eq_u32 vcc, 0, v15')
                    a('v_cndmask_b32 v12, v12, 0, vcc') if 0 else a('v_cndmask_b32 v12, v12, v15, vcc')
                    op = 'add'
                self.exec_('0xffff' if sh == 0 else '0x%x' % (1 | (0x7fff << 12)), 0)
                a('buffer_atomic_%s v12, v13, s[%d:%d], 0 offen' % (op, SJ, SJ + 3))
                self.exec_all()
        a.label('L_end')
        a('s_endpgm')
        for c in self.cold: c()
        a.label('CODE_END')
        a('s_endpgm')

from gen2 import add_phases
add_phases(Gen, globals())

def build(stamps=False, opt=None):
    g = Gen(stamps, opt)
    g.run()
    body = g.a.finish()
    hdr = '''; fused adaLN block: persistent single launch, 256 workgroups (one per CU)
; @launch grid=(256,1,1) block=(256,1,1) lds=163840
.amdgcn_target "amdgcn-amd-amdhsa--gfx950"
.text
.globl {n}_kernel
.p2align 8
.type {n}_kernel,@function
{n}_kernel:
'''.format(n=NAME)
    tail = '''
.section .rodata,"a"
.p2align 6
.amdhsa_kernel {n}_kernel
  .amdhsa_next_free_vgpr 512
  .amdhsa_next_free_sgpr 102
  .amdhsa_accum_offset 256
  .amdhsa_group_segment_fixed_size 0
  .amdhsa_kernarg_size 88
  .amdhsa_user_sgpr_count 2
  .amdhsa_user_sgpr_kernarg_segment_ptr 1
  .amdhsa_system_sgpr_workgroup_id_x 1
.end_amdhsa_kernel
'''.format(n=NAME)
    return hdr + body + tail, g

def parse(kvs):
    o = {}
    for kv in kvs:
        k, v = kv.split('=', 1)
        o[k] = int(v) if v.lstrip('-').isdigit() else v.replace('+', ' ')
    return o

if __name__ == '__main__':
    if len(sys.argv) > 2 and sys.argv[1] == 'var':
        o = parse(sys.argv[3:])
        txt, g = build(True, o)
        open('v_%s.s' % sys.argv[2], 'w').write(txt)
        open('v_%s.names' % sys.argv[2], 'w').write('\n'.join(g.names))
        txt, g = build(False, o)
        open('p_%s.s' % sys.argv[2], 'w').write(txt)
    else:
        out = 'cdna_kernels/%s.s' % NAME
        txt, g = build(False)
        open(out, 'w').write(txt)
        print('written', out, len(txt), 'bytes; nops', g.a.npad)
```

```python
import sys, os, math
sys.path.insert(0, os.path.dirname(os.path.abspath(__file__)))
from asmlib import *

NAME = 'adaLN_cond__sliding_local_dilated__dense_activation_silu__prompt'

JF   = 0x1000
CF   = 0x60000
FO   = 0x2000
FY   = 0xA000
FH   = 0x12000
FX   = 0x1A000
XI   = 0x22000
MODP = 0x24000
ST   = 0x40000
W2T  = 0x80000
W4T  = W2T + 819200
WO_  = W4T + 1966080
WY   = WO_ + 2621440
WH   = WY + 2621440
WHB  = WH + 6291456
W1C  = WHB + 2621440
DBG  = W1C + 2457600 + 256
WSZ  = DBG + 1024 * 256

RGN   = 38400
SPARE = 153600
HST   = SPARE + 8192
MRED  = SPARE + 8704
HP    = 76800
EX    = 76800 + 12288
RED   = 92160
X1S   = 122880
UT    = 143360
GA_, C2F, GB_, C2B, S2B = SPARE, SPARE + 2560, SPARE + 5120, SPARE + 7680, SPARE + 8960
TOFF = [0, 48, 80, 128, 32, 160, 208, 192]

sW, sC, sJ, sTAG, sCI = 3, 4, 5, 6, 7
pX, pQ, pWO, pW1, pW2, pC, pWM, pOUT, pWS = 8, 10, 12, 16, 18, 20, 22, 24, 28
SX, SQ, SW, SO, S1, SJ = 32, 36, 40, 44, 48, 52
sRG, sCG = 30, 31
sP = [56, 57, 58, 59, 60, 61, 62, 63, 64, 65, 66, 67]
sB3M, sB4O = 68, 69
sG0, sG1 = 70, 72
jD = [74, 75, 76]; jS = [77, 78, 79]
sJ0, sJ1 = 100, 101
sTQ = 100
sNM = 80
sMO = 81
sRB = 82
sXO = 83
sB1 = 84
sPROD = 85
sT = [86, 87, 88, 89, 90, 91, 92, 93]
sCNT = 94
sONE = 95
sHI = 96
sFAIL = 97
sSLOW = 14
sN = 15
sTILE = 26
sSL2 = 27
sCP = 97
CPP = 976

LOG2E = 1.4426950408889634
def f2u(x):
    import struct
    return struct.unpack('<I', struct.pack('<f', x))[0]

DEF = dict(bpol='sc1', jpol='nt', hpol='nt', fast=0, cwarm=1, wpol='sc1', w1pol='', apol='sc1', spol='', touch=0, early=1, lin=1, gp0=12, t2='x', t3a='x', t3b='x', t4a='x', t4b='x', fine=0, exp='',
           ord='cmf', role='p', cp='c', xo=0, e2=3, pre=3, xpol='sc1', cf1=0, m1=1, nb0=8, mpg=1, la0=4, nb2=12, rb1=3, ra0=2, cpol='', ra1=4, la1=8, jfi=13, jfc=15, g_pump=4, at_pump=21,
           la2=12, la3=12, la4=12, ra3=3, o_pre=0, p2_pump=10, y_pre=0, p3_pump=60, h_pre=0)

class Gen:
    def __init__(self, stamps=False, opt=None):
        self.a = Asm()
        self.stamps = stamps
        self.o = dict(DEF); self.o.update(opt or {})
        self.nst = 0
        self.fq = []
        self.cold = []
        self.level = 0

    def stamp(self, name, idx=None):
        if not self.stamps: return
        a = self.a
        idx = self.nst if idx is None else idx
        a.c('stamp %d %s' % (idx, name))
        if name == 'karg':
            a.wait_lg()
            a('v_writelane_b32 v15, s98, 40')
        a('s_memtime s[98:99]' if self.o.get('cyc') else 's_memrealtime s[98:99]')
        a.wait_lg()
        a('v_writelane_b32 v15, s98, %d' % idx)
        if name == 'gemm0' and self.o.get('amp', 0) in (42, 43):
            a('s_mov_b32 s98, 0x%x' % (DBG - 256))
            a('s_or_b32 s99, s2, s%d' % sW)
            a('s_cmp_eq_u32 s99, 0')
            a('s_cselect_b32 exec_hi, 256, 0')
            a('s_mov_b32 exec_lo, 0')
            a('buffer_store_dword v15, off, s[%d:%d], s98 sc0 sc1' % (SW, SW + 3))
            a('s_mov_b64 exec, -1')
        self.nm = getattr(self, 'nm', {})
        self.nm[idx] = name
        self.nst = max(self.nst, idx + 1)
        self.names = [self.nm.get(i, '-') for i in range(self.nst)]

    def srd(self, d, p, n):
        a = self.a
        a('s_mov_b32 s%d, s%d' % (d, p))
        a('s_and_b32 s%d, s%d, 0xffff' % (d + 1, p + 1))
        a('s_mov_b32 s%d, %d' % (d + 2, n))
        a('s_mov_b32 s%d, 0x20000' % (d + 3))

    def exec_(self, lo, hi):
        self.a('s_mov_b32 exec_lo, %s' % lo)
        self.a('s_mov_b32 exec_hi, %s' % hi)
    def exec_all(self):
        self.a('s_mov_b64 exec, -1')

    def barrier(self):
        self.a.wait_lg()
        self.a('s_barrier')

    def rowsum(self, regs, tmp):
        a = self.a
        for sw in ('v_permlane32_swap_b32', 'v_permlane16_swap_b32'):
            for i, r in enumerate(regs): a('v_mov_b32 v%d, v%d' % (tmp + i, r))
            for i, r in enumerate(regs): a('%s v%d, v%d' % (sw, r, tmp + i))
            for i, r in enumerate(regs): a('v_add_f32 v%d, v%d, v%d' % (r, r, tmp + i))

    def finstats(self, s1, s2, t):
        a = self.a
        a('v_mul_f32 v%d, 0x%x, v%d' % (s1, f2u(1 / 640), s1))
        a('v_mul_f32 v%d, v%d, v%d' % (t, s1, s1))
        a('v_fma_f32 v%d, v%d, s%d, -v%d' % (s2, s2, sT[7], t))
        a('v_max_f32 v%d, 0, v%d' % (s2, s2))
        a('v_add_f32 v%d, 0x%x, v%d' % (s2, f2u(1e-5), s2))
        a('v_rsq_f32 v%d, v%d' % (s2, s2))

    def poll(self, vaddr, soff, vt):
        a = self.a
        L, D = a.newlabel('poll'), a.newlabel('pdone')
        a('s_mov_b32 s%d, 0x8000' % sCNT)
        a.label(L)
        a('buffer_load_dword v%d, v%d, s[%d:%d], s%d offen sc1' % (vt, vaddr, SW, SW + 3, soff))
        a.wait_vm()
        a('v_cmp_ne_u32 vcc, s%d, v%d' % (sTAG, vt))
        a('s_cbranch_vccz %s' % D)
        a('s_sub_u32 s%d, s%d, 1' % (sCNT, sCNT))
        a('s_cmp_lg_u32 s%d, 0' % sCNT)
        a('s_cbranch_scc1 %s' % L)
        a.label(D)

    def mod_issue(self, vecs, r0, vaddr, tag, NP=2):
        a = self.a
        for i, vec in enumerate(vecs):
            for p in range(NP):
                a('s_mov_b32 s%d, 0x%x' % (sT[0], MODP + p * 15360 + vec * 2560))
                a('buffer_load_dwordx4 %s, v%d, s[%d:%d], s%d offen sc1' % (V(r0 + 4 * NP * i + 4 * p, 4), vaddr, SW, SW + 3, sT[0]), tag)

    def mod_check(self, vecs, r0, vaddr, tag, t, NP=2):
        a = self.a
        L, C, D = a.newlabel('mchk'), a.newlabel('mcold'), a.newlabel('mok')
        N = 4 * NP * len(vecs)
        a('s_mov_b32 s%d, 0x8000' % sCNT)
        for e in range(4): a('s_bfe_u32 s%d, s%d, 0x%x' % (sT[1 + e], sTAG, 0x80000 + 8 * e))
        a.wait_vm(tag)
        a.label(L)
        for x in range(N):
            a('v_xor_b32 v%d, s%d, v%d' % (r0 + x, sT[1 + (x & 3)], r0 + x))
            if x == 1: a('v_or_b32 v%d, v%d, v%d' % (t, r0, r0 + 1))
            elif x & 1: a('v_or3_b32 v%d, v%d, v%d, v%d' % (t, t, r0 + x - 1, r0 + x))
        a('v_cmp_ne_u32_sdwa vcc, v%d, v%d src0_sel:BYTE_0 src1_sel:BYTE_3' % (t, 0))
        a('s_cbranch_vccnz %s' % C)
        a.label(D)
        def cold():
            a.label(C)
            a('s_add_u32 s%d, s%d, 1' % (sFAIL, sFAIL))
            a('s_sub_u32 s%d, s%d, 1' % (sCNT, sCNT))
            a('s_cmp_eq_u32 s%d, 0' % sCNT)
            a('s_cbranch_scc1 %s' % D)
            self.mod_issue(vecs, r0, vaddr, None, NP)
            a('s_waitcnt vmcnt(0)')
            a('s_branch %s' % L)
        self.cold.append(cold)
        for p in range(1, NP):
            for i in range(len(vecs)):
                r = r0 + 4 * NP * i
                for e in (0, 2): a('v_pk_add_f32 %s, %s, %s' % (V(r + e, 2), V(r + e, 2), V(r + 4 * p + e, 2)))
        for i in range(len(vecs)):
            r = r0 + 4 * NP * i
            a('v_cvt_pk_bf16_f32 v%d, v%d, v%d' % (r, r, r + 1))
            a('v_cvt_pk_bf16_f32 v%d, v%d, v%d' % (r + 1, r + 2, r + 3))

    def unpack4(self, d, s):
        a = self.a
        a('v_lshlrev_b32 v%d, 16, v%d' % (d, s))
        a('v_and_b32 v%d, s%d, v%d' % (d + 1, sHI, s))
        a('v_lshlrev_b32 v%d, 16, v%d' % (d + 2, s + 1))
        a('v_and_b32 v%d, s%d, v%d' % (d + 3, sHI, s + 1))

    def plus1(self, r):
        a = self.a
        self.unpack4(r + 4, r)
        for e in range(4): a('v_add_f32 v%d, 1.0, v%d' % (r + 4 + e, r + 4 + e))
        a('v_cvt_pk_bf16_f32 v%d, v%d, v%d' % (r, r + 4, r + 5))
        a('v_cvt_pk_bf16_f32 v%d, v%d, v%d' % (r + 1, r + 6, r + 7))

    def mfma(self, d, wa, act, first=False):
        c = '0' if first else R(d, 4)
        return 'v_mfma_f32_16x16x32_bf16 %s, %s, %s, %s' % (R(d, 4), R(wa, 4), R(act, 4), c)

    def pump(self, k=1):
        while k > 0 and self.fq and self.fq[0][0] <= self.level:
            self.fq.pop(0)[1]()
            k -= 1
    def flush(self, name):
        while any(e[2] == name for e in self.fq):
            assert self.fq[0][0] <= self.level
            self.fq.pop(0)[1]()

    def st2(self, texts, tag=None, sl=None):
        a = self.a
        if not self.o['fast']:
            for t in texts:
                if t.startswith('buffer'): a(t + ' sc1', tag)
                else: a(t)
            return
        Ls, Ld = a.newlabel('slow'), a.newlabel('sdone')
        a('s_cmp_lg_u32 s%d, 0' % (sSLOW if sl is None else sl))
        a('s_cbranch_scc1 %s' % Ls)
        for t in texts: a(t + (' ' + self.o['spol'] if t.startswith('buffer') else ''), tag)
        a.label(Ld)
        def cold():
            a.label(Ls)
            a('s_nop 4')
            for t in texts: a.items.append(Ins(t + (' sc1' if t.startswith('buffer') else '')))
            a('s_nop 1')
            a('s_branch %s' % Ld)
        self.cold.append(cold)

    def flagstore(self, soff, sl=None):
        a = self.a
        D = a.newlabel('pub')
        a('s_cmp_lg_u32 s%d, 0' % sW)
        a('s_cbranch_scc1 %s' % D)
        a('v_mov_b32 v14, s%d' % sTAG)
        self.exec_(1, 0)
        save = list(a.vm)
        self.st2(['buffer_store_dword v14, off, s[%d:%d], s%d' % (SW, SW + 3, soff)], None, sl)
        a.vm = save
        self.exec_all()
        a.label(D)

    def publish(self, base, tag=None, touch=None):
        a = self.a
        a('s_lshl_b32 s%d, s%d, 7' % (sT[0], sCI))
        a('s_add_u32 s%d, s%d, 0x%x' % (sT[0], sT[0], base))
        if touch and self.o['touch']: touch[0]()
        a.wait_vm(tag)
        if touch and self.o['touch']: touch[1]()
        self.barrier()
        self.flagstore(sT[0])

    def xi_issue(self, tag):
        a = self.a
        a('s_lshl_b32 s%d, s%d, 7' % (sT[0], sC))
        a('s_add_u32 s%d, s%d, 0x%x' % (sT[0], sT[0], XI))
        a('v_lshlrev_b32 v32, 2, v2')
        a('buffer_load_dword v33, v32, s[%d:%d], s%d offen sc1' % (SW, SW + 3, sT[0]), tag)
    def xi_check(self, tag):
        a = self.a
        L, D = a.newlabel('xi'), a.newlabel('xiok')
        a.wait_vm(tag)
        a('s_mov_b32 s%d, 0x8000' % sCNT)
        a.label(L)
        a('v_subrev_u32 v33, s%d, v33' % sTAG)
        a('v_cmp_lt_u32 vcc, 15, v33')
        a('s_cbranch_vccz %s' % D)
        a('s_sub_u32 s%d, s%d, 1' % (sCNT, sCNT))
        a('s_cmp_eq_u32 s%d, 0' % sCNT)
        a('s_cbranch_scc1 %s' % D)
        save = list(a.vm)
        self.xi_issue(None)
        a('s_waitcnt vmcnt(0)')
        a.vm = save
        a('s_branch %s' % L)
        a.label(D)
        a('v_readfirstlane_b32 s%d, v33' % sT[0])
        a('v_cmp_ne_u32 vcc, s%d, v33' % sT[0])
        a('s_or_b32 s%d, vcc_lo, vcc_hi' % sSLOW)

    def b1_one(self, x, force=False, mask=None):
        a = self.a
        if force or x % 4 == 0:
            a('s_add_u32 m0, s%d, %d' % (sRB, 4096 * (x // 4)))
            a('s_add_u32 s%d, s%d, %d' % (sT[7], sB1, 4096 * (x // 4)))
        if mask is not None: a('s_mov_b32 exec_lo, s%d' % mask)
        if x == 37: a('s_mov_b32 exec_hi, 0')
        elif mask is not None: a('s_mov_b32 exec_hi, s%d' % mask)
        a('buffer_load_dwordx4 v1, s[%d:%d], s%d offen offset:%d %s lds' % (SW, SW + 3, sT[7], 1024 * (x & 3), self.o['bpol']), 'b1_%d' % (2 * x // 15))
        if x == 37 or mask is not None: self.exec_all()
    def b1_issue(self, x0, x1):
        for x in range(x0, x1): self.b1_one(x, x == x0)

    def xi_publish(self):
        a = self.a
        a.wait_lg()
        a('s_add_u32 s%d, s%d, 0x9e3779b9' % (sTAG, sTAG))

    def prologue(self):
        a = self.a
        a('s_cmp_ge_u32 s2, 256')
        a('s_cbranch_scc1 L_end')
        if self.stamps: a('s_memrealtime s[98:99]')
        a('s_load_dwordx16 s[8:23], s[0:1], 0')
        a('s_load_dwordx4 s[24:27], s[0:1], 64')
        a('s_load_dwordx2 s[28:29], s[0:1], 80')
        if self.o['cwarm']:
            a('s_getpc_b64 s[%d:%d]' % (SJ, SJ + 1))
            a('s_and_b32 s%d, s%d, 0xffff' % (SJ + 1, SJ + 1))
            a('s_mov_b32 s%d, CODE_END-%s_kernel-64' % (SJ + 2, NAME))
            a('s_mov_b32 s%d, 0x20000' % (SJ + 3))
            a('s_bfe_u32 s%d, s2, 0x10003' % sT[0])
            a('s_lshl_b32 s%d, s%d, 15' % (sT[0], sT[0]))
            a('v_lshl_add_u32 v1, v0, 7, s%d' % sT[0])
            a('buffer_load_dword v255, v1, s[%d:%d], 0 offen' % (SJ, SJ + 3), 'cw')
        a('v_lshrrev_b32 v1, 6, v0')
        a('v_and_b32 v0, 63, v0')
        a('v_readfirstlane_b32 s%d, v1' % sW)
        a('v_lshlrev_b32 v1, 4, v0')
        if self.stamps: a('v_mov_b32 v15, 0')
        assert not self.o['fast']
        a('s_and_b32 s%d, s2, 7' % sT[0])
        a('s_lshr_b32 s%d, s2, 7' % sT[1])
        a('s_lshl1_add_u32 s%d, s%d, s%d' % (sC, sT[0], sT[1]))
        a('s_bfe_u32 s%d, s2, 0x40003' % sJ)
        a('s_lshl4_add_u32 s%d, s%d, s%d' % (sCI, sC, sJ))
        a('s_lshr_b32 s%d, s%d, 3' % (sRG, sJ))
        a('s_and_b32 s%d, s%d, 7' % (sCG, sJ))
        a('s_mov_b32 s%d, 0x3f803f80' % sONE)
        a('s_mov_b32 s%d, 0xffff0000' % sHI)
        a('s_mul_i32 s%d, s%d, %d' % (sRB, sW, RGN))
        a('s_mul_i32 s%d, s%d, 153600' % (sB1, sJ))
        a('s_add_u32 s%d, s%d, s%d' % (sB1, sB1, sRB))
        a('s_add_u32 s%d, s%d, 0x%x' % (sB1, sB1, W1C))
        a('v_and_b32 v2, 15, v0')
        a('v_lshrrev_b32 v3, 4, v0')
        a('v_lshrrev_b32 v36, 5, v0')
        a('v_bfe_u32 v37, v0, 3, 2')
        a('v_lshl_add_u32 v36, v36, 3, v37')
        a('v_and_b32 v37, 0x70, v1')
        a('v_mul_u32_u24 v38, 7680, v36')
        a('v_add_u32 v38, v38, v37')
        a('v_mul_u32_u24 v39, 1280, v36')
        a('v_add_u32 v39, v39, v37')
        a('v_lshlrev_b32 v41, 2, v0')
        a('v_mul_u32_u24 v6, 13, v0')
        a('v_lshrrev_b32 v6, 8, v6')
        a('v_mul_u32_u24 v6, 960, v6')
        a('v_add_u32 v6, v6, v1')
        a('v_mul_u32_u24 v43, 1280, v2')
        a('v_lshl_add_u32 v43, v3, 4, v43')
        a('s_lshr_b32 s%d, s%d, 1' % (sT[2], sJ))
        a('s_lshl3_add_u32 s%d, s%d, s%d' % (sT[3], sT[1], sT[2]))
        a('s_lshl3_add_u32 s%d, s%d, s%d' % (sT[3], sT[3], sT[0]))
        a('s_lshl3_add_u32 s%d, s%d, s%d' % (sXO, sC, sT[2]))
        a('s_xor_b32 s%d, s%d, s%d' % (sT[1], sT[1], sJ))
        a('s_and_b32 s%d, s%d, 1' % (sT[1], sT[1]))
        a('s_sub_u32 s%d, 0, s%d' % (sPROD, sT[1]))
        Lp, Ld = a.newlabel('prod'), a.newlabel('join')
        a('s_cbranch_scc1 %s' % Lp)
        save = (list(a.vm), list(a.lg))
        self.plain()
        a('s_branch %s' % Ld)
        q = list(a.vm)
        a.vm, a.lg = save
        a.label(Lp)
        self.producer()
        assert q == a.vm, (q, a.vm)
        a.label(Ld)

    def staging(self):
        a = self.a
        a('s_lshl_b32 s%d, s%d, 11' % (sT[0], sW))
        a('s_add_u32 s%d, s%d, %d' % (sT[0], sT[0], SPARE))
        a('v_and_b32 v42, 0x30, v0')
        a('v_lshlrev_b32 v42, 1, v42')
        a('v_xor_b32 v42, v42, v1')
        a('v_add_u32 v42, s%d, v42' % sT[0])
        a('v_lshrrev_b32 v140, 2, v0')
        a('v_and_b32 v141, 6, v140')
        a('v_lshlrev_b32 v141, 4, v141')
        a('v_lshl_add_u32 v140, v140, 7, v141')
        a('v_and_b32 v141, 3, v0')
        a('v_lshl_add_u32 v140, v141, 3, v140')
        a('v_add_u32 v140, s%d, v140' % sT[0])
        for T in range(1, 4): a('v_xor_b32 v%d, %d, v140' % (140 + T, 32 * T))
        a('v_add_u32 v41, s%d, v41' % sT[0])
        a('v_lshl_add_u32 v45, v3, 4, s%d' % sT[0])
        a('v_lshl_add_u32 v145, v3, 6, s%d' % sT[0])
        a('s_lshl_b32 s%d, s%d, 8' % (sT[0], sW))
        a('s_add_u32 s%d, s%d, %d' % (sT[0], sT[0], MRED))
        a('v_lshl_add_u32 v144, v3, 4, s%d' % sT[0])
        a('v_lshlrev_b32 v146, 4, v2')
        a('v_add_u32 v147, %d, v146' % MRED)
    def silu(self, nu, C=44, D=128, tag='c'):
        a = self.a
        a.wait_vm(tag)
        a('v_lshlrev_b32 v46, 16, v%d' % C)
        a('v_and_b32 v47, s%d, v%d' % (sHI, C))
        for r in (46, 47): a('v_mul_f32 v%d, 0x%x, v%d' % (r + 2, f2u(-LOG2E), r))
        for r in (46, 47): a('v_exp_f32 v%d, v%d' % (r + 2, r + 2))
        for r in (46, 47): a('v_add_f32 v%d, 1.0, v%d' % (r + 2, r + 2))
        for r in (46, 47): a('v_rcp_f32 v%d, v%d' % (r + 2, r + 2))
        for r in (46, 47): a('v_mul_f32 v%d, v%d, v%d' % (r, r, r + 2))
        a('v_cvt_pk_bf16_f32 v44, v46, v47')
        a('ds_write_b32 v41, v44')
        for u in range(nu):
            a('ds_read_b128 %s, v45 offset:%d' % (V(D + 4 * u, 4), 64 * u), 'silu')
    def mod_write(self, MA=60):
        a = self.a
        self.exec_('0x00010001', '0x00010001')
        a('s_nop 6')
        for T in range(4): a('ds_write_b128 v144, %s offset:%d' % (V(MA + 4 * T, 4), 64 * T))
        self.exec_all()
    def mod_publish(self, MA=60, sNM=sNM, sMO=sMO):
        a = self.a
        Ld = a.newlabel('nomod')
        a('s_cmp_eq_u32 s%d, 0' % sNM)
        a('s_cselect_b32 s%d, 1, s%d' % (sT[5], sW))
        a('s_cmp_lg_u32 s%d, 0' % sT[5])
        a('s_cselect_b32 s%d, 0, 0xffff' % sT[5])
        a('s_cbranch_scc1 %s' % Ld)
        for i in range(4): a('ds_read_b128 %s, v147 offset:%d' % (V(MA + 4 * i, 4), 256 * i))
        a('s_mov_b32 s%d, 0xffffff00' % sT[0])
        for e in range(4): a('s_bfe_u32 s%d, s%d, 0x%x' % (sT[1 + e], sTAG, 0x80000 + 8 * e))
        a.wait_lg()
        for hh in (0, 2):
            a('v_pk_add_f32 %s, %s, %s' % (V(MA + hh, 2), V(MA + hh, 2), V(MA + 4 + hh, 2)))
            a('v_pk_add_f32 %s, %s, %s' % (V(MA + 8 + hh, 2), V(MA + 8 + hh, 2), V(MA + 12 + hh, 2)))
        for hh in (0, 2):
            a('v_pk_add_f32 %s, %s, %s' % (V(MA + hh, 2), V(MA + hh, 2), V(MA + 8 + hh, 2)))
        for e in range(4): a('v_and_b32 v%d, s%d, v%d' % (MA + e, sT[0], MA + e))
        for e in range(4): a('v_or_b32 v%d, s%d, v%d' % (MA + e, sT[1 + e], MA + e))
        a.label(Ld)
        self.exec_('s%d' % sT[5], 0)
        a('buffer_store_dwordx4 %s, v146, s[%d:%d], s%d offen sc1' % (V(MA, 4), SW, SW + 3, sMO), 'mp')
        self.exec_all()
    def cf_addr(self):
        a = self.a
        a('s_lshl_b32 s%d, s%d, 12' % (sT[6], sJ))
        a('s_mul_i32 s%d, s%d, 640' % (sT[0], sW))
        a('s_add_u32 s%d, s%d, s%d' % (sT[6], sT[6], sT[0]))
        a('s_add_u32 s%d, s%d, 0x%x' % (sT[6], sT[6], CF))
        a('v_and_b32 v50, 7, v0')
        a('v_min_u32 v50, 4, v50')
        a('v_lshlrev_b32 v50, 7, v50')

    def cp_setup(self):
        a = self.a
        a('s_sub_u32 s%d, s%d, 48' % (sT[1], sT[3]))
        a('s_cselect_b32 s%d, 0, -1' % sCP)
        a('s_and_b32 s%d, s%d, s%d' % (sT[1], sT[1], sCP))
        a('s_lshr_b32 s%d, s%d, 2' % (sT[0], sT[1]))
        a('s_and_b32 s%d, s%d, 3' % (sT[1], sT[1]))
        a('s_lshl2_add_u32 s%d, s%d, s%d' % (sT[2], sT[0], sW))
        a('s_mul_i32 s%d, s%d, %d' % (sT[2], sT[2], 8 * 3840))
        a('s_mul_i32 s%d, s%d, 320' % (sT[4], sT[1]))
        a('s_add_u32 s%d, s%d, s%d' % (sT[2], sT[2], sT[4]))
        a('s_lshl2_add_u32 s%d, s%d, s%d' % (sT[1], sT[1], sW))
        a('s_mul_i32 s%d, s%d, 20' % (sT[4], sT[1]))
        a('s_add_u32 s%d, s%d, s%d' % (sT[4], sT[4], sT[0]))
        a('s_mul_i32 s%d, s%d, 7680' % (sG0, sT[4]))
        a('s_add_u32 s%d, s%d, 0x%x' % (sG0, sG0, W1C))
        a('s_lshl_b32 s%d, s%d, 5' % (sT[1], sT[1]))
        a('s_add_u32 s%d, s%d, s%d' % (sT[1], sT[1], sT[0]))
        a('s_lshl_b32 s%d, s%d, 7' % (sG0 + 1, sT[1]))
        a('s_add_u32 s%d, s%d, 0x%x' % (sG0 + 1, sG0 + 1, CF))
        a('s_mul_i32 m0, s%d, %d' % (sW, 8 * CPP))
    def cp_load(self):
        a = self.a
        self.srd(SQ, pQ, 640 * 3840)
        a('s_mov_b32 exec_lo, s%d' % sCP)
        a('s_lshr_b32 exec_hi, s%d, 4' % sCP)
        for x in range(8):
            a('buffer_load_dwordx4 v6, s[%d:%d], s%d offen %s lds' % (SQ, SQ + 3, sT[2], self.o['cpol']), 'cp')
            if x < 7:
                a('s_add_u32 m0, m0, %d' % CPP)
                a('s_add_u32 s%d, s%d, 3840' % (sT[2], sT[2]))
        self.exec_all()
    def cp_store(self):
        a = self.a
        a('s_mul_i32 s%d, s%d, 80' % (sT[0], sW))
        a('v_lshrrev_b32 v216, 2, v0')
        a('v_mul_u32_u24 v216, %d, v216' % (2 * CPP))
        a('v_and_b32 v217, 3, v0')
        a('v_lshl_add_u32 v216, v217, 3, v216')
        a('v_add_u32 v216, s%d, v216' % sT[0])
        a('v_and_b32 v217, 2, v0')
        a('v_mul_u32_u24 v217, 152, v217')
        a('v_add_u32 v217, v217, v216')
        a('v_add_u32 v218, 4096, v152')
        a.wait_vm('cp')
        a('s_barrier')
        for T, off in enumerate([0, 48, 320, 368, 32, 640, 688, 672]):
            for h in range(2):
                a('ds_read_b64_tr_b16 %s, v%d offset:%d' % (V(220 + 4 * T + 2 * h, 2), 217 if T == 4 else 216, off + CPP * h), 'ct%d' % T)
        for T in range(8):
            a.wait_lg('ct%d' % T)
            for d in range(4):
                r = 220 + 4 * T + d
                a('v_lshlrev_b32 v%d, 16, v%d' % (212 + d, r))
                a('v_and_b32 v%d, s%d, v%d' % (r, sHI, r))
            for d in range(4): a('v_cvt_pk_f16_f32 v%d, v%d, v%d' % (220 + 4 * T + d, 212 + d, 220 + 4 * T + d))
            if T == 7:
                a('s_and_b32 exec_lo, s%d, 0x00ff00ff' % sCP)
                a('s_mov_b32 exec_hi, exec_lo')
            else: self.exec_('s%d' % sCP, 's%d' % sCP)
            a('buffer_store_dwordx4 %s, v%d, s[%d:%d], s%d offen offset:%d sc1' % (V(220 + 4 * T, 4), 218 if T == 7 else 1 if T < 4 else 5, SW, SW + 3, sG0, 1024 * (T & 3)), 'cs')
            self.exec_all()
        self.stamp('cs', 7)
    def cp_flag(self):
        a = self.a
        a('v_mov_b32 v14, s%d' % sTAG)
        a('s_and_b32 exec_lo, s%d, 1' % sCP)
        a('s_mov_b32 exec_hi, 0')
        a.wait_vm('cs')
        a('buffer_store_dword v14, off, s[%d:%d], s%d sc1' % (SW, SW + 3, sG0 + 1))
        self.exec_all()
        self.stamp('cf', 8)

    def plain(self):
        a = self.a
        sG2 = sG1 + 1
        a('s_mul_i32 s%d, s%d, 205' % (sT[0], sT[3]))
        a('s_lshr_b32 s%d, s%d, 10' % (sT[0], sT[0]))
        a('s_mul_i32 s%d, s%d, 5' % (sT[1], sT[0]))
        a('s_sub_u32 s%d, s%d, s%d' % (sT[1], sT[3], sT[1]))
        a('s_lshl2_add_u32 s%d, s%d, s%d' % (sT[2], sT[1], sW))
        a('s_lshl_b32 s%d, s%d, 6' % (sT[6], sT[2]))
        a('s_mul_i32 s%d, s%d, %d' % (sT[5], sT[2], 32 * 7680))
        a('s_lshl_b32 s%d, s%d, 7' % (sT[4], sT[0]))
        a('s_add_u32 s%d, s%d, s%d' % (sT[5], sT[5], sT[4]))
        a('s_mul_i32 s%d, s%d, 15360' % (sG2, sT[1]))
        a('s_lshl1_add_u32 s%d, s%d, s%d' % (sG2, sT[4], sG2))
        a('s_add_u32 s%d, s%d, 0x%x' % (sG2, sG2, MODP))
        a('s_cmp_lt_u32 s%d, 100' % sT[3])
        a('s_cselect_b32 s%d, -1, 0' % sG1)
        a('v_add_u32 v44, s%d, v41' % sT[6])
        CP = self.o['cp'] == 'c'
        if CP: self.cp_setup()
        a.wait_lg()
        self.stamp('karg', 0)
        a('s_load_dword s%d, s[%d:%d], 0' % (sTAG, pWS, pWS + 1))
        a('s_mov_b32 s%d, s%d' % (sN, sT[3]))
        self.srd(S1, pC, 1280)
        a('buffer_load_dword v44, v44, s[%d:%d], 0 offen' % (S1, S1 + 3), 'c')
        self.srd(SJ, pWM, 640 * 7680)
        self.exec_('s%d' % sG1, 's%d' % sG1)
        self.unit_load(176, 38, sT[5], 7680, 'mc')
        self.exec_all()
        if CP: self.cp_load()
        J = self.o['role'] == 'c'
        if J:
            self.job_setup()
            a('buffer_load_dword v52, v52, s[%d:%d], 0 offen' % (S1, S1 + 3), 'c2')
            for u in range(self.o['early']): self.slot(u)
        self.srd(SW, pWS, WSZ)
        self.srd(SX, pX, 2048 * 1280)
        self.staging()
        self.xi_publish()
        self.stamp('issued', 1)
        self.setup()
        self.silu(1, 44, 112)
        self.stamp('c', 2)
        def modpart():
            a.wait_vm('mc')
            self.unit_tr(176, 96)
            a.wait_lg()
            for T in range(4): a(self.mfma(60 + 4 * T, 96 + 4 * T, 112, first=True))
            self.mod_write()
            self.barrier()
            self.mod_publish(60, sG1, sG2)
            self.stamp('mpub', 3)
        def slots():
            if J:
                for u in range(self.o['early'], 3): self.slot(u)
        for c in self.o['ord']: dict(c=self.cp_store, m=modpart, f=self.cp_flag, s=slots)[c]()
        if J:
            self.silu(3, 52, 128, 'c2')
            self.p1_gemm('pre', lambda k: self.jobs(3) if k else self.jobs(0, 3))
        else: self.p1_gemm('pre')

    def unit_load(self, dst, va, soff, pitch, tag):
        a = self.a
        for q in range(4):
            h, gp = q >> 1, q & 1
            if isinstance(pitch, int):
                a('s_add_u32 s%d, s%d, %d' % (sT[7], soff, (16 * gp + 4 * h) * pitch))
            else:
                a('s_mul_i32 s%d, %s, %d' % (sT[7], pitch, 16 * gp + 4 * h))
                a('s_add_u32 s%d, s%d, s%d' % (sT[7], sT[7], soff))
            a('buffer_load_dwordx4 %s, v%d, s[%d:%d], s%d offen %s' % (R(dst + 4 * q, 4), va, SJ, SJ + 3, sT[7], self.o['jpol']), tag)
    def unit_tr(self, src, f):
        a = self.a
        for h in range(2):
            for gp in range(2): a('ds_write_b128 v42, %s offset:%d' % (R(src + 8 * h + 4 * gp, 4), 1024 * gp))
            for T in range(4): a('ds_read_b64_tr_b16 %s, v%d' % (V(f + 4 * T + 2 * h, 2), 140 + T), 'jf%d' % f)
    def unit_store(self, f, mask, dst):
        a = self.a
        self.exec_('s%d' % mask, 's%d' % mask)
        for T in range(4):
            a('buffer_store_dwordx4 %s, v1, s[%d:%d], s%d offen offset:%d sc1' % (V(f + 4 * T, 4), SW, SW + 3, dst, 1024 * T), 'jst')
        self.exec_all()

    def job_setup(self):
        a = self.a
        a('s_lshr_b32 s%d, s%d, 1' % (sT[0], sN))
        a('s_and_b32 s%d, s%d, 1' % (sT[1], sN))
        a('s_sub_u32 s%d, 3, s%d' % (sNM, sT[1]))
        a('s_mul_i32 s%d, s%d, s%d' % (sT[2], sNM, sW))
        a('s_mul_i32 s%d, s%d, 12' % (sT[4], sT[1]))
        a('s_add_u32 s%d, s%d, s%d' % (sT[2], sT[2], sT[4]))
        a('s_lshl_b32 s%d, s%d, 6' % (sT[6], sT[2]))
        a('v_lshl_add_u32 v52, v0, 2, s%d' % sT[6])
        a('s_mul_i32 s%d, s%d, %d' % (sT[6], sT[2], 32 * 7680))
        a('s_lshl_b32 s%d, s%d, 7' % (sT[4], sT[0]))
        a('s_add_u32 s%d, s%d, 2560' % (sT[4], sT[4]))
        a('s_add_u32 s%d, s%d, s%d' % (sT[6], sT[6], sT[4]))
        a('s_mul_i32 s%d, s%d, 15360' % (sMO, sT[1]))
        a('s_lshl1_add_u32 s%d, s%d, s%d' % (sMO, sT[4], sMO))
        a('s_add_u32 s%d, s%d, 0x%x' % (sMO, sMO, MODP))
        a('s_sub_u32 s%d, s%d, 2' % (sT[0], sT[0]))
        a('s_mul_i32 s%d, s%d, 3' % (sT[1], sN))
        a('s_sub_u32 s%d, s%d, 200' % (sT[1], sT[1]))
        a('s_cmp_lt_u32 s%d, 80' % sN)
        a('s_cselect_b32 s%d, s%d, 0' % (sNM, sNM))
        a('s_cselect_b32 s%d, s%d, s%d' % (sT[0], sT[0], sT[1]))
        a('s_mov_b32 s%d, s%d' % (sJ0, sT[0]))
        a('s_mov_b32 s%d, s%d' % (sJ1, sT[6]))

    def slot(self, u):
        a = self.a
        ML = 256
        a('s_add_u32 s%d, s%d, %d' % (sT[1], sJ0, u))
        if self.o['lin']:
            a('s_lshl2_add_u32 s%d, s%d, s%d' % (sT[3], sT[1], sW))
            a('s_mul_i32 s%d, s%d, 6554' % (sT[4], sT[3]))
            a('s_lshr_b32 s%d, s%d, 16' % (sT[4], sT[4]))
            a('s_mul_i32 s%d, s%d, 10' % (sT[2], sT[4]))
            a('s_sub_u32 s%d, s%d, s%d' % (sT[3], sT[3], sT[2]))
            a('s_lshr_b32 s%d, s%d, 2' % (sT[2], sT[4]))
        else:
            a('s_mul_i32 s%d, s%d, 205' % (sT[2], sT[1]))
            a('s_lshr_b32 s%d, s%d, 11' % (sT[2], sT[2]))
            a('s_mul_i32 s%d, s%d, 10' % (sT[3], sT[2]))
            a('s_sub_u32 s%d, s%d, s%d' % (sT[3], sT[1], sT[3]))
            a('s_lshl2_add_u32 s%d, s%d, s%d' % (sT[4], sT[2], sW))
        a('s_mul_i32 s%d, s%d, 40960' % (sT[4], sT[4]))
        a('s_lshl_b32 s%d, s%d, 12' % (jD[u], sT[3]))
        a('s_add_u32 s%d, s%d, s%d' % (jD[u], jD[u], sT[4]))
        a('s_add_u32 s%d, s%d, 0x%x' % (jD[u], jD[u], W2T))
        a('s_lshl_b32 s%d, s%d, 7' % (sT[3], sT[3]))
        a('s_add_u32 s%d, s%d, s%d' % (sT[4], sT[4], sT[3]))
        a('s_sub_u32 s%d, s%d, 819200' % (sT[3], sT[4]))
        a('s_cmp_lt_u32 s%d, 170' % sT[1])
        a('s_cselect_b32 s%d, -1, 0' % jS[u])
        a('s_cmp_lt_u32 s%d, 5' % sT[2])
        a('s_cselect_b32 s%d, s%d, s%d' % (SJ, pWO, pW2))
        a('s_cselect_b32 s%d, s%d, s%d' % (SJ + 1, pWO + 1, pW2 + 1))
        a('s_cselect_b32 s%d, 5, 12' % sT[2])
        a('s_cselect_b32 s%d, s%d, s%d' % (sT[4], sT[4], sT[3]))
        a('s_cmp_gt_u32 s%d, %d' % (sNM, u))
        a('s_cselect_b32 s%d, s%d, s%d' % (SJ, pWM, SJ))
        a('s_cselect_b32 s%d, s%d, s%d' % (SJ + 1, pWM + 1, SJ + 1))
        a('s_cselect_b32 s%d, 30, s%d' % (sT[2], sT[2]))
        a('s_cselect_b32 s%d, s%d, s%d' % (sT[4], sJ1, sT[4]))
        a('s_cselect_b32 s%d, 6, 1' % sT[3])
        a('s_cselect_b32 s%d, -1, s%d' % (sT[1], jS[u]))
        a('s_cselect_b32 s%d, 0, s%d' % (jS[u], jS[u]))
        a('s_cselect_b64 vcc, -1, 0')
        a('s_and_b32 s%d, s%d, 0xffff' % (SJ + 1, SJ + 1))
        a('s_mul_i32 s%d, s%d, 163840' % (SJ + 2, sT[2]))
        a('s_mul_i32 s%d, s%d, 1280' % (sT[3], sT[3]))
        a('v_cndmask_b32 v40, v39, v38, vcc')
        self.exec_('s%d' % sT[1], 's%d' % sT[1])
        self.unit_load(ML + 16 * u, 40, sT[4], 's%d' % sT[3], 'm%d' % u)
        self.exec_all()
        a('s_add_u32 s%d, s%d, %d' % (sJ1, sJ1, 32 * 7680))

    def producer(self):
        a = self.a
        ML, XR_, XF_, MA, SF, MG = 256, 76, 176, 60, 128, 216
        E = self.o['early']
        a('s_mul_i32 s%d, s%d, %d' % (sT[5], sXO, 16 * 1280))
        a('s_mul_i32 s%d, s%d, 320' % (sT[1], sW))
        a('s_add_u32 s%d, s%d, s%d' % (sT[5], sT[5], sT[1]))
        CP = self.o['cp'] == 'p'
        if CP: self.cp_setup()
        a.wait_lg()
        self.stamp('karg', 0)
        a('s_load_dword s%d, s[%d:%d], 0' % (sTAG, pWS, pWS + 1))
        if CP and self.o['xo'] == 0: self.cp_load()
        self.srd(SX, pX, 2048 * 1280)
        for s in range(5):
            a('buffer_load_dwordx4 %s, v43, s[%d:%d], s%d offen offset:%d %s' % (V(XR_ + 4 * s, 4), SX, SX + 3, sT[5], 64 * s, self.o['hpol']), 'xt')
        if CP and self.o['xo']: self.cp_load()
        J = self.o['role'] == 'p'
        E2 = max(E, self.o['e2'])
        if J:
            a('s_mov_b32 s%d, s%d' % (sN, sT[3]))
            self.srd(S1, pC, 1280)
            self.job_setup()
            a('buffer_load_dword v52, v52, s[%d:%d], 0 offen' % (S1, S1 + 3), 'c2')
            a('s_mov_b32 s%d, 0x20000' % (SJ + 3))
            for u in range(E): self.slot(u)
            self.staging()
        self.srd(SW, pWS, WSZ)
        self.xi_publish()
        self.stamp('issued', 1)
        self.setup()
        a('s_lshl2_add_u32 s%d, s%d, s%d' % (sTILE, sXO, sW))
        a('s_mul_i32 s%d, s%d, 5120' % (sTILE, sTILE))
        a('s_add_u32 s%d, s%d, 0x%x' % (sTILE, sTILE, WHB))
        a('v_mov_b32 v34, 0')
        a('v_mov_b32 v35, 0')
        a('s_lshl_b32 s%d, s%d, 7' % (sT[0], sW))
        a('s_add_u32 s%d, s%d, %d' % (sT[0], sT[0], HST))
        a('v_lshl_add_u32 v60, v2, 3, s%d' % sT[0])
        a('v_lshlrev_b32 v61, 3, v2')
        a('v_add_u32 v61, %d, v61' % HST)
        if CP and self.o['xo'] == 0: self.cp_store()
        a.wait_vm('xt')
        self.stamp('c', 2)
        if J:
            for u in range(E, E2): self.slot(u)
        for d in range(20):
            a('v_dot2c_f32_bf16 v34, s%d, v%d' % (sONE, XR_ + d))
            a('v_dot2c_f32_bf16 v35, v%d, v%d' % (XR_ + d, XR_ + d))
        self.rowsum([34, 35], 36)
        a('ds_write_b64 v60, v[34:35]')
        if CP and self.o['xo'] == 1: self.cp_store()
        self.barrier()
        for i in range(4): a('ds_read_b64 %s, v61 offset:%d' % (V(62 + 2 * i, 2), 128 * i))
        self.stamp('mpub', 3)
        for d in range(20):
            a('v_lshlrev_b32 v%d, 16, v%d' % (XF_ + 2 * d, XR_ + d))
            a('v_and_b32 v%d, s%d, v%d' % (XF_ + 1 + 2 * d, sHI, XR_ + d))
        a.wait_lg()
        a('v_pk_add_f32 v[62:63], v[62:63], v[64:65]')
        a('v_pk_add_f32 v[66:67], v[66:67], v[68:69]')
        a('v_pk_add_f32 v[34:35], v[62:63], v[66:67]')

        a('s_mov_b32 s%d, 0x%x' % (sT[7], f2u(1 / 640)))
        self.finstats(34, 35, 36)
        a('v_mul_f32 v34, -v34, v35')
        if CP and self.o['xo'] == 0: self.cp_flag()
        for s in range(5):
            r = XF_ + 8 * s
            for d in range(4):
                a('v_pk_fma_f32 %s, %s, v[34:35], v[34:35] op_sel:[0,1,0] op_sel_hi:[1,1,0]' % (V(r + 2 * d, 2), V(r + 2 * d, 2)))
            for d, (e0, e1) in enumerate(((0, 2), (4, 6), (1, 3), (5, 7))):
                a('v_cvt_pk_f16_f32 v%d, v%d, v%d' % (XR_ + 4 * s + d, r + e0, r + e1))
            a('buffer_store_dwordx4 %s, v%d, s[%d:%d], s%d offen offset:%d %s' % (V(XR_ + 4 * s, 4), 1 if s < 4 else 5, SW, SW + 3, sTILE, 1024 * (s & 3), self.o['xpol']), 'hst')
        self.stamp('hst', 4)
        if CP and self.o['xo'] == 2: self.cp_store()
        if CP and self.o['xo'] == 1: self.cp_flag()
        a('s_lshl_b32 s%d, s%d, 7' % (sT[0], sXO))
        a('s_add_u32 s%d, s%d, 0x%x' % (sT[0], sT[0], FX))
        if J:
            self.silu(3, 52, 128, 'c2')
            self.jobs(0, min(E2, self.o['pre']))
        a.wait_vm('hst')
        a('s_barrier')
        self.flagstore(sT[0])
        self.stamp('pub', 5)
        if CP and self.o['xo'] == 2: self.cp_flag()
        if J:
            for u in range(E2, 3): self.slot(u)
            self.p1_gemm('pre', lambda k: self.jobs(3) if k else self.jobs(min(E2, self.o['pre']), 3))
        else: self.p1_gemm('pre')

    def jobs(self, u0=0, u1=None):
        a = self.a
        ML, MA, SF = 256, 204, 128
        F = [96, 112, 176]
        for u in range(u0, 3 if u1 is None else u1):
            a.wait_vm('m%d' % u)
            self.unit_tr(ML + 16 * u, F[u])
        if u1 is not None: return
        for u in range(3):
            a.wait_lg('jf%d' % F[u])
            if u == 2:
                Ls = a.newlabel('nomf')
                a('s_cmp_lg_u32 s%d, 3' % sNM)
                a('s_cbranch_scc1 %s' % Ls)
            for T in range(4): a(self.mfma(MA + 4 * T, F[u] + 4 * T, SF + 4 * u, first=(u == 0)))
            if u == 2: a.label(Ls)
            self.unit_store(F[u], jS[u], jD[u])
        self.mod_write(MA)
        self.barrier()
        self.mod_publish(MA)
        self.stamp('jobs', 6)

    def jobflag(self):
        a = self.a
        a('s_lshl_b32 s%d, s%d, 2' % (sT[2], sN))
        a('s_add_u32 s%d, s%d, 0x%x' % (sT[2], sT[2], JF))
        a('v_mov_b32 v14, s%d' % sTAG)
        a('s_cmp_eq_u32 s%d, 1' % sW)
        a('s_cselect_b32 s%d, 1, 0' % sT[3])
        a('%s exec_lo, s%d, s%d' % ('s_andn2_b32' if self.o['role'] == 'c' else 's_and_b32', sT[3], sPROD))
        a('s_mov_b32 exec_hi, 0')
        a('buffer_store_dword v14, off, s[%d:%d], s%d sc1' % (SW, SW + 3, sT[2]))
        self.exec_all()

    def setup(self):
        a = self.a
        self.srd(SO, pOUT, 2048 * 1280)
        a('v_min_u32 v7, 39, v0')
        a('s_mul_i32 s%d, s%d, 40' % (sT[0], sW))
        a('v_add_lshl_u32 v7, v7, s%d, 4' % sT[0])
        a('v_add_u32 v5, 4096, v1')
        a('v_mov_b32 v8, v1')
        a('v_and_b32 v149, 0x70, v1')
        a('v_lshl_add_u32 v152, v3, 7, v149')
        for i in range(1, 4):
            a('v_add_u32 v%d, %d, v8' % (8 + i, RGN * i))
            a('v_add_u32 v%d, %d, v152' % (152 + i, RGN * i))
        a('v_add_u32 v12, s%d, v8' % sRB)
        a('v_add_u32 v156, s%d, v152' % sRB)
        a('s_lshr_b32 s%d, s%d, 1' % (sT[0], sW))
        a('s_mul_i32 s%d, s%d, %d' % (sT[0], sT[0], RGN - 12288))
        a('s_mul_i32 s%d, s%d, 6144' % (sT[1], sW))
        a('s_add_u32 s%d, s%d, s%d' % (sT[0], sT[0], sT[1]))
        a('s_add_u32 s%d, s%d, %d' % (sT[0], sT[0], HP))
        a('v_add_u32 v4, s%d, v1' % sT[0])
        a('s_cmp_eq_u32 s%d, 1' % sW)
        a('s_cselect_b32 s%d, 512, 0' % sT[0])
        a('v_or_b32 v157, s%d, v1' % sT[0])
        a('s_lshl_b32 s%d, s%d, 10' % (sT[0], sW))
        a('s_add_u32 s%d, s%d, %d' % (sT[0], sT[0], HP))
        a('v_add_u32 v157, s%d, v157' % sT[0])
        a('s_add_u32 s%d, s%d, 4' % (sT[1], sW))
        a('s_min_u32 s%d, s%d, 5' % (sT[1], sT[1]))
        a('s_lshl_b32 s%d, s%d, 10' % (sT[0], sT[1]))
        a('s_add_u32 s%d, s%d, %d' % (sT[0], sT[0], HP))
        a('v_add_u32 v158, s%d, v1' % sT[0])
        a('s_lshl_b32 s%d, s%d, 9' % (sT[0], sW))
        a('s_add_u32 s%d, s%d, %d' % (sT[0], sT[0], EX))
        a('v_lshl_add_u32 v159, v0, 3, s%d' % sT[0])
        a('s_lshl_b32 s%d, s%d, 9' % (sT[0], sT[1]))
        a('s_add_u32 s%d, s%d, %d' % (sT[0], sT[0], EX))
        a('v_lshl_add_u32 v160, v0, 3, s%d' % sT[0])
        a('s_mul_i32 s%d, s%d, 3072' % (sT[0], sW))
        a('s_add_u32 s%d, s%d, %d' % (sT[0], sT[0], EX))
        a('v_lshl_add_u32 v161, v0, 3, s%d' % sT[0])
        a('v_and_b32 v148, 1, v3')
        a('v_lshrrev_b32 v149, 1, v3')
        a('v_mad_u32_u24 v162, v148, 3, v149')
        a('v_lshlrev_b32 v150, 4, v2')
        a('v_lshl_add_u32 v162, v162, 8, v150')
        a('v_mul_u32_u24 v149, 20480, v149')
        a('v_lshl_add_u32 v163, v148, 3, v150')
        a('v_add_u32 v163, v163, v149')
        NEG = 0xff61b1e6
        a('s_or_b32 s%d, s%d, s%d' % (sT[0], sC, sW))
        a('s_cselect_b32 s%d, 0, 0x%x' % (sT[0], NEG))
        a('s_mov_b32 s%d, 0x80000001' % sT[1])
        a('s_mov_b32 s%d, 0x80000000' % sT[2])
        a('s_mov_b32 s%d, 0x07070303' % sT[3])
        a('v_mov_b32 v150, 0x%x' % NEG)
        a('v_lshlrev_b32 v148, 2, v3')
        a('v_sub_u32 v148, v2, v148')
        for e in range(4):
            a('v_subrev_u32 v149, %d, v148' % e)
            a('v_and_b32 v149, s%d, v149' % sT[1])
            a('v_cmp_ne_u32 vcc, 0, v149')
            a('v_cndmask_b32 v%d, 0, v150, vcc' % (16 + e))
            a('v_cmp_ne_u32 vcc, s%d, v149' % sT[2])
            a('v_cndmask_b32 v%d, 0, v150, vcc' % (20 + e))
            a('v_or_b32 v%d, s%d, v%d' % (24 + e, sT[0], 20 + e))
        for x, r in enumerate((20, 22, 16, 18)):
            a('v_perm_b32 v%d, v%d, v%d, s%d' % (28 + x, r + 1, r, sT[3]))
        a('s_lshl2_add_u32 s%d, s%d, s%d' % (sT[0], sC, sW))
        a('s_mul_i32 s%d, s%d, 40960' % (sT[0], sT[0]))
        for t in range(2):
            for i in range(4): a('s_add_u32 s%d, s%d, 0x%x' % (sP[4 * t + i], sT[0], WHB + 20480 * t + 5120 * i))
        a('s_mul_i32 s%d, s%d, 1280' % (sT[1], sJ))
        a('s_add_u32 s%d, s%d, s%d' % (sP[9], sT[0], sT[1]))
        a('s_add_u32 s%d, s%d, 0x%x' % (sP[9], sP[9], WO_))
        a('s_lshl_b32 s%d, s%d, 3' % (sT[0], sC))
        a('s_max_u32 s%d, s%d, 1' % (sT[1], sT[0]))
        a('s_sub_u32 s%d, s%d, 1' % (sT[1], sT[1]))
        a('s_lshl2_add_u32 s%d, s%d, s%d' % (sT[2], sT[1], sW))
        a('s_mul_i32 s%d, s%d, 5120' % (sT[2], sT[2]))
        a('s_add_u32 s%d, s%d, 0x%x' % (sP[8], sT[2], WHB))
        a('s_lshl1_add_u32 s%d, s%d, s%d' % (sT[0], sW, sT[0]))
        a('v_add_u32 v13, s%d, v0' % sT[0])
        a('v_mov_b32 v148, s%d' % sT[1])
        a('v_cmp_gt_u32 vcc, 2, v0')
        a('v_cndmask_b32 v13, v148, v13, vcc')
        a('v_lshlrev_b32 v13, 7, v13')
        self.w_addr()

    def p1_gemm(self, part='loop', mid=None):
        a = self.a
        o = self.o
        ACC, HACC, BB, HB, HA = 32, 96, 120, 176, 200
        HT = [2, 4, 3, 5, 6, 7]
        steps = [(s, i) for s in range(5) for i in range(4)]
        def bread(n, T):
            s, i = steps[n]
            a('ds_read_b128 %s, v%d offset:%d' % (R(BB + 4 * T, 4), (152 if T == 7 else 8) + i, 7680 * s + 1024 * T), 'B%d_%d' % (n, T))
        def hread(s, x):
            a('ds_read_b128 %s, v%d offset:%d' % (R(HB + 4 * x, 4), 156 if HT[x] == 7 else 12, 7680 * s + 1024 * HT[x]), 'HB%d' % s)
        areg = lambda x: 220 + 4 * x if x < 8 else 256 + 4 * (x - 8)
        def aload(x):
            s, i = steps[x >> 1]
            if 'noA1' in o['exp']: return
            self.ld(areg(x), 1024 * s, sP[4 * (x & 1) + i], 'A%d' % x, o['apol'])
        def mm(d, w, act, T, first):
            return (self.mfma(d, act, w, first) if T >= 5 else self.mfma(d, w, act, first)).replace('bf16', 'f16')
        MG, MV, HV = 52, 168, 236
        outr = lambda n: 220 + 8 * n if n < 4 else 220 + 8 * (n & 1) if n < 14 else {14: 236, 15: 244, 16: 104, 17: 96, 18: 104, 19: 96}[n]
        def mvread(d, va, off, tag):
            return [lambda h=h: a('ds_read_b128 %s, v%d offset:%d' % (V(d + 4 * h, 4), va, off + 16 * h), tag) for h in range(2)]
        def modul(r, m):
            return [lambda d=d: a('v_pk_fma_f16 v%d, v%d, v%d, v%d' % (r + d, r + d, m + d, m + 4 + d)) for d in range(4)]
        if part == 'pre':
            assert o['cp'] == 'c' and o['ord'].index('c') < o['ord'].index('m')
            a('s_mov_b32 s%d, 0' % sFAIL)
            a('s_mov_b64 s[%d:%d], 0xffff' % (sG0, sG0 + 1))
            a('s_mov_b32 s%d, 0xffff0000' % sG1)
            a('s_mov_b32 s%d, 0' % (sG1 + 1))
            self.cf_addr()
            a('v_add_u32 v50, s%d, v50' % sT[6])
            a('v_add_u32 v13, 0x%x, v13' % FX)
            a('v_cmp_gt_u32 vcc, 32, v0')
            a('v_cndmask_b32 v50, v50, v13, vcc')
            L0, D0 = a.newlabel('cfp'), a.newlabel('cfd')
            a('s_mov_b32 s%d, 0x8000' % sCNT)
            m1 = 2 if mid else o['m1']
            if m1 == 2: self.mod_issue([0, 1], MG, 7, 'mod', 5)
            if mid: mid(0)
            a('buffer_load_dword v51, v50, s[%d:%d], 0 offen sc1' % (SW, SW + 3), 'fl')
            if mid: mid(1)
            a('s_mul_i32 s%d, s%d, 1408' % (sT[0], sW))
            a('s_add_u32 s%d, s%d, %d' % (sT[0], sT[0], SPARE))
            a('v_and_b32 v33, 16, v7')
            a('v_sub_u32 v34, v7, v33')
            a('v_lshrrev_b32 v33, 2, v33')
            a('v_add3_u32 v33, v33, v34, s%d' % sT[0])
            a('v_lshlrev_b32 v167, 5, v3')
            a('v_add_u32 v167, %d, v167' % SPARE)
            a('s_lshl_b32 s%d, s%d, 11' % (sT[0], sW))
            a('v_add_u32 v6, s%d, v167' % sT[0])
            a('s_mov_b32 s%d, 0' % sT[5])
            a.wait_vm('fl')
            a.label(L0)
            a('v_cmp_ne_u32 vcc, s%d, v51' % sTAG)
            if o['cf1']: a('s_or_b32 vcc_hi, vcc_hi, vcc_lo')
            a('s_cmp_eq_u32 vcc_hi, 0')
            a('s_cbranch_scc1 %s' % D0)
            a.items.append(Ins('buffer_load_dword v51, v50, s[%d:%d], 0 offen sc1' % (SW, SW + 3)))
            a('s_sub_u32 s%d, s%d, 1' % (sCNT, sCNT))
            a('s_cmp_lg_u32 s%d, 0' % sCNT)
            a('s_waitcnt vmcnt(0)')
            a('s_cbranch_scc1 %s' % L0)
            a.label(D0)
            self.stamp('cfok', 9)
            aq = list(range(40))
            if m1 == 1: self.mod_issue([0, 1], MG, 7, 'mod', 5)
            self.b1_issue(0, o['nb0'])
            if not o['cf1']:
                Lc = a.newlabel('fxok')
                a('s_cmp_eq_u32 vcc_lo, 0')
                a('s_cbranch_scc1 %s' % Lc)
                save = list(a.vm)
                self.poll(13, sT[5], 32)
                a.vm = save
                a.label(Lc)
            self.stamp('fxok', 10)
            for _ in range(2): aload(aq.pop(0))
            self.ld(HA, 0, sP[8], 'HA0')
            self.b1_issue(o['nb0'], 8)
            if m1 == 0: self.mod_issue([0, 1], MG, 7, 'mod', 5)
            for _ in range(o['la0'] - 2): aload(aq.pop(0))
            self.mod_check([0, 1], MG, 7, 'mod', 36, 5)
            self.stamp('modok', 11)
            self.plus1(MG + 20)
            self.unpack4(40, MG)
            self.unpack4(44, MG + 20)
            a('v_cvt_pk_f16_f32 v36, v44, v46')
            a('v_cvt_pk_f16_f32 v37, v45, v47')
            a('v_cvt_pk_f16_f32 v38, v40, v42')
            a('v_cvt_pk_f16_f32 v39, v41, v43')
            a('ds_write2_b32 v33, v36, v37 offset0:0 offset1:2')
            a('ds_write2_b32 v33, v38, v39 offset0:4 offset1:6')
            x = 8
            while x < o['nb2'] or len(aq) > 40 - o['la1']:
                if len(aq) > 40 - o['la1']: aload(aq.pop(0))
                if x < o['nb2']: self.b1_one(x, x == 8); x += 1
            a.wait_vm(['b1_0', 'HA0'])
            a.wait_lg()
            return
        aq = list(range(o['la1'], 40))
        a('s_barrier')
        self.stamp('gemm0')
        for f in mvread(MV, 167, 0, 'mv0') + mvread(40, 6, 0, 'mv0'): f()
        for T in range(8): bread(0, T)
        self.jobflag()
        a.wait_lg('mv0')
        for f in modul(220, MV) + modul(224, MV) + modul(HA, 40): f()
        b1f = lambda x: (lambda: self.b1_one(x, x == o['nb2']))
        b1q = list(range(o['nb2'], 38))
        hrd = {1: (0, 0, 6), 3: (1, 0, 3), 4: (1, 3, 6), 6: (2, 0, 3), 7: (2, 3, 6), 9: (3, 0, 3), 10: (3, 3, 6), 12: (4, 0, 6)}
        hmm = {2: 0, 5: 1, 8: 2, 11: 3, 13: 4}
        HOFF = [0, 6144, 38400, 44544]
        for n in range(20):
            s, i = steps[n]
            if o['fine'] == 2 and n in (0, 1, 2, 4, 8, 12, 16): self.stamp('n%d' % n)
            if n in (3, 6, 9, 12):
                assert not b1q or 2 * b1q[0] // 15 > n // 3, (n, b1q)
                a.wait_vm('b1_%d' % (n // 3))
            if n in (3, 7): a('s_barrier')
            if n == 11:
                a('s_barrier'); self.level = 1
            if n == 15:
                a.wait_lg('hp'); a('s_barrier'); self.level = 2
            vm, ot = [], []
            k = o['ra0'] if b1q else o['ra1']
            for _ in range(k):
                if aq: vm.append(lambda x=aq.pop(0): aload(x))
            for q in range(o['rb1']):
                if b1q: vm.insert(min(len(vm), 2 * q), b1f(b1q.pop(0)))
            if 1 <= n < 5: vm.append(lambda: self.ld(HA + 4 * n, 1024 * n, sP[8], 'HA%d' % n))
            if n in hrd:
                hs, x0, x1 = hrd[n]
                ot += [lambda x=x: hread(hs, x) for x in range(x0, x1)]
            hm = []
            if n in hmm:
                hs = hmm[n]
                hm = [mm(HACC + 4 * x, HB + 4 * x, HA + 4 * hs, HT[x], hs == 0) for x in range(6)]
            if n == 14:
                ot += [lambda x=x: a('ds_write_b128 v4, %s offset:%d' % (R(HACC + 4 * x, 4), 1024 * x), 'hp') for x in range(6)]
                pre = self.p2_pre()
            if n >= 14:
                vm += pre[:3]; pre = pre[3:]
            if n == 15:
                ot += [lambda y=y, p=p: a('ds_read_b128 %s, v%d offset:%d' % (V(HB + 16 * y + 4 * p, 4), 157 + y, HOFF[p]), 'hr') for y in range(2) for p in range(4)]
            if n in (16, 17):
                b = HB + 16 * (n - 16)
                if n == 16: a.wait_lg('hr')
                ot += [lambda e=e, p=p: a('v_add_f32 v%d, v%d, v%d' % (b + 8 * p + e, b + 8 * p + e, b + 8 * p + 4 + e)) for p in range(2) for e in range(4)]
                ot += [lambda e=e: a('v_add_f32 v%d, v%d, v%d' % (b + e, b + e, b + 8 + e)) for e in range(4)]
                ot += [lambda e=e: a('v_cvt_pk_bf16_f32 v%d, v%d, v%d' % (b + e, b + 2 * e, b + 2 * e + 1)) for e in range(2)]
                ot += [lambda: a('ds_write_b64 v%d, %s' % (159 + n - 16, V(b, 2)))]
            if n == o['jfi']: vm.append(lambda: self.jf_issue())
            if n == o['jfc']:
                self.jf_check()
                self.queue_after_jobs()
            vm += self.touches('g%d' % n)
            if n >= o['gp0']:
                vm += [self.pump] * max(0, o['g_pump'] - (len(vm) if n < 14 else 1))
            gaps = []
            for T in range(8): gaps += [(T, 0), (T, 1)] + ([(T, 2)] if hm and T >= 2 else [])
            ngap = len(gaps)
            slots = [[] for _ in gaps]
            cap = [2 - (k == 0 and (n < 19 or T == 0)) for T, k in gaps]
            for g in range(ngap):
                if g + 1 == ngap or gaps[g + 1] in ((4, 0), (2, 2)): cap[g] -= 1
            def put(L, g0, g1):
                G = list(range(g0, g1 + 1))
                lvl = 0
                while sum(max(0, cap[g] + lvl) for g in G) < len(L): lvl += 1
                seats = [g for g in G for _ in range(max(0, cap[g] + lvl - 1))] if lvl else []
                extra = [g for g in G if cap[g] + lvl > 0] if lvl else [g for g in G for _ in range(max(0, cap[g]))]
                k = len(L) - len(seats)
                if not lvl and k <= len(set(extra)):
                    best = max(cap[g] for g in G)
                    e2 = [g for g in G if cap[g] == best]
                    extra = e2 if len(e2) >= k else sorted(set(extra))
                seats = sorted(seats + [extra[(2 * q + 1) * len(extra) // (2 * k)] for q in range(k)])
                for g, f in zip(seats, L): slots[g].append(f); cap[g] -= 1
            h1 = hmm.get(n + 1) if n > 1 else None
            VL = []
            if n < 19:
                s1, i1 = steps[n + 1]
                r = outr(n + 1)
                for g, f in zip((1, 3), mvread(MV, 167, 2048 * i1 + 128 * s1, 'mv%d' % (n + 1))): slots[g].append(f); cap[g] -= 1
                x = 2 * n + 2
                VL.append(lambda: a.wait_vm('A%d' % (x + 1)))
                if x >= 8: VL += [lambda d=d: a('v_accvgpr_read_b32 v%d, a%d' % (r + d, areg(x) - 256 + d)) for d in range(8)]
                VL += [lambda f=f: (a.wait_lg('mv%d' % (n + 1)), f()) for f in modul(r, MV) + modul(r + 4, MV)]
                if 'noM' in o['exp']: VL = VL[:1]
            if h1:
                for g, f in zip((5, 7), mvread(HV, 6, 128 * h1, 'hv%d' % h1)): slots[g].append(f); cap[g] -= 1
                VL += [lambda f=f: (a.wait_vm('HA%d' % h1), a.wait_lg('hv%d' % h1), f()) for f in modul(HA + 4 * h1, HV)]
            if vm: put(vm, 0, ngap - 1)
            if ot: put(ot, 3 if n == 14 else 0, ngap - 1)
            if len(VL) > 13: put(VL, 0, ngap - 2)
            elif VL: put(VL, 7, ngap - 2)
            for T, k in gaps:
                if k == 0 and T in (0, 4): a.wait_lg('B%d_%d' % (n, T + 3))
                if k < 2:
                    a(mm(ACC + 32 * k + 4 * T, BB + 4 * T, outr(n) + 4 * k, T, n == 0))
                    if k == 0 and T > 0 and n + 1 < 20: bread(n + 1, T - 1)
                    if k == 0 and T == 0 and n > 0: bread(n, 7)
                else:
                    if T == 2: a.wait_lg('HB%d' % hs)
                    a(hm.pop(0))
                for f in slots.pop(0): f()
            assert not slots and not hm
        assert not aq and not b1q and not pre
        self.stamp('gemm1')

    def p1_attn(self):
        a = self.a
        ACC, S_, P_, X_ = 32, 176, 64, 80
        K = lambda t: 102 + 6 * t
        Vv = lambda y, t: 116 + 6 * y + 2 * t
        Q = lambda t, h: 132 + 8 * t + 4 * h
        np_ = [self.o['at_pump']]
        def pump(k=1):
            k = min(k, np_[0]); np_[0] -= k; self.pump(k)
        def cvt(d, r):
            a('v_cvt_pk_bf16_f32 v%d, v%d, v%d' % (d, r, r + 1))
            a('v_cvt_pk_bf16_f32 v%d, v%d, v%d' % (d + 1, r + 2, r + 3))
        def kv(t):
            r = ACC + 32 * t
            cvt(K(t), r + 8); cvt(K(t) + 4, r + 12)
            cvt(K(t) + 2, r + 16); cvt(148 + 2 * t, r + 16)
            cvt(Vv(0, t), r + 20)
            for e in range(2): a('v_permlane32_swap_b32 v%d, v%d' % (148 + 2 * t + e, K(t) + 2 + e))
            cvt(Vv(1, t), r + 24); cvt(Vv(2, t), r + 28)
        def qq(t):
            r = ACC + 32 * t
            cvt(Q(t, 0), r); cvt(Q(t, 1) + 2, r + 4)
            for e in range(2):
                a('v_cndmask_b32 v%d, 0, v%d, s[%d:%d]' % (Q(t, 0) + 2 + e, 148 + 2 * t + e, sG0, sG0 + 1))
                a('v_cndmask_b32 v%d, 0, v%d, s[%d:%d]' % (Q(t, 1) + e, 148 + 2 * t + e, sG1, sG1 + 1))
        def smm(u, cur):
            t, h = u >> 1, u & 1
            m = 16 if cur else (24 if t == 0 else 20)
            a('v_mfma_f32_16x16x32_bf16 %s, %s, %s, %s' % (V(S_ + 8 * u + 4 * cur, 4), V(K(t - 1 + cur) + 2 * h, 4), V(Q(t, h), 4), V(m, 4)))
        kv(1)
        for x in range(3): a('ds_write_b64 v161, %s offset:%d' % (V(K(1) + 2 * x, 2), 3072 + 512 * x))
        for y in range(3): a('ds_write_b64 v161, %s offset:%d' % (V(Vv(y, 1), 2), 3072 + 1536 + 512 * y))
        for f in self.touches('a0'): f()
        pump(2)
        kv(0)
        self.barrier()
        self.level = 3
        for x in range(3): a('ds_read_b64 %s, v161 offset:%d' % (V(K(-1) + 2 * x, 2), 512 * x), 'ek')
        for y in range(3): a('ds_read_b64 %s, v161 offset:%d' % (V(Vv(y, -1), 2), 1536 + 512 * y), 'ev')
        pump(3)
        qq(1)
        for u in (2, 3): smm(u, 0); smm(u, 1)
        qq(0)
        pump(2)
        for u in (0, 1): smm(u, 1)
        a.wait_lg('ek')
        for u in (0, 1): smm(u, 0)
        self.stamp('S')
        cs = LOG2E / math.sqrt(20.0)
        a('s_mov_b32 s%d, 0x%x' % (sT[1], f2u(cs)))
        sv = lambda u, i: X_ + 2 * u + i
        M = X_ + 8
        for u in (2, 3, 0, 1):
            b = S_ + 8 * u
            for i in range(2): a('v_max3_f32 v%d, v%d, v%d, v%d' % (sv(u, i), b + 2 * i, b + 2 * i + 1, b + 4 + 2 * i))
            for i in range(2): a('v_max_f32 v%d, v%d, v%d' % (sv(u, i), sv(u, i), b + 5 + 2 * i))
            a('v_max_f32 v%d, v%d, v%d' % (M + u, sv(u, 0), sv(u, 1)))
            pump(1)
        def allred(op, mid):
            a('v_permlane32_swap_b32 v%d, v%d' % (M, M + 2))
            a('v_permlane32_swap_b32 v%d, v%d' % (M + 1, M + 3))
            pump(1)
            a('%s v%d, v%d, v%d' % (op, M, M, M + 2))
            a('%s v%d, v%d, v%d' % (op, M + 1, M + 1, M + 3))
            pump(1)
            a('v_permlane16_swap_b32 v%d, v%d' % (M, M + 1))
            a('%s v%d, v%d, v%d' % (op, M, M, M + 1))
            a(mid % (M + 1, M)); a(mid % (M + 2, M)); a(mid % (M + 3, M)); a(mid % (M, M))
            pump(1)
            a('v_permlane16_swap_b32 v%d, v%d' % (M + 2, M + 3))
            a('v_permlane16_swap_b32 v%d, v%d' % (M, M + 1))
            pump(1)
            a('v_permlane32_swap_b32 v%d, v%d' % (M, M + 2))
            a('v_permlane32_swap_b32 v%d, v%d' % (M + 1, M + 3))
        allred('v_max_f32', 'v_mul_f32 v%%d, s%d, v%%d' % sT[1])
        for u in range(4):
            for i in range(2): a('v_fma_f32 v%d, v%d, s%d, -v%d' % (sv(u, i), sv(u, i), sT[1], M + u))
        for u in range(4):
            for i in range(2): a('v_exp_f32 v%d, v%d' % (sv(u, i), sv(u, i)))
        for u in range(4): a('v_add_f32 v%d, v%d, v%d' % (M + u, sv(u, 0), sv(u, 1)))
        allred('v_add_f32', 'v_rcp_f32 v%d, v%d')
        a.wait_lg('ev')
        for u in range(4):
            t, h = u >> 1, u & 1
            for i in range(2): a('v_mul_f32 v%d, v%d, v%d' % (sv(u, i), sv(u, i), M + u))
            for i in range(2): a('v_cvt_pk_bf16_f32 v%d, v%d, v%d' % (sv(u, i), sv(u, i), sv(u, i)))
            for x in range(4): a('v_bfi_b32 v%d, v%d, 0, v%d' % (P_ + 4 * u + x, 28 + x, sv(u, x & 1)))
            if u > 0: self.pv(u - 1)
        self.pv(3)
        O = S_
        for t in range(2):
            cvt(O + 4 * t, ACC + 16 * t); cvt(O + 4 * t + 2, ACC + 16 * t + 8)
            cvt(O + 8 + 2 * t, ACC + 16 * t + 4); cvt(O + 12, ACC + 16 * t + 12)
            for e in range(2): a('v_permlane16_swap_b32 v%d, v%d' % (O + 4 * t + e, O + 4 * t + 2 + e))
            for e in range(2): a('v_cndmask_b32 v%d, v%d, v%d, s[%d:%d]' % (O + 8 + 2 * t + e, O + 8 + 2 * t + e, O + 12 + e, sG1, sG1 + 1))
        a('s_add_u32 s%d, s%d, 20480' % (sT[0], sP[9]))
        for e in range(2): a('v_permlane32_swap_b32 v%d, v%d' % (O + 8 + e, O + 10 + e))
        self.st2(['buffer_store_dwordx4 %s, v162, s[%d:%d], s%d offen' % (V(O, 4), SW, SW + 3, sP[9]),
                  'buffer_store_dwordx4 %s, v162, s[%d:%d], s%d offen' % (V(O + 4, 4), SW, SW + 3, sT[0]),
                  'buffer_store_dwordx2 %s, v163, s[%d:%d], s%d offen offset:512' % (V(O + 8, 2), SW, SW + 3, sP[9])], 'ost')
        self.stamp('attn')

    def pv(self, u):
        t, h = u >> 1, u & 1
        for x, y in enumerate((h, 2)):
            self.a('v_mfma_f32_16x16x32_bf16 %s, %s, %s, 0' % (V(32 + 8 * u + 4 * x, 4), V(114 + 6 * y + 2 * t, 4), V(64 + 4 * u, 4)))

    def finish(self):
        a = self.a
        D = a.newlabel('ep')
        a('s_or_b32 s%d, s2, s%d' % (sT[0], sW))
        a('s_cmp_lg_u32 s%d, 0' % sT[0])
        a('s_cbranch_scc1 %s' % D)
        a('v_mov_b32 v14, s%d' % sTAG)
        self.exec_(1, 0)
        a('buffer_store_dword v14, off, s[%d:%d], 0 sc1' % (SW, SW + 3))
        self.exec_all()
        a.label(D)
        if self.stamps:
            a.wait_vm()
            self.stamp('end')
            a('v_writelane_b32 v15, s%d, 63' % sFAIL)
            a('v_writelane_b32 v15, s%d, 62' % sSLOW)
            a('s_lshl_b32 s%d, s2, 2' % sT[0])
            a('s_add_u32 s%d, s%d, s%d' % (sT[0], sT[0], sW))
            a('s_lshl_b32 s%d, s%d, 8' % (sT[0], sT[0]))
            a('s_add_u32 s%d, s%d, 0x%x' % (sT[0], sT[0], DBG))
            a('v_lshlrev_b32 v14, 2, v0')
            if not self.o.get('nodbg'): a('buffer_store_dword v15, v14, s[%d:%d], s%d offen sc0 sc1' % (SW, SW + 3, sT[0]))
            amp = self.o.get('amp', 0)
            if amp:
                L, E = a.newlabel('amp'), a.newlabel('ampe')
                a('v_readlane_b32 s%d, v15, 0' % sT[2])
                a('v_readlane_b32 s%d, v15, %d' % (sT[3], amp))
                a('v_readlane_b32 s%d, v15, %d' % (sT[4], self.nst - 1))
                if amp == 40:
                    a('v_readlane_b32 s%d, v15, 40' % sT[2])
                    a('v_readlane_b32 s%d, v15, 0' % sT[3])
                if amp in (42, 43):
                    a('s_mov_b32 s%d, 0x%x' % (sT[5], DBG - 256))
                    a('buffer_load_dword v12, off, s[%d:%d], s%d sc0 sc1' % (SW, SW + 3, sT[5]))
                    a('s_waitcnt vmcnt(0)')
                    x, y = (sT[2], sT[3]) if amp == 42 else (sT[3], sT[2])
                    a('v_readlane_b32 s%d, v12, 40' % x)
                    a('v_readlane_b32 s%d, v15, 40' % y)
                    a('s_sub_u32 s%d, s%d, 1000' % (sT[2], sT[2]))
                if amp == 41:
                    R = a.newlabel('rr')
                    a('s_mov_b32 s%d, 8' % sCNT)
                    a.label(R)
                    a('s_mov_b32 s%d, 0x%x' % (sT[5], DBG))
                    a('buffer_load_dword v12, v14, s[%d:%d], s%d offen sc0 sc1' % (SW, SW + 3, sT[5]))
                    a('s_waitcnt vmcnt(0)')
                    a('s_sub_u32 s%d, s%d, 1' % (sCNT, sCNT))
                    a('s_cmp_lg_u32 s%d, 0' % sCNT)
                    a('s_cbranch_scc1 %s' % R)
                    a('v_readlane_b32 s%d, v12, 40' % sT[2])
                    a('v_readlane_b32 s%d, v15, 40' % sT[3])
                    a('s_sub_u32 s%d, s%d, 1000' % (sT[2], sT[2]))
                a('s_cmp_eq_u32 s%d, 0' % sT[3])
                a('s_cbranch_scc1 %s' % E)
                a('s_sub_u32 s%d, s%d, s%d' % (sT[3], sT[3], sT[2]))
                a('s_min_u32 s%d, s%d, 6000' % (sT[3], sT[3]))
                a('s_lshl_b32 s%d, s%d, 2' % (sT[3], sT[3]))
                a('s_mov_b32 s%d, 0x100000' % sCNT)
                a.label(L)
                a('s_memrealtime s[98:99]')
                a('s_waitcnt lgkmcnt(0)')
                a('s_sub_u32 s%d, s%d, 1' % (sCNT, sCNT))
                a('s_cmp_eq_u32 s%d, 0' % sCNT)
                a('s_cbranch_scc1 %s' % E)
                a('s_sub_u32 s%d, s98, s%d' % (sT[5], sT[4]))
                a('s_cmp_lt_u32 s%d, s%d' % (sT[5], sT[3]))
                a('s_cbranch_scc1 %s' % L)
                a.label(E)
            hd = self.o.get('hd', 0)
            if hd:
                a('s_load_dwordx2 s[%d:%d], s[0:1], 72' % (sT[0], sT[1]))
                a.wait_lg()
                self.srd(SJ, sT[0], 64)
                sh = 0 if hd in (1, 3) else 11
                a('v_subrev_u32 v13, %d, v0' % sh)
                a('v_max_i32 v13, 0, v13')
                a('v_lshlrev_b32 v13, 2, v13')
                if hd in (1, 2):
                    a('v_not_b32 v12, v15')
                    a('v_cmp_eq_u32 vcc, 0, v0')
                    a('v_cndmask_b32 v12, v15, v12, vcc')
                    op = 'umax'
                else:
                    a('v_readlane_b32 s%d, v15, 0' % sT[2])
                    a('v_subrev_u32 v12, s%d, v15' % sT[2])
                    a('v_cmp_eq_u32 vcc, 0, v15')
                    a('v_cndmask_b32 v12, v12, 0, vcc') if 0 else a('v_cndmask_b32 v12, v12, v15, vcc')
                    op = 'add'
                self.exec_('0xffff' if sh == 0 else '0x%x' % (1 | (0x7fff << 12)), 0)
                a('buffer_atomic_%s v12, v13, s[%d:%d], 0 offen' % (op, SJ, SJ + 3))
                self.exec_all()
        a.label('L_end')
        a('s_endpgm')
        for c in self.cold: c()
        a.label('CODE_END')
        a('s_endpgm')

from gen2 import add_phases
add_phases(Gen, globals())

def build(stamps=False, opt=None):
    g = Gen(stamps, opt)
    g.run()
    body = g.a.finish()
    hdr = '''; fused adaLN block: persistent single launch, 256 workgroups (one per CU)
; @launch grid=(256,1,1) block=(256,1,1) lds=163840
.amdgcn_target "amdgcn-amd-amdhsa--gfx950"
.text
.globl {n}_kernel
.p2align 8
.type {n}_kernel,@function
{n}_kernel:
'''.format(n=NAME)
    tail = '''
.section .rodata,"a"
.p2align 6
.amdhsa_kernel {n}_kernel
  .amdhsa_next_free_vgpr 512
  .amdhsa_next_free_sgpr 102
  .amdhsa_accum_offset 256
  .amdhsa_group_segment_fixed_size 0
  .amdhsa_kernarg_size 88
  .amdhsa_user_sgpr_count 2
  .amdhsa_user_sgpr_kernarg_segment_ptr 1
  .amdhsa_system_sgpr_workgroup_id_x 1
.end_amdhsa_kernel
'''.format(n=NAME)
    return hdr + body + tail, g

def parse(kvs):
    o = {}
    for kv in kvs:
        k, v = kv.split('=', 1)
        o[k] = int(v) if v.lstrip('-').isdigit() else v.replace('+', ' ')
    return o

if __name__ == '__main__':
    if len(sys.argv) > 2 and sys.argv[1] == 'var':
        o = parse(sys.argv[3:])
        txt, g = build(True, o)
        open('v_%s.s' % sys.argv[2], 'w').write(txt)
        open('v_%s.names' % sys.argv[2], 'w').write('\n'.join(g.names))
        txt, g = build(False, o)
        open('p_%s.s' % sys.argv[2], 'w').write(txt)
    else:
        out = 'cdna_kernels/%s.s' % NAME
        txt, g = build(False)
        open(out, 'w').write(txt)
        print('written', out, len(txt), 'bytes; nops', g.a.npad)
```

```python
from asmlib import *

def add_phases(Gen, G):
    globals().update({k: v for k, v in G.items() if not k.startswith('__')})

    B2 = 256 + 156
    B4 = 256 + 16
    UA = 256

    def ld(self, dst, off, soff, tag, pol='sc1'):
        va = 1 if off < 4096 else 5
        self.a('buffer_load_dwordx4 %s, v%d, s[%d:%d], s%d offen offset:%d %s' % (R(dst, 4), va, SW, SW + 3, soff, off & 4095, pol), tag)
    Gen.ld = ld

    def jf_issue(self):
        a = self.a
        a('v_and_b32 v13, 0x1f0, v1')
        a('v_add_u32 v13, 0x%x, v13' % JF)
        a('buffer_load_dwordx4 v[252:255], v13, s[%d:%d], 0 offen sc1' % (SW, SW + 3), 'jf')
    Gen.jf_issue = jf_issue

    def jf_check(self):
        a = self.a
        L, C, D = a.newlabel('jchk'), a.newlabel('jcold'), a.newlabel('jok')
        a('s_mov_b32 s%d, 0x8000' % sCNT)
        a.wait_vm('jf')
        a.label(L)
        for e in range(4): a('v_xor_b32 v%d, s%d, v%d' % (252 + e, sTAG, 252 + e))
        a('v_or3_b32 v252, v252, v253, v254')
        a('v_or_b32 v252, v252, v255')
        a('v_cmp_ne_u32 vcc, 0, v252')
        a('s_cbranch_vccnz %s' % C)
        a.label(D)
        def cold():
            a.label(C)
            a('s_add_u32 s%d, s%d, 0x10000' % (sFAIL, sFAIL))
            a('s_sub_u32 s%d, s%d, 1' % (sCNT, sCNT))
            a('s_cmp_eq_u32 s%d, 0' % sCNT)
            a('s_cbranch_scc1 %s' % D)
            a('buffer_load_dwordx4 v[252:255], v13, s[%d:%d], 0 offen sc1' % (SW, SW + 3))
            a('s_waitcnt vmcnt(0)')
            a('s_branch %s' % L)
        self.cold.append(cold)
    Gen.jf_check = jf_check

    def wq(self, sreg, dst, k0, k1, lvl, name):
        a = self.a
        for k in range(k0, k1):
            for T in range(5):
                def f(k=k, T=T):
                    self.ld(dst + 20 * k + 4 * T, 1024 * T, sreg, name, self.o['wpol'])
                    if T == 4: a('s_add_u32 s%d, s%d, 40960' % (sreg, sreg))
                self.fq.append((lvl, f, name))
    Gen.wq = wq

    def b3q(self, b0, b1, lvl, name):
        a = self.a
        for blk in range(b0, b1):
            for e in range(3):
                def f(blk=blk, e=e):
                    if e == 0: a('s_add_u32 m0, s%d, %d' % (sB3M, 12288 * blk))
                    a('buffer_load_dwordx4 v%d, s[%d:%d], s%d offen offset:%d %s lds' % (164 + e, S1, S1 + 3, sP[11], 1024 * e, self.o['w1pol']), name)
                    if e == 2: a('s_add_u32 s%d, s%d, 196608' % (sP[11], sP[11]))
                self.fq.append((lvl, f, name))
    Gen.b3q = b3q

    def w_addr(self):
        a = self.a
        a('s_mul_i32 s%d, s%d, 5120' % (sT[2], sCG))
        a('s_mul_i32 s%d, s%d, %d' % (sT[3], sW, 5 * 40960))
        a('s_add_u32 s%d, s%d, s%d' % (sP[10], sT[2], sT[3]))
        a('s_add_u32 s%d, s%d, 0x%x' % (sP[10], sP[10], W2T))
        a('s_mul_i32 s%d, s%d, %d' % (sT[3], sW, 12 * 40960))
        a('s_add_u32 s%d, s%d, s%d' % (sB4O, sT[2], sT[3]))
        a('s_add_u32 s%d, s%d, 0x%x' % (sB4O, sB4O, W4T))
        self.srd(S1, pW1, 640 * 3072)
        a('s_mul_i32 s%d, s%d, 3072' % (sB3M, sW))
        a('s_mul_i32 s%d, s%d, 192' % (sT[3], sJ))
        a('s_lshl4_add_u32 s%d, s%d, s%d' % (sP[11], sB3M, sT[3]))
        for e in range(3):
            a('v_add_u32 v148, %d, v0' % (64 * e))
            a('v_mul_u32_u24 v149, 171, v148')
            a('v_lshrrev_b32 v149, 11, v149')
            a('v_mul_u32_u24 v150, 12, v149')
            a('v_sub_u32 v148, v148, v150')
            a('v_lshrrev_b32 v150, 2, v149')
            a('v_and_b32 v150, 2, v150')
            a('v_xor_b32 v148, v148, v150')
            a('v_mul_u32_u24 v149, 3072, v149')
            a('v_lshl_add_u32 v%d, v148, 4, v149' % (164 + e))
            if e: a('v_subrev_u32 v%d, %d, v%d' % (164 + e, 1024 * e, 164 + e))
    Gen.w_addr = w_addr

    def touch2(self, va, vt, stride, nl, soff):
        a = self.a
        def pre():
            a('v_lshrrev_b32 v%d, 5, v0' % vt)
            a('v_mul_u32_u24 v%d, %d, v%d' % (vt, stride - 4096, vt))
            a('v_lshl_add_u32 v%d, v0, 7, v%d' % (va, vt))
        def go():
            m = '0x%x' % ((1 << nl) - 1)
            self.exec_(m, m if stride > 4096 else 0)
            a('buffer_load_dword v%d, v%d, s[%d:%d], s%d offen sc1' % (vt, va, SW, SW + 3, soff))
            self.exec_all()
        return pre, go
    Gen.touch2 = touch2

    def touches(self, where):
        a = self.a
        L = []
        for k, (srd, base, per, off, hi) in dict(t2=(SW, W2T, 6400, 0, 0x3ffff), t3a=(S1, 0, 15360, 0, 0xfffffff), t3b=(S1, 0, 15360, 7680, 0xfffffff),
                                                 t4a=(SW, W4T, 15360, 0, 0xfffffff), t4b=(SW, W4T, 15360, 7680, 0xfffffff)).items():
            if self.o[k] != where: continue
            def f(srd=srd, base=base, per=per, off=off, hi=hi):
                a('s_mul_i32 s%d, s%d, %d' % (sJ1, sTQ, per))
                a('s_add_u32 s%d, s%d, 0x%x' % (sJ1, sJ1, base + off))
                a('s_mov_b32 exec_hi, 0x%x' % hi)
                a('buffer_load_dword v%d, v167, s[%d:%d], s%d offen sc1' % (50 if where == 'y' else 168, srd, srd + 3, sJ1))
                a('s_mov_b32 exec_hi, -1')
            L.append(f)
        return L
    Gen.touches = touches

    def queue_after_jobs(self):
        self.wq(sP[10], B2, 0, 5, 0, 'b2')
        self.b3q(0, 2, 2, 'b3')
        self.b3q(2, 7, 3, 'b3')
        self.wq(sB4O, B4, 0, 7, 3, 'b4')
    Gen.queue_after_jobs = queue_after_jobs

    def ksplit(self, nks, abase, rtstride, Bf, Ar, nA, LA, ACC, flagbase, red, npump, hooks):
        a = self.a
        a('v_and_b32 v8, 3, v0')
        a('v_lshlrev_b32 v8, 7, v8')
        a('s_lshl2_add_u32 s%d, s%d, s%d' % (sT[0], sC, sW))
        a('s_lshl_b32 s%d, s%d, 9' % (sT[0], sT[0]))
        a('s_add_u32 s%d, s%d, 0x%x' % (sT[0], sT[0], flagbase))
        a('s_lshl1_add_u32 s%d, s%d, s%d' % (sT[1], sC, sRG))
        a('s_mul_i32 s%d, s%d, %d' % (sT[1], sT[1], 4 * rtstride))
        a('s_mul_i32 s%d, s%d, %d' % (sT[6], sW, nks * 1024))
        a('s_add_u32 s%d, s%d, s%d' % (sT[1], sT[1], sT[6]))
        a('s_add_u32 s%d, s%d, 0x%x' % (sT[1], sT[1], abase))
        for p in range(4):
            a('s_xor_b32 s%d, s%d, %d' % (sT[6], sW, p))
            a('s_mul_i32 s%d, s%d, %d' % (sT[2 + p], sT[6], rtstride))
            a('s_add_u32 s%d, s%d, s%d' % (sT[2 + p], sT[2 + p], sT[1]))
            if p:
                a('s_mul_i32 s%d, s%d, 15360' % (sT[6], sT[6]))
                a('s_add_u32 s%d, s%d, %d' % (sT[6], sT[6], red + 5120 * (p - 1)))
                a('v_add_u32 v%d, s%d, v1' % (8 + p, sT[6]))
        a('s_mul_i32 s%d, s%d, 15360' % (sT[6], sW))
        a('s_add_u32 s%d, s%d, %d' % (sT[6], sT[6], red))
        a('v_add_u32 v12, s%d, v1' % sT[6])
        self.poll(8, sT[0], 13)
        self.stamp('flag')
        order = [(p, k) for p in (1, 2, 3, 0) for k in range(nks)]
        N = len(order)
        assert LA < nA
        areg = lambda idx: Ar + 4 * (idx % nA)
        def aload(idx):
            p, k = order[idx]
            if k == 8: a('s_add_u32 s%d, s%d, 8192' % (sT[2 + p], sT[2 + p]))
            if 'noA%d' % (2 if nks == 5 else 4) in self.o['exp']: return
            self.ld(areg(idx), 1024 * (k & 7), sT[2 + p], 'A%d' % idx, self.o['apol'])
        for idx in range(min(LA, N)): aload(idx)
        pend = []
        for idx, (p, k) in enumerate(order):
            fill = list(hooks.get(idx, []))
            a.wait_vm('A%d' % idx)
            if self.o['fine'] and idx % nks == 0 and (nks == 12 or self.o['fine'] == 3): self.stamp('i%d' % idx)
            for T in range(5):
                a(self.mfma(ACC + 20 * p + 4 * T, Bf + 20 * k + 4 * T, areg(idx), first=(k == 0)))
                if pend and k >= 1 and T in (1, 3): a(pend.pop(0))
                if T == 0:
                    if idx + LA < N: aload(idx + LA)
                    elif npump > 0: self.pump(); npump -= 1
                elif T == 2 and idx + LA >= N and npump > 0: self.pump(); npump -= 1
                elif fill: fill.pop(0)()
                if T == 4:
                    while fill: fill.pop(0)()
            if k == nks - 1 and p:
                assert not pend
                pend = ['ds_write_b128 v%d, %s offset:%d' % (8 + p, R(ACC + 20 * p + 4 * T, 4), 1024 * T) for T in range(5)]
            if idx == N - 2:
                assert not pend
                self.barrier()
                hooks[N - 1] = [lambda i=i, T=T: a('ds_read_b128 %s, v12 offset:%d' % (R(ACC + 20 * (i + 1) + 4 * T, 4), 5120 * i + 1024 * T), 'r%d' % i) for i in range(3) for T in range(5)]
        self.stamp('mfma')
    Gen.ksplit = ksplit

    def kreduce(self, ACC):
        a = self.a
        a.wait_lg('r1')
        for d in range(10):
            a('v_pk_add_f32 %s, %s, %s' % (V(ACC + 20 + 2 * d, 2), V(ACC + 20 + 2 * d, 2), V(ACC + 40 + 2 * d, 2)))
        a.wait_lg('r2')
        for d in range(10):
            a('v_pk_add_f32 %s, %s, %s' % (V(ACC + 2 * d, 2), V(ACC + 2 * d, 2), V(ACC + 60 + 2 * d, 2)))
        for d in range(10):
            a('v_pk_add_f32 %s, %s, %s' % (V(ACC + 2 * d, 2), V(ACC + 2 * d, 2), V(ACC + 20 + 2 * d, 2)))
    Gen.kreduce = kreduce

    def pack_store(self, src, P, vaddr, srd, soff, cstride, handoff, tag=None):
        a = self.a
        for d in range(10): a('v_cvt_pk_bf16_f32 v%d, v%d, v%d' % (P + d, src + 2 * d, src + 2 * d + 1))
        a('v_mov_b32 v%d, v%d' % (P + 10, P + 8))
        a('v_mov_b32 v%d, v%d' % (P + 11, P + 9))
        for p in range(3):
            a('v_permlane16_swap_b32 v%d, v%d' % (P + 4 * p, P + 4 * p + 2))
            a('v_permlane16_swap_b32 v%d, v%d' % (P + 4 * p + 1, P + 4 * p + 3))
        st = lambda p: 'buffer_store_dwordx4 %s, v%d, s[%d:%d], s%d offen offset:%d' % (V(P + 4 * p, 4), vaddr, srd, srd + 3, soff, 4 * p * cstride)
        txt = [st(0), st(1), 's_mov_b32 exec_lo, 0xffff', 's_mov_b32 exec_hi, 0xffff', st(2), 's_mov_b64 exec, -1']
        if handoff: self.st2(txt, tag)
        else:
            for t in txt: a(t + (' ' + self.o.get('opol', '') if t.startswith('buffer') else ''), tag)
    Gen.pack_store = pack_store

    def chunk_of_lane(self, d, t):
        a = self.a
        a('v_and_b32 v%d, 1, v3' % t)
        a('v_lshrrev_b32 v%d, 1, v3' % d)
        a('v_lshl_add_u32 v%d, v%d, 1, v%d' % (d, t, d))
    Gen.chunk_of_lane = chunk_of_lane

    MR, XR, XF = 220, 208, 144
    def p2_pre(self):
        a = self.a
        L = []
        for i, vec in enumerate([2, 3, 4, 5]):
            for p in range(2):
                L.append(lambda i=i, vec=vec, p=p: (a('s_mov_b32 s%d, 0x%x' % (sT[0], MODP + p * 15360 + vec * 2560)),
                    a('buffer_load_dwordx4 %s, v7, s[%d:%d], s%d offen sc1' % (V(MR + 8 * i + 4 * p, 4), SW, SW + 3, sT[0]), 'mod')))
        L.append(lambda: (a('s_lshl1_add_u32 s%d, s%d, s%d' % (sXO, sC, sRG)),
                          a('s_lshl2_add_u32 s%d, s%d, s%d' % (sXO, sXO, sW)),
                          a('s_mul_i32 s%d, s%d, %d' % (sB1, sXO, 16 * 1280))))
        L.append(lambda: (a('s_mul_i32 s%d, s%d, 160' % (sT[0], sCG)),
                          a('s_add_u32 s%d, s%d, s%d' % (sB1, sB1, sT[0])),
                          a('v_mul_u32_u24 v6, 1280, v2'),
                          a('v_lshl_add_u32 v12, v3, 3, v6')))
        for T in range(5):
            L.append(lambda T=T: a('buffer_load_dwordx2 %s, v12, s[%d:%d], s%d offen offset:%d' % (V(XR + 2 * T, 2), SX, SX + 3, sB1, 32 * T), 'xv'))
        return L
    Gen.p2_pre = p2_pre

    def p2(self):
        a = self.a
        self.publish(FO, 'ost', self.touch2(32, 33, 20480, 10, sP[9]))
        for f in self.touches('o'): f()
        self.stamp('Opub')
        self.flush('b2')
        self.pump(self.o['o_pre'])
        self.mod_check([2, 3, 4, 5], MR, 7, 'mod', 28)
        self.plus1(MR + 16)
        self.unpack4(MR + 4, MR); self.unpack4(MR + 20, MR + 16); self.unpack4(MR + 28, MR + 24)
        a('v_add_u32 v12, %d, v7' % SPARE)
        a('v_lshrrev_b32 v13, 1, v7')
        a('v_add_u32 v13, %d, v13' % SPARE)
        a('ds_write_b128 v12, %s offset:%d' % (V(MR + 4, 4), GA_ - SPARE))
        a('ds_write_b128 v12, %s offset:%d' % (V(MR + 20, 4), C2F - SPARE))
        a('ds_write_b128 v12, %s offset:%d' % (V(MR + 28, 4), GB_ - SPARE))
        a('ds_write_b64 v13, %s offset:%d' % (V(MR + 16, 2), C2B - SPARE))
        a('ds_write_b64 v13, %s offset:%d' % (V(MR + 8, 2), S2B - SPARE))
        a.wait_vm('xv')
        for T in range(5): self.unpack4(XF + 4 * T, XR + 2 * T)
        a('s_mul_i32 s%d, s%d, 320' % (sT[0], sCG))
        a('s_add_u32 s%d, s%d, %d' % (sT[0], sT[0], SPARE))
        a('v_lshl_add_u32 v4, v3, 4, s%d' % sT[0])
        self.chunk_of_lane(16, 17)
        a('v_lshlrev_b32 v17, 4, v2')
        a('v_lshl_add_u32 v17, v16, 8, v17')
        a('v_lshlrev_b32 v18, 3, v2')
        a('s_mul_i32 s%d, s%d, 20480' % (sP[0], sXO))
        a('s_mul_i32 s%d, s%d, 2560' % (sT[1], sCG))
        a('s_add_u32 s%d, s%d, s%d' % (sP[0], sP[0], sT[1]))
        a('s_add_u32 s%d, s%d, 0x%x' % (sP[0], sP[0], WY))
        a('s_lshl3_add_u32 s%d, s%d, s%d' % (sP[1], sXO, sCG))
        a('s_lshl_b32 s%d, s%d, 7' % (sP[1], sP[1]))
        a('s_add_u32 s%d, s%d, 0x%x' % (sP[1], sP[1], ST))
        a.wait_lg()
        ACC, GA, C2 = 176, 92, 112
        rd = [lambda T=T: a('ds_read_b128 %s, v4 offset:%d' % (V(GA + 4 * T, 4), GA_ - SPARE + 64 * T), 'ga') for T in range(5)]
        rd += [lambda T=T: a('ds_read_b128 %s, v4 offset:%d' % (V(C2 + 4 * T, 4), C2F - SPARE + 64 * T), 'ga') for T in range(5)]
        hooks = {4: [lambda: a('s_barrier')], 5: rd[:3], 10: rd[3:6], 15: rd[6:8], 9: rd[8:], 8: self.touches('q8')}
        self.ksplit(5, WO_, 20480, B2, 32, 15, self.o['la2'], ACC, FO, RED, self.o['p2_pump'], hooks)
        if not self.o['b3l']: self.flush('b3')
        self.kreduce(ACC)
        for d in range(10):
            a('v_pk_fma_f32 %s, %s, %s, %s' % (V(XF + 2 * d, 2), V(ACC + 2 * d, 2), V(GA + 2 * d, 2), V(XF + 2 * d, 2)))
        for d in range(10):
            a('v_pk_mul_f32 %s, %s, %s' % (V(C2 + 2 * d, 2), V(C2 + 2 * d, 2), V(XF + 2 * d, 2)))
        self.pack_store(C2, 20, 17, SW, sP[0], 256, True, 'yst')
        a('v_pk_add_f32 v[32:33], %s, %s' % (V(XF, 2), V(XF + 2, 2)))
        a('v_pk_mul_f32 v[34:35], %s, %s' % (V(XF, 2), V(XF, 2)))
        a('v_pk_fma_f32 v[34:35], %s, %s, v[34:35]' % (V(XF + 2, 2), V(XF + 2, 2)))
        for d in range(2, 10):
            a('v_pk_add_f32 v[32:33], v[32:33], %s' % V(XF + 2 * d, 2))
            a('v_pk_fma_f32 v[34:35], %s, %s, v[34:35]' % (V(XF + 2 * d, 2), V(XF + 2 * d, 2)))
        a('v_add_f32 v32, v32, v33')
        a('v_add_f32 v33, v34, v35')
        self.rowsum([32, 33], 34)
        self.st2(['s_mov_b64 exec, 0xffff',
                  'buffer_store_dwordx2 v[32:33], v18, s[%d:%d], s%d offen' % (SW, SW + 3, sP[1]),
                  's_mov_b64 exec, -1'], 'yst')
        self.stamp('p2epi')
        self.publish(FY, 'yst', self.touch2(48, 49, 4096, 20, sP[0]))
        for f in self.touches('y'): f()
        self.stamp('Ypub')
        self.flush('b3')
        rest, self.fq = self.fq, []
        self.b3q(7, 10, 0, 'b3t')
        self.flush('b3t')
        self.fq = rest
        self.wq(sB4O, B4, 7, 12, 0, 'b4')
        self.pump(self.o['y_pre'])
        a('s_mul_i32 s%d, s%d, 5120' % (sT[0], sW))
        a('s_add_u32 s%d, s%d, %d' % (sT[0], sT[0], X1S))
        a('v_add_u32 v7, s%d, v1' % sT[0])
        for T in range(5): a('ds_write_b128 v7, %s offset:%d' % (V(XF + 4 * T, 4), 1024 * T))
    Gen.p2 = p2

    def p3(self):
        a = self.a
        BB, ACC, AA = 24, 48, 96
        a('s_cmp_eq_u32 s%d, 3' % sW)
        a('s_cselect_b32 s%d, 0, s%d' % (sP[2], sW))
        for p in (1, 2):
            a('s_add_u32 s%d, s%d, 1' % (sP[2 + p], sP[1 + p]))
            a('s_cmp_eq_u32 s%d, 3' % sP[2 + p])
            a('s_cselect_b32 s%d, 0, s%d' % (sP[2 + p], sP[2 + p]))
        a('v_bfe_u32 v16, v0, 2, 2')
        a('v_lshl_add_u32 v16, v3, 3, v16')
        a('v_mul_u32_u24 v16, 192, v16')
        a('v_and_b32 v17, 3, v0')
        a('v_lshl_add_u32 v16, v17, 3, v16')
        a('v_and_b32 v17, 16, v0')
        a('v_lshl_add_u32 v16, v17, 1, v16')
        for p in range(3):
            a('s_lshl_b32 s%d, s%d, 6' % (sT[0], sP[2 + p]))
            a('v_add_u32 v%d, s%d, v16' % (8 + 2 * p, sT[0]))
            a('v_xor_b32 v%d, 32, v%d' % (9 + 2 * p, 8 + 2 * p))
        a('v_add_u32 v22, 61440, v8')
        a('v_add_u32 v23, 61440, v9')
        a('v_and_b32 v17, 1, v0')
        a('v_mul_u32_u24 v16, 1280, v17')
        a('v_lshl_add_u32 v16, v3, 4, v16')
        a('v_add_u32 v16, %d, v16' % C2B)
        def rd(ks):
            b = AA + 12 * (ks % 10)
            a('ds_read_b128 %s, v16 offset:%d' % (V(b, 4), 64 * ks), 'u%d' % ks)
            for T in range(2):
                for h in range(2): a('ds_read_b64_tr_b16 %s, v%d offset:%d' % (V(b + 4 + 4 * T + 2 * h, 2), (8 if ks < 10 else 22) + T, 6144 * (ks % 10) + 768 * h), 'u%d' % ks)
        if self.o['b3l']:
            a.wait_vm('b3'); a('s_barrier')
        for ks in range(3): rd(ks)
        a('v_mul_u32_u24 v17, 384, v17')
        a('v_lshl_add_u32 v17, v3, 4, v17')
        a('s_lshl_b32 s%d, s%d, 7' % (sT[0], sP[2]))
        a('s_add_u32 s%d, s%d, %d' % (sT[0], sT[0], UT))
        a('v_add_u32 v17, s%d, v17' % sT[0])
        a('v_and_b32 v18, 7, v0')
        a('v_lshlrev_b32 v18, 7, v18')
        a('s_lshr_b32 s%d, s%d, 1' % (sT[1], sW))
        a('s_lshl1_add_u32 s%d, s%d, s%d' % (sT[0], sC, sT[1]))
        a('s_lshl_b32 s%d, s%d, 10' % (sT[0], sT[0]))
        a('s_add_u32 s%d, s%d, 0x%x' % (sT[0], sT[0], FY))
        a('s_lshl2_add_u32 s%d, s%d, s%d' % (sT[5], sC, sW))
        a('s_mul_i32 s%d, s%d, 40960' % (sP[5], sT[5]))
        a('s_add_u32 s%d, s%d, 0x%x' % (sP[5], sP[5], WY))
        for x in range(1, 5): a('s_add_u32 s%d, s%d, %d' % (sP[5 + x], sP[5], 8192 * x))
        a('s_lshl_b32 s%d, s%d, 11' % (sT[4], sT[5]))
        a('s_add_u32 s%d, s%d, 0x%x' % (sT[4], sT[4], ST))
        a('v_lshlrev_b32 v19, 3, v0')
        for ks in range(14):
            b = AA + 12 * (ks % 10)
            a.wait_lg('u%d' % ks)
            a(self.mfma(UA, b + 4, b, first=(ks == 0)))
            a(self.mfma(UA + 4, b + 8, b, first=(ks == 0)))
            if ks + 3 < 14: rd(ks + 3)
        self.stamp('ut')
        order = list(range(10)) + list(range(14, 20)) + list(range(10, 14))
        def bread(n, T, h):
            if n == 10 and h == 0: a('v_add_u32 v%d, 61440, v%d' % (8 + T, 8 + T))
            a('ds_read_b64_tr_b16 %s, v%d offset:%d' % (V(BB + 4 * T + 2 * h, 2), 8 + T, 6144 * (order[n] % 10) + 768 * h), 'B%d_%d' % (n, T))
        def aload(x):
            n, t = x >> 1, x & 1
            off = 20480 * t + 1024 * order[n]
            if 'noA3' in self.o['exp']: return
            self.ld(AA + 4 * x, off & 8191, sP[5 + (off >> 13)], 'A%d' % x, self.o['apol'])
        for T in range(6):
            for h in range(2): bread(0, T, h)
        self.poll(18, sT[0], 20)
        self.stamp('flag')
        aq = list(range(40))
        for x in range(self.o['la3']): aload(aq.pop(0))
        npump = self.o['p3_pump']
        U, Tt = AA, AA + 24
        for n in range(20):
            vm, ot = [], []
            for _ in range(self.o['ra3']):
                if aq: vm.append(lambda x=aq.pop(0): aload(x))
            if n == 12:
                vm += [lambda t=t, hh=hh: a('buffer_load_dwordx2 %s, v19, s[%d:%d], s%d offen offset:%d sc1' % (V(184 + 4 * t + 2 * hh, 2), SW, SW + 3, sT[4], 1024 * t + 512 * hh), 'st') for t in range(2) for hh in range(2)]
            k = min(npump, max(self.o['p3min'], self.o['rp3'] - len(vm)))
            vm += [self.pump] * k; npump -= k
            if 9 <= n < 15:
                ot.append(lambda n=n: a('ds_read_b128 %s, v16 offset:%d' % (R(UA + 8 + 4 * (n & 1), 4), 64 * order[n + 1]), 'uf%d' % (n + 1)))
            if n == 9:
                a.wait_vm('b3t'); a('s_barrier')
            if n == 16:
                ot.append(lambda: (a('s_mov_b32 exec_lo, 0x00030003'), a('s_mov_b32 exec_hi, 0x00030003'), a('ds_write_b128 v17, %s' % R(UA, 4), 'uw'),
                                   a('ds_write_b128 v17, %s offset:64' % R(UA + 4, 4), 'uw'), a('s_mov_b64 exec, -1')))
                for p in range(3):
                    ot.append(lambda p=p: (a('s_lshl_b32 s%d, s%d, 7' % (sT[0], sP[2 + p])), a('s_add_u32 s%d, s%d, %d' % (sT[0], sT[0], UT)),
                                           a('v_lshl_add_u32 v%d, v3, 4, s%d' % (20 + p, sT[0]))))
            if n == 18:
                a.wait_lg('uw'); a('s_barrier')
            if n in (18, 19):
                for T in range(6):
                    ot.append(lambda T=T, n=n: a('ds_read_b128 %s, v%d offset:%d' % (V((U if n == 18 else Tt) + 4 * T, 4), 20 + T // 2, 64 * (T & 1) + (384 if n == 19 else 0)), 'UT'))
            slots = [[] for _ in range(12)]
            for q, f in enumerate(vm): slots[(q * 12 + 6) // len(vm)].append(f)
            free = [g for g in range(12) if not slots[g]]
            for q, f in enumerate(ot): slots[free[q * len(free) // len(ot)]].append(f)
            a.wait_vm('A%d' % (2 * n + 1))
            if self.o['fine'] == 3 and n in (0, 3, 6, 9, 12, 16, 18): self.stamp('m%d' % n)
            for T in range(6):
                if T in (0, 2): a.wait_lg('B%d_%d' % (n, T + 1))
                if T >= 4: a.wait_lg('B%d_%d' % (n, T))
                for t in range(2):
                    a(self.mfma(ACC + 24 * t + 4 * T, BB + 4 * T, AA + 8 * n + 4 * t, first=(n == 0)))
                    if T > 0 and n + 1 < 20: bread(n + 1, T - 1, t)
                    if T == 0 and n > 0: bread(n, 5, t)
                    for f in slots.pop(0): f()
                if 10 <= n < 16 and T < 2:
                    if T == 0: a.wait_lg('uf%d' % n)
                    a(self.mfma(UA + 4 * T, BB + 4 * T, UA + 8 + 4 * ((n - 1) & 1)))
        assert not aq
        self.stamp('mfma')
        a.wait_vm('st')
        a('v_pk_add_f32 v[16:17], v[184:185], v[186:187]')
        a('v_pk_add_f32 v[20:21], v[188:189], v[190:191]')
        self.rowsum([16, 17, 20, 21], 24)
        a('s_mov_b32 s%d, 0x%x' % (sT[7], f2u(1 / 640)))
        self.finstats(16, 17, 18)
        self.finstats(20, 21, 22)
        self.chunk_of_lane(12, 13)
        a('v_lshlrev_b32 v13, 4, v2')
        a('v_lshl_add_u32 v13, v12, 8, v13')
        a('v_add_u32 v12, 49152, v13')
        a('s_mul_i32 s%d, s%d, %d' % (sT[2], sT[5], 2 * 49152))
        a('s_mul_i32 s%d, s%d, 3072' % (sT[1], sJ))
        a('s_add_u32 s%d, s%d, s%d' % (sT[2], sT[2], sT[1]))
        a('s_add_u32 s%d, s%d, 0x%x' % (sT[2], sT[2], WH))
        for p in range(3):
            a('s_lshl_b32 s%d, s%d, 10' % (sP[2 + p], sP[2 + p]))
            a('s_add_u32 s%d, s%d, s%d' % (sP[2 + p], sP[2 + p], sT[2]))
        a('s_mov_b32 s%d, 0x%x' % (sT[0], f2u(-LOG2E)))
        a('s_mov_b32 s%d, s%d' % (sT[1], sT[0]))
        a.wait_lg()
        for t in range(2):
            st = 16 + 4 * t
            for p in range(3):
                z = ACC + 24 * t + 8 * p
                e = 144 + 8 * ((3 * t + p) & 1)
                o = 160 + 4 * (3 * t + p)
                for d in range(4):
                    a('v_pk_fma_f32 %s, %s, %s, %s op_sel_hi:[1,0,1] neg_lo:[0,1,0] neg_hi:[0,1,0]' % (V(z + 2 * d, 2), V(U + 8 * p + 2 * d, 2), V(st, 2), V(z + 2 * d, 2)))
                for d in range(4):
                    a('v_pk_fma_f32 %s, %s, %s, %s op_sel:[0,1,0] op_sel_hi:[1,1,1]' % (V(z + 2 * d, 2), V(z + 2 * d, 2), V(st, 2), V(Tt + 8 * p + 2 * d, 2)))
                for d in range(4):
                    a('v_pk_mul_f32 %s, %s, s[%d:%d]' % (V(e + 2 * d, 2), V(z + 2 * d, 2), sT[0], sT[1]))
                for d in range(8): a('v_exp_f32 v%d, v%d' % (e + d, e + d))
                for d in range(4): a('v_pk_add_f32 %s, %s, 1.0 op_sel_hi:[1,0]' % (V(e + 2 * d, 2), V(e + 2 * d, 2)))
                for d in range(8): a('v_rcp_f32 v%d, v%d' % (e + d, e + d))
                for d in range(4): a('v_pk_mul_f32 %s, %s, %s' % (V(z + 2 * d, 2), V(z + 2 * d, 2), V(e + 2 * d, 2)))
                for d in range(4): a('v_cvt_pk_bf16_f32 v%d, v%d, v%d' % (o + d, z + 2 * d, z + 2 * d + 1))
                a('v_permlane16_swap_b32 v%d, v%d' % (o, o + 2))
                a('v_permlane16_swap_b32 v%d, v%d' % (o + 1, o + 3))
                self.st2(['buffer_store_dwordx4 %s, v%d, s[%d:%d], s%d offen' % (V(o, 4), 13 - t, SW, SW + 3, sP[2 + p])], 'hst')
                if 3 * t + p < 2 and npump > 0:
                    k = min(npump, 4); self.pump(k); npump -= k
        self.stamp('p3epi')
        self.publish(FH, 'hst', self.touch2(212, 213, 49152, 24, sT[2]))
        self.stamp('Hpub')
    Gen.p3 = p3

    def p4(self):
        a = self.a
        self.flush('b4')
        ACC, GB, X1 = 16, 160, 180
        rd = [lambda T=T: a('ds_read_b128 %s, v4 offset:%d' % (V(GB + 4 * T, 4), GB_ - SPARE + 64 * T), 'gb') for T in range(5)]
        rd += [lambda T=T: a('ds_read_b128 %s, v7 offset:%d' % (V(X1 + 4 * T, 4), 1024 * T), 'gb') for T in range(5)]
        for f in rd: f()
        self.chunk_of_lane(14, 13)
        a('v_lshl_add_u32 v6, v14, 4, v6')
        self.ksplit(12, WH, 49152, B4, 96, 16, self.o['la4'], ACC, FH, 0, 0, {})
        self.kreduce(ACC)
        for d in range(10):
            a('v_pk_fma_f32 %s, %s, %s, %s' % (V(X1 + 2 * d, 2), V(ACC + 2 * d, 2), V(GB + 2 * d, 2), V(X1 + 2 * d, 2)))
        self.pack_store(X1, 200, 6, SO, sB1, 16, False)
        self.stamp('p4epi')
    Gen.p4 = p4

    def run(self):
        self.prologue()
        a = self.a
        a('s_and_b32 s%d, s%d, 31' % (sTQ, sCI))
        a('s_lshl2_add_u32 s%d, s%d, s%d' % (sTQ, sTQ, sW))
        self.p1_gemm()
        self.p1_attn()
        self.p2()
        self.p3()
        self.p4()
        self.finish()
    Gen.run = run
```

```python
import sys, os, math
sys.path.insert(0, os.path.dirname(os.path.abspath(__file__)))
from asmlib import *

NAME = 'adaLN_cond__sliding_local_dilated__dense_activation_silu__prompt'

JF   = 0x1000
CF   = 0x60000
FO   = 0x2000
FY   = 0xA000
FH   = 0x12000
FX   = 0x1A000
XI   = 0x22000
MODP = 0x24000
ST   = 0x40000
W2T  = 0x80000
W4T  = W2T + 819200
WO_  = W4T + 1966080
WY   = WO_ + 2621440
WH   = WY + 2621440
WHB  = WH + 6291456
W1C  = WHB + 2621440
DBG  = W1C + 2457600 + 256
WSZ  = DBG + 1024 * 256

RGN   = 38400
SPARE = 153600
HST   = SPARE + 8192
MRED  = SPARE + 8704
HP    = 76800
EX    = 76800 + 12288
RED   = 92160
X1S   = 122880
UT    = 143360
GA_, C2F, GB_, C2B, S2B = SPARE, SPARE + 2560, SPARE + 5120, SPARE + 7680, SPARE + 8960
TOFF = [0, 48, 80, 128, 32, 160, 208, 192]

sW, sC, sJ, sTAG, sCI = 3, 4, 5, 6, 7
pX, pQ, pWO, pW1, pW2, pC, pWM, pOUT, pWS = 8, 10, 12, 16, 18, 20, 22, 24, 28
SX, SQ, SW, SO, S1, SJ = 32, 36, 40, 44, 48, 52
sRG, sCG = 30, 31
sP = [56, 57, 58, 59, 60, 61, 62, 63, 64, 65, 66, 67]
sB3M, sB4O = 68, 69
sG0, sG1 = 70, 72
jD = [74, 75, 76]; jS = [77, 78, 79]
sJ0, sJ1 = 100, 101
sTQ = 100
sNM = 80
sMO = 81
sRB = 82
sXO = 83
sB1 = 84
sPROD = 85
sT = [86, 87, 88, 89, 90, 91, 92, 93]
sCNT = 94
sONE = 95
sHI = 96
sFAIL = 97
sSLOW = 14
sN = 15
sTILE = 26
sSL2 = 27
sCP = 97
CPP = 976

LOG2E = 1.4426950408889634
def f2u(x):
    import struct
    return struct.unpack('<I', struct.pack('<f', x))[0]

DEF = dict(bpol='sc1', jpol='nt', hpol='', fast=0, cwarm=1, wpol='sc1', w1pol='', apol='sc1', spol='', touch=0, early=2, lin=1, gp0=12, t2='x', t3a='x', t3b='x', t4a='x', t4b='x', fine=0, exp='',
           ord='cmf', role='p', cp='c', xo=0, e2=3, mxp=0, pre=3, xpol='sc1', cf1=0, m1=1, nb0=8, mpg=1, la0=4, nb2=15, rb1=32322, ra0=2, cpol='', ra1=4, la1=8, jfi=13, jfc=15, g_pump=3, at_pump=21,
           la2=12, la3=12, la4=12, mw1=10, mwp='', hl=1, pw=9, pwm=0, mx=-1, tb1=0, tb0=8, b3l=0, ra3=3, rp3=3, p3min=0, o_pre=0, p2_pump=10, y_pre=0, p3_pump=60, h_pre=0)

class Gen:
    def __init__(self, stamps=False, opt=None):
        self.a = Asm()
        self.stamps = stamps
        self.o = dict(DEF); self.o.update(opt or {})
        self.nst = 0
        self.fq = []
        self.cold = []
        self.level = 0

    def stamp(self, name, idx=None):
        if not self.stamps: return
        a = self.a
        idx = self.nst if idx is None else idx
        a.c('stamp %d %s' % (idx, name))
        if name == 'karg':
            a.wait_lg()
            a('v_writelane_b32 v15, s98, 40')
        a('s_memtime s[98:99]' if self.o.get('cyc') else 's_memrealtime s[98:99]')
        a.wait_lg()
        a('v_writelane_b32 v15, s98, %d' % idx)
        if name == 'gemm0' and self.o.get('amp', 0) in (42, 43):
            a('s_mov_b32 s98, 0x%x' % (DBG - 256))
            a('s_or_b32 s99, s2, s%d' % sW)
            a('s_cmp_eq_u32 s99, 0')
            a('s_cselect_b32 exec_hi, 256, 0')
            a('s_mov_b32 exec_lo, 0')
            a('buffer_store_dword v15, off, s[%d:%d], s98 sc0 sc1' % (SW, SW + 3))
            a('s_mov_b64 exec, -1')
        self.nm = getattr(self, 'nm', {})
        self.nm[idx] = name
        self.nst = max(self.nst, idx + 1)
        self.names = [self.nm.get(i, '-') for i in range(self.nst)]

    def srd(self, d, p, n):
        a = self.a
        a('s_mov_b32 s%d, s%d' % (d, p))
        a('s_and_b32 s%d, s%d, 0xffff' % (d + 1, p + 1))
        a('s_mov_b32 s%d, %d' % (d + 2, n))
        a('s_mov_b32 s%d, 0x20000' % (d + 3))

    def exec_(self, lo, hi):
        self.a('s_mov_b32 exec_lo, %s' % lo)
        self.a('s_mov_b32 exec_hi, %s' % hi)
    def exec_all(self):
        self.a('s_mov_b64 exec, -1')

    def barrier(self):
        self.a.wait_lg()
        self.a('s_barrier')

    def rowsum(self, regs, tmp):
        a = self.a
        for sw in ('v_permlane32_swap_b32', 'v_permlane16_swap_b32'):
            for i, r in enumerate(regs): a('v_mov_b32 v%d, v%d' % (tmp + i, r))
            for i, r in enumerate(regs): a('%s v%d, v%d' % (sw, r, tmp + i))
            for i, r in enumerate(regs): a('v_add_f32 v%d, v%d, v%d' % (r, r, tmp + i))

    def finstats(self, s1, s2, t):
        a = self.a
        a('v_mul_f32 v%d, 0x%x, v%d' % (s1, f2u(1 / 640), s1))
        a('v_mul_f32 v%d, v%d, v%d' % (t, s1, s1))
        a('v_fma_f32 v%d, v%d, s%d, -v%d' % (s2, s2, sT[7], t))
        a('v_max_f32 v%d, 0, v%d' % (s2, s2))
        a('v_add_f32 v%d, 0x%x, v%d' % (s2, f2u(1e-5), s2))
        a('v_rsq_f32 v%d, v%d' % (s2, s2))

    def poll(self, vaddr, soff, vt):
        a = self.a
        L, D = a.newlabel('poll'), a.newlabel('pdone')
        a('s_mov_b32 s%d, 0x8000' % sCNT)
        a.label(L)
        a('buffer_load_dword v%d, v%d, s[%d:%d], s%d offen sc1' % (vt, vaddr, SW, SW + 3, soff))
        a.wait_vm()
        a('v_cmp_ne_u32 vcc, s%d, v%d' % (sTAG, vt))
        a('s_cbranch_vccz %s' % D)
        a('s_sub_u32 s%d, s%d, 1' % (sCNT, sCNT))
        a('s_cmp_lg_u32 s%d, 0' % sCNT)
        a('s_cbranch_scc1 %s' % L)
        a.label(D)

    def mod_issue(self, vecs, r0, vaddr, tag, NP=2):
        a = self.a
        for i, vec in enumerate(vecs):
            for p in range(NP):
                a('s_mov_b32 s%d, 0x%x' % (sT[0], MODP + p * 15360 + vec * 2560))
                a('buffer_load_dwordx4 %s, v%d, s[%d:%d], s%d offen sc1' % (V(r0 + 4 * NP * i + 4 * p, 4), vaddr, SW, SW + 3, sT[0]), tag)

    def mod_check(self, vecs, r0, vaddr, tag, t, NP=2):
        a = self.a
        L, C, D = a.newlabel('mchk'), a.newlabel('mcold'), a.newlabel('mok')
        N = 4 * NP * len(vecs)
        a('s_mov_b32 s%d, 0x8000' % sCNT)
        for e in range(4): a('s_bfe_u32 s%d, s%d, 0x%x' % (sT[1 + e], sTAG, 0x80000 + 8 * e))
        a.wait_vm(tag)
        a.label(L)
        for x in range(N):
            a('v_xor_b32 v%d, s%d, v%d' % (r0 + x, sT[1 + (x & 3)], r0 + x))
            if x == 1: a('v_or_b32 v%d, v%d, v%d' % (t, r0, r0 + 1))
            elif x & 1: a('v_or3_b32 v%d, v%d, v%d, v%d' % (t, t, r0 + x - 1, r0 + x))
        a('v_cmp_ne_u32_sdwa vcc, v%d, v%d src0_sel:BYTE_0 src1_sel:BYTE_3' % (t, 0))
        a('s_cbranch_vccnz %s' % C)
        a.label(D)
        def cold():
            a.label(C)
            a('s_add_u32 s%d, s%d, 1' % (sFAIL, sFAIL))
            a('s_sub_u32 s%d, s%d, 1' % (sCNT, sCNT))
            a('s_cmp_eq_u32 s%d, 0' % sCNT)
            a('s_cbranch_scc1 %s' % D)
            self.mod_issue(vecs, r0, vaddr, None, NP)
            a('s_waitcnt vmcnt(0)')
            a('s_branch %s' % L)
        self.cold.append(cold)
        for p in range(1, NP):
            for i in range(len(vecs)):
                r = r0 + 4 * NP * i
                for e in (0, 2): a('v_pk_add_f32 %s, %s, %s' % (V(r + e, 2), V(r + e, 2), V(r + 4 * p + e, 2)))
        for i in range(len(vecs)):
            r = r0 + 4 * NP * i
            a('v_cvt_pk_bf16_f32 v%d, v%d, v%d' % (r, r, r + 1))
            a('v_cvt_pk_bf16_f32 v%d, v%d, v%d' % (r + 1, r + 2, r + 3))

    def unpack4(self, d, s):
        a = self.a
        a('v_lshlrev_b32 v%d, 16, v%d' % (d, s))
        a('v_and_b32 v%d, s%d, v%d' % (d + 1, sHI, s))
        a('v_lshlrev_b32 v%d, 16, v%d' % (d + 2, s + 1))
        a('v_and_b32 v%d, s%d, v%d' % (d + 3, sHI, s + 1))

    def plus1(self, r):
        a = self.a
        self.unpack4(r + 4, r)
        for e in range(4): a('v_add_f32 v%d, 1.0, v%d' % (r + 4 + e, r + 4 + e))
        a('v_cvt_pk_bf16_f32 v%d, v%d, v%d' % (r, r + 4, r + 5))
        a('v_cvt_pk_bf16_f32 v%d, v%d, v%d' % (r + 1, r + 6, r + 7))

    def mfma(self, d, wa, act, first=False):
        c = '0' if first else R(d, 4)
        return 'v_mfma_f32_16x16x32_bf16 %s, %s, %s, %s' % (R(d, 4), R(wa, 4), R(act, 4), c)

    def pump(self, k=1):
        while k > 0 and self.fq and self.fq[0][0] <= self.level:
            self.fq.pop(0)[1]()
            k -= 1
    def flush(self, name):
        while any(e[2] == name for e in self.fq):
            assert self.fq[0][0] <= self.level
            self.fq.pop(0)[1]()

    def st2(self, texts, tag=None, sl=None):
        a = self.a
        if not self.o['fast']:
            for t in texts:
                if t.startswith('buffer'): a(t + ' sc1', tag)
                else: a(t)
            return
        Ls, Ld = a.newlabel('slow'), a.newlabel('sdone')
        a('s_cmp_lg_u32 s%d, 0' % (sSLOW if sl is None else sl))
        a('s_cbranch_scc1 %s' % Ls)
        for t in texts: a(t + (' ' + self.o['spol'] if t.startswith('buffer') else ''), tag)
        a.label(Ld)
        def cold():
            a.label(Ls)
            a('s_nop 4')
            for t in texts: a.items.append(Ins(t + (' sc1' if t.startswith('buffer') else '')))
            a('s_nop 1')
            a('s_branch %s' % Ld)
        self.cold.append(cold)

    def flagstore(self, soff, sl=None):
        a = self.a
        D = a.newlabel('pub')
        a('s_cmp_lg_u32 s%d, 0' % sW)
        a('s_cbranch_scc1 %s' % D)
        a('v_mov_b32 v14, s%d' % sTAG)
        self.exec_(1, 0)
        save = list(a.vm)
        self.st2(['buffer_store_dword v14, off, s[%d:%d], s%d' % (SW, SW + 3, soff)], None, sl)
        a.vm = save
        self.exec_all()
        a.label(D)

    def publish(self, base, tag=None, touch=None):
        a = self.a
        a('s_lshl_b32 s%d, s%d, 7' % (sT[0], sCI))
        a('s_add_u32 s%d, s%d, 0x%x' % (sT[0], sT[0], base))
        if touch and self.o['touch']: touch[0]()
        a.wait_vm(tag)
        if touch and self.o['touch']: touch[1]()
        self.barrier()
        self.flagstore(sT[0])

    def xi_issue(self, tag):
        a = self.a
        a('s_lshl_b32 s%d, s%d, 7' % (sT[0], sC))
        a('s_add_u32 s%d, s%d, 0x%x' % (sT[0], sT[0], XI))
        a('v_lshlrev_b32 v32, 2, v2')
        a('buffer_load_dword v33, v32, s[%d:%d], s%d offen sc1' % (SW, SW + 3, sT[0]), tag)
    def xi_check(self, tag):
        a = self.a
        L, D = a.newlabel('xi'), a.newlabel('xiok')
        a.wait_vm(tag)
        a('s_mov_b32 s%d, 0x8000' % sCNT)
        a.label(L)
        a('v_subrev_u32 v33, s%d, v33' % sTAG)
        a('v_cmp_lt_u32 vcc, 15, v33')
        a('s_cbranch_vccz %s' % D)
        a('s_sub_u32 s%d, s%d, 1' % (sCNT, sCNT))
        a('s_cmp_eq_u32 s%d, 0' % sCNT)
        a('s_cbranch_scc1 %s' % D)
        save = list(a.vm)
        self.xi_issue(None)
        a('s_waitcnt vmcnt(0)')
        a.vm = save
        a('s_branch %s' % L)
        a.label(D)
        a('v_readfirstlane_b32 s%d, v33' % sT[0])
        a('v_cmp_ne_u32 vcc, s%d, v33' % sT[0])
        a('s_or_b32 s%d, vcc_lo, vcc_hi' % sSLOW)

    def b1_one(self, x, force=False, mask=None):
        a = self.a
        if force or x % 4 == 0:
            a('s_add_u32 m0, s%d, %d' % (sRB, 4096 * (x // 4)))
            a('s_add_u32 s%d, s%d, %d' % (sT[7], sB1, 4096 * (x // 4)))
        if mask is not None: a('s_mov_b32 exec_lo, s%d' % mask)
        if x == 37: a('s_mov_b32 exec_hi, 0')
        elif mask is not None: a('s_mov_b32 exec_hi, s%d' % mask)
        a('buffer_load_dwordx4 v1, s[%d:%d], s%d offen offset:%d %s lds' % (SW, SW + 3, sT[7], 1024 * (x & 3), self.o['bpol']), 'b1_%d' % (2 * x // 15))
        if x == 37 or mask is not None: self.exec_all()
    def b1_issue(self, x0, x1):
        for x in range(x0, x1): self.b1_one(x, x == x0)

    def xi_publish(self):
        a = self.a
        a.wait_lg()
        a('s_add_u32 s%d, s%d, 0x9e3779b9' % (sTAG, sTAG))

    def prologue(self):
        a = self.a
        a('s_cmp_ge_u32 s2, 256')
        a('s_cbranch_scc1 L_end')
        if self.stamps: a('s_memrealtime s[98:99]')
        a('s_load_dwordx16 s[8:23], s[0:1], 0')
        a('s_load_dwordx4 s[24:27], s[0:1], 64')
        a('s_load_dwordx2 s[28:29], s[0:1], 80')
        if self.o['cwarm']:
            a('s_getpc_b64 s[%d:%d]' % (SJ, SJ + 1))
            a('s_and_b32 s%d, s%d, 0xffff' % (SJ + 1, SJ + 1))
            a('s_mov_b32 s%d, CODE_END-%s_kernel-64' % (SJ + 2, NAME))
            a('s_mov_b32 s%d, 0x20000' % (SJ + 3))
            a('s_bfe_u32 s%d, s2, 0x10003' % sT[0])
            a('s_lshl_b32 s%d, s%d, 15' % (sT[0], sT[0]))
            a('v_lshl_add_u32 v1, v0, 7, s%d' % sT[0])
            a('buffer_load_dword v255, v1, s[%d:%d], 0 offen' % (SJ, SJ + 3), 'cw')
        a('v_lshrrev_b32 v1, 6, v0')
        a('v_and_b32 v0, 63, v0')
        a('v_readfirstlane_b32 s%d, v1' % sW)
        a('v_lshlrev_b32 v1, 4, v0')
        if self.stamps: a('v_mov_b32 v15, 0')
        assert not self.o['fast']
        a('s_and_b32 s%d, s2, 7' % sT[0])
        a('s_lshr_b32 s%d, s2, 7' % sT[1])
        a('s_lshl1_add_u32 s%d, s%d, s%d' % (sC, sT[0], sT[1]))
        a('s_bfe_u32 s%d, s2, 0x40003' % sJ)
        a('s_lshl4_add_u32 s%d, s%d, s%d' % (sCI, sC, sJ))
        a('s_lshr_b32 s%d, s%d, 3' % (sRG, sJ))
        a('s_and_b32 s%d, s%d, 7' % (sCG, sJ))
        a('s_mov_b32 s%d, 0x3f803f80' % sONE)
        a('s_mov_b32 s%d, 0xffff0000' % sHI)
        a('s_mul_i32 s%d, s%d, %d' % (sRB, sW, RGN))
        a('s_mul_i32 s%d, s%d, 153600' % (sB1, sJ))
        a('s_add_u32 s%d, s%d, s%d' % (sB1, sB1, sRB))
        a('s_add_u32 s%d, s%d, 0x%x' % (sB1, sB1, W1C))
        a('v_and_b32 v2, 15, v0')
        a('v_lshrrev_b32 v3, 4, v0')
        a('v_lshrrev_b32 v36, 5, v0')
        a('v_bfe_u32 v37, v0, 3, 2')
        a('v_lshl_add_u32 v36, v36, 3, v37')
        a('v_and_b32 v37, 0x70, v1')
        a('v_mul_u32_u24 v38, 7680, v36')
        a('v_add_u32 v38, v38, v37')
        a('v_mul_u32_u24 v39, 1280, v36')
        a('v_add_u32 v39, v39, v37')
        a('v_lshlrev_b32 v41, 2, v0')
        a('v_mul_u32_u24 v6, 13, v0')
        a('v_lshrrev_b32 v6, 8, v6')
        a('v_mul_u32_u24 v6, 960, v6')
        a('v_add_u32 v6, v6, v1')
        a('v_mul_u32_u24 v43, 1280, v2')
        a('v_lshl_add_u32 v43, v3, 4, v43')
        a('s_lshr_b32 s%d, s%d, 1' % (sT[2], sJ))
        a('s_lshl3_add_u32 s%d, s%d, s%d' % (sT[3], sT[1], sT[2]))
        a('s_lshl3_add_u32 s%d, s%d, s%d' % (sT[3], sT[3], sT[0]))
        a('s_lshl3_add_u32 s%d, s%d, s%d' % (sXO, sC, sT[2]))
        a('s_xor_b32 s%d, s%d, s%d' % (sT[1], sT[1], sJ))
        a('s_and_b32 s%d, s%d, 1' % (sT[1], sT[1]))
        a('s_sub_u32 s%d, 0, s%d' % (sPROD, sT[1]))
        Lp, Ld = a.newlabel('prod'), a.newlabel('join')
        a('s_cbranch_scc1 %s' % Lp)
        save = (list(a.vm), list(a.lg))
        self.plain()
        a('s_branch %s' % Ld)
        q = list(a.vm)
        a.vm, a.lg = save
        a.label(Lp)
        self.producer()
        assert q == a.vm, (q, a.vm)
        a.label(Ld)

    def staging(self):
        a = self.a
        a('s_lshl_b32 s%d, s%d, 11' % (sT[0], sW))
        a('s_add_u32 s%d, s%d, %d' % (sT[0], sT[0], SPARE))
        a('v_and_b32 v42, 0x30, v0')
        a('v_lshlrev_b32 v42, 1, v42')
        a('v_xor_b32 v42, v42, v1')
        a('v_add_u32 v42, s%d, v42' % sT[0])
        a('v_lshrrev_b32 v140, 2, v0')
        a('v_and_b32 v141, 6, v140')
        a('v_lshlrev_b32 v141, 4, v141')
        a('v_lshl_add_u32 v140, v140, 7, v141')
        a('v_and_b32 v141, 3, v0')
        a('v_lshl_add_u32 v140, v141, 3, v140')
        a('v_add_u32 v140, s%d, v140' % sT[0])
        for T in range(1, 4): a('v_xor_b32 v%d, %d, v140' % (140 + T, 32 * T))
        a('v_add_u32 v41, s%d, v41' % sT[0])
        a('v_lshl_add_u32 v45, v3, 4, s%d' % sT[0])
        a('v_lshl_add_u32 v145, v3, 6, s%d' % sT[0])
        a('s_lshl_b32 s%d, s%d, 8' % (sT[0], sW))
        a('s_add_u32 s%d, s%d, %d' % (sT[0], sT[0], MRED))
        a('v_lshl_add_u32 v144, v3, 4, s%d' % sT[0])
        a('v_lshlrev_b32 v146, 4, v2')
        a('v_add_u32 v147, %d, v146' % MRED)
    def silu(self, nu, C=44, D=128, tag='c'):
        a = self.a
        a.wait_vm(tag)
        a('v_lshlrev_b32 v46, 16, v%d' % C)
        a('v_and_b32 v47, s%d, v%d' % (sHI, C))
        for r in (46, 47): a('v_mul_f32 v%d, 0x%x, v%d' % (r + 2, f2u(-LOG2E), r))
        for r in (46, 47): a('v_exp_f32 v%d, v%d' % (r + 2, r + 2))
        for r in (46, 47): a('v_add_f32 v%d, 1.0, v%d' % (r + 2, r + 2))
        for r in (46, 47): a('v_rcp_f32 v%d, v%d' % (r + 2, r + 2))
        for r in (46, 47): a('v_mul_f32 v%d, v%d, v%d' % (r, r, r + 2))
        a('v_cvt_pk_bf16_f32 v44, v46, v47')
        a('ds_write_b32 v41, v44')
        for u in range(nu):
            a('ds_read_b128 %s, v45 offset:%d' % (V(D + 4 * u, 4), 64 * u), 'silu')
    def mod_write(self, MA=60):
        a = self.a
        self.exec_('0x00010001', '0x00010001')
        a('s_nop 6')
        for T in range(4): a('ds_write_b128 v144, %s offset:%d' % (V(MA + 4 * T, 4), 64 * T))
        self.exec_all()
    def mod_publish(self, MA=60, sNM=sNM, sMO=sMO):
        a = self.a
        Ld = a.newlabel('nomod')
        a('s_cmp_eq_u32 s%d, 0' % sNM)
        a('s_cselect_b32 s%d, 1, s%d' % (sT[5], sW))
        a('s_cmp_lg_u32 s%d, 0' % sT[5])
        a('s_cselect_b32 s%d, 0, 0xffff' % sT[5])
        a('s_cbranch_scc1 %s' % Ld)
        for i in range(4): a('ds_read_b128 %s, v147 offset:%d' % (V(MA + 4 * i, 4), 256 * i))
        a('s_mov_b32 s%d, 0xffffff00' % sT[0])
        for e in range(4): a('s_bfe_u32 s%d, s%d, 0x%x' % (sT[1 + e], sTAG, 0x80000 + 8 * e))
        a.wait_lg()
        for hh in (0, 2):
            a('v_pk_add_f32 %s, %s, %s' % (V(MA + hh, 2), V(MA + hh, 2), V(MA + 4 + hh, 2)))
            a('v_pk_add_f32 %s, %s, %s' % (V(MA + 8 + hh, 2), V(MA + 8 + hh, 2), V(MA + 12 + hh, 2)))
        for hh in (0, 2):
            a('v_pk_add_f32 %s, %s, %s' % (V(MA + hh, 2), V(MA + hh, 2), V(MA + 8 + hh, 2)))
        for e in range(4): a('v_and_b32 v%d, s%d, v%d' % (MA + e, sT[0], MA + e))
        for e in range(4): a('v_or_b32 v%d, s%d, v%d' % (MA + e, sT[1 + e], MA + e))
        a.label(Ld)
        self.exec_('s%d' % sT[5], 0)
        a('buffer_store_dwordx4 %s, v146, s[%d:%d], s%d offen sc1' % (V(MA, 4), SW, SW + 3, sMO), 'mp')
        self.exec_all()
    def cf_addr(self):
        a = self.a
        a('s_lshl_b32 s%d, s%d, 12' % (sT[6], sJ))
        a('s_mul_i32 s%d, s%d, 640' % (sT[0], sW))
        a('s_add_u32 s%d, s%d, s%d' % (sT[6], sT[6], sT[0]))
        a('s_add_u32 s%d, s%d, 0x%x' % (sT[6], sT[6], CF))
        a('v_and_b32 v50, 7, v0')
        a('v_min_u32 v50, 4, v50')
        a('v_lshlrev_b32 v50, 7, v50')

    def cp_setup(self):
        a = self.a
        a('s_sub_u32 s%d, s%d, 48' % (sT[1], sT[3]))
        a('s_cselect_b32 s%d, 0, -1' % sCP)
        a('s_and_b32 s%d, s%d, s%d' % (sT[1], sT[1], sCP))
        a('s_lshr_b32 s%d, s%d, 2' % (sT[0], sT[1]))
        a('s_and_b32 s%d, s%d, 3' % (sT[1], sT[1]))
        a('s_lshl2_add_u32 s%d, s%d, s%d' % (sT[2], sT[0], sW))
        a('s_mul_i32 s%d, s%d, %d' % (sT[2], sT[2], 8 * 3840))
        a('s_mul_i32 s%d, s%d, 320' % (sT[4], sT[1]))
        a('s_add_u32 s%d, s%d, s%d' % (sT[2], sT[2], sT[4]))
        a('s_lshl2_add_u32 s%d, s%d, s%d' % (sT[1], sT[1], sW))
        a('s_mul_i32 s%d, s%d, 20' % (sT[4], sT[1]))
        a('s_add_u32 s%d, s%d, s%d' % (sT[4], sT[4], sT[0]))
        a('s_mul_i32 s%d, s%d, 7680' % (sG0, sT[4]))
        a('s_add_u32 s%d, s%d, 0x%x' % (sG0, sG0, W1C))
        a('s_lshl_b32 s%d, s%d, 5' % (sT[1], sT[1]))
        a('s_add_u32 s%d, s%d, s%d' % (sT[1], sT[1], sT[0]))
        a('s_lshl_b32 s%d, s%d, 7' % (sG0 + 1, sT[1]))
        a('s_add_u32 s%d, s%d, 0x%x' % (sG0 + 1, sG0 + 1, CF))
        a('s_mul_i32 m0, s%d, %d' % (sW, 8 * CPP))
    def cp_load(self):
        a = self.a
        self.srd(SQ, pQ, 640 * 3840)
        a('s_mov_b32 exec_lo, s%d' % sCP)
        a('s_lshr_b32 exec_hi, s%d, 4' % sCP)
        for x in range(8):
            a('buffer_load_dwordx4 v6, s[%d:%d], s%d offen %s lds' % (SQ, SQ + 3, sT[2], self.o['cpol']), 'cp')
            if x < 7:
                a('s_add_u32 m0, m0, %d' % CPP)
                a('s_add_u32 s%d, s%d, 3840' % (sT[2], sT[2]))
        self.exec_all()
    def cp_store(self):
        a = self.a
        a('s_mul_i32 s%d, s%d, 80' % (sT[0], sW))
        a('v_lshrrev_b32 v216, 2, v0')
        a('v_mul_u32_u24 v216, %d, v216' % (2 * CPP))
        a('v_and_b32 v217, 3, v0')
        a('v_lshl_add_u32 v216, v217, 3, v216')
        a('v_add_u32 v216, s%d, v216' % sT[0])
        a('v_and_b32 v217, 2, v0')
        a('v_mul_u32_u24 v217, 152, v217')
        a('v_add_u32 v217, v217, v216')
        a('v_add_u32 v218, 4096, v152')
        a.wait_vm('cp')
        a('s_barrier')
        for T, off in enumerate([0, 48, 320, 368, 32, 640, 688, 672]):
            for h in range(2):
                a('ds_read_b64_tr_b16 %s, v%d offset:%d' % (V(220 + 4 * T + 2 * h, 2), 217 if T == 4 else 216, off + CPP * h), 'ct%d' % T)
        for T in range(8):
            a.wait_lg('ct%d' % T)
            for d in range(4):
                r = 220 + 4 * T + d
                a('v_lshlrev_b32 v%d, 16, v%d' % (212 + d, r))
                a('v_and_b32 v%d, s%d, v%d' % (r, sHI, r))
            for d in range(4): a('v_cvt_pk_f16_f32 v%d, v%d, v%d' % (220 + 4 * T + d, 212 + d, 220 + 4 * T + d))
            if T == 7:
                a('s_and_b32 exec_lo, s%d, 0x00ff00ff' % sCP)
                a('s_mov_b32 exec_hi, exec_lo')
            else: self.exec_('s%d' % sCP, 's%d' % sCP)
            a('buffer_store_dwordx4 %s, v%d, s[%d:%d], s%d offen offset:%d sc1' % (V(220 + 4 * T, 4), 218 if T == 7 else 1 if T < 4 else 5, SW, SW + 3, sG0, 1024 * (T & 3)), 'cs')
            self.exec_all()
        self.stamp('cs', 7)
    def cp_flag(self):
        a = self.a
        a('v_mov_b32 v14, s%d' % sTAG)
        a('s_and_b32 exec_lo, s%d, 1' % sCP)
        a('s_mov_b32 exec_hi, 0')
        a.wait_vm('cs')
        a('buffer_store_dword v14, off, s[%d:%d], s%d sc1' % (SW, SW + 3, sG0 + 1))
        self.exec_all()
        self.stamp('cf', 8)

    def plain(self):
        a = self.a
        sG2 = sG1 + 1
        a('s_mul_i32 s%d, s%d, 205' % (sT[0], sT[3]))
        a('s_lshr_b32 s%d, s%d, 10' % (sT[0], sT[0]))
        a('s_mul_i32 s%d, s%d, 5' % (sT[1], sT[0]))
        a('s_sub_u32 s%d, s%d, s%d' % (sT[1], sT[3], sT[1]))
        a('s_lshl2_add_u32 s%d, s%d, s%d' % (sT[2], sT[1], sW))
        a('s_lshl_b32 s%d, s%d, 6' % (sT[6], sT[2]))
        a('s_mul_i32 s%d, s%d, %d' % (sT[5], sT[2], 32 * 7680))
        a('s_lshl_b32 s%d, s%d, 7' % (sT[4], sT[0]))
        a('s_add_u32 s%d, s%d, s%d' % (sT[5], sT[5], sT[4]))
        a('s_mul_i32 s%d, s%d, 15360' % (sG2, sT[1]))
        a('s_lshl1_add_u32 s%d, s%d, s%d' % (sG2, sT[4], sG2))
        a('s_add_u32 s%d, s%d, 0x%x' % (sG2, sG2, MODP))
        a('s_cmp_lt_u32 s%d, 100' % sT[3])
        a('s_cselect_b32 s%d, -1, 0' % sG1)
        a('v_add_u32 v44, s%d, v41' % sT[6])
        CP = self.o['cp'] == 'c'
        if CP: self.cp_setup()
        a.wait_lg()
        self.stamp('karg', 0)
        a('s_load_dword s%d, s[%d:%d], 0' % (sTAG, pWS, pWS + 1))
        a('s_mov_b32 s%d, s%d' % (sN, sT[3]))
        self.srd(S1, pC, 1280)
        a('buffer_load_dword v44, v44, s[%d:%d], 0 offen' % (S1, S1 + 3), 'c')
        self.srd(SJ, pWM, 640 * 7680)
        self.exec_('s%d' % sG1, 's%d' % sG1)
        self.unit_load(176, 38, sT[5], 7680, 'mc')
        self.exec_all()
        if CP: self.cp_load()
        J = self.o['role'] == 'c'
        if J:
            self.job_setup()
            a('buffer_load_dword v52, v52, s[%d:%d], 0 offen' % (S1, S1 + 3), 'c2')
            for u in range(self.o['early']): self.slot(u)
        self.srd(SW, pWS, WSZ)
        self.srd(SX, pX, 2048 * 1280)
        self.staging()
        self.xi_publish()
        self.stamp('issued', 1)
        self.setup()
        self.silu(1, 44, 112)
        self.stamp('c', 2)
        def modpart():
            a.wait_vm('mc')
            self.unit_tr(176, 96)
            a.wait_lg()
            for T in range(4): a(self.mfma(60 + 4 * T, 96 + 4 * T, 112, first=True))
            self.mod_write()
            self.barrier()
            self.mod_publish(60, sG1, sG2)
            self.stamp('mpub', 3)
        def slots():
            if J:
                for u in range(self.o['early'], 3): self.slot(u)
        for c in self.o['ord']: dict(c=self.cp_store, m=modpart, f=self.cp_flag, s=slots)[c]()
        if self.o['mxp']:
            a('s_lshl2_add_u32 s%d, s%d, s%d' % (sT[0], sN, sW))
            a('v_lshlrev_b32 v48, 7, v0')
            if self.o['mxp'] & 1:
                a('s_mul_i32 s%d, s%d, 5120' % (sT[1], sT[0]))
                a('s_mov_b32 exec_hi, 0xff')
                a('buffer_load_dword v49, v48, s[%d:%d], s%d offen' % (SX, SX + 3, sT[1]))
            if self.o['mxp'] & 2:
                a('s_mul_i32 s%d, s%d, 3840' % (sT[1], sT[0]))
                a('s_mov_b64 exec, 0x3fffffff')
                a('buffer_load_dword v49, v48, s[%d:%d], s%d offen' % (S1, S1 + 3, sT[1]))
            self.exec_all()
        if J:
            self.silu(3, 52, 128, 'c2')
            self.p1_gemm('pre', lambda k: self.jobs(3) if k else self.jobs(0, 3))
        else: self.p1_gemm('pre')

    def unit_load(self, dst, va, soff, pitch, tag):
        a = self.a
        for q in range(4):
            h, gp = q >> 1, q & 1
            if isinstance(pitch, int):
                a('s_add_u32 s%d, s%d, %d' % (sT[7], soff, (16 * gp + 4 * h) * pitch))
            else:
                a('s_mul_i32 s%d, %s, %d' % (sT[7], pitch, 16 * gp + 4 * h))
                a('s_add_u32 s%d, s%d, s%d' % (sT[7], sT[7], soff))
            a('buffer_load_dwordx4 %s, v%d, s[%d:%d], s%d offen %s' % (R(dst + 4 * q, 4), va, SJ, SJ + 3, sT[7], self.o['jpol']), tag)
    def unit_tr(self, src, f):
        a = self.a
        for h in range(2):
            for gp in range(2): a('ds_write_b128 v42, %s offset:%d' % (R(src + 8 * h + 4 * gp, 4), 1024 * gp))
            for T in range(4): a('ds_read_b64_tr_b16 %s, v%d' % (V(f + 4 * T + 2 * h, 2), 140 + T), 'jf%d' % f)
    def unit_store(self, f, mask, dst):
        a = self.a
        self.exec_('s%d' % mask, 's%d' % mask)
        for T in range(4):
            a('buffer_store_dwordx4 %s, v1, s[%d:%d], s%d offen offset:%d sc1' % (V(f + 4 * T, 4), SW, SW + 3, dst, 1024 * T), 'jst')
        self.exec_all()

    def job_setup(self):
        a = self.a
        a('s_lshr_b32 s%d, s%d, 1' % (sT[0], sN))
        a('s_and_b32 s%d, s%d, 1' % (sT[1], sN))
        a('s_sub_u32 s%d, 3, s%d' % (sNM, sT[1]))
        a('s_mul_i32 s%d, s%d, s%d' % (sT[2], sNM, sW))
        a('s_mul_i32 s%d, s%d, 12' % (sT[4], sT[1]))
        a('s_add_u32 s%d, s%d, s%d' % (sT[2], sT[2], sT[4]))
        a('s_lshl_b32 s%d, s%d, 6' % (sT[6], sT[2]))
        a('v_lshl_add_u32 v52, v0, 2, s%d' % sT[6])
        a('s_mul_i32 s%d, s%d, %d' % (sT[6], sT[2], 32 * 7680))
        a('s_lshl_b32 s%d, s%d, 7' % (sT[4], sT[0]))
        a('s_add_u32 s%d, s%d, 2560' % (sT[4], sT[4]))
        a('s_add_u32 s%d, s%d, s%d' % (sT[6], sT[6], sT[4]))
        a('s_mul_i32 s%d, s%d, 15360' % (sMO, sT[1]))
        a('s_lshl1_add_u32 s%d, s%d, s%d' % (sMO, sT[4], sMO))
        a('s_add_u32 s%d, s%d, 0x%x' % (sMO, sMO, MODP))
        a('s_sub_u32 s%d, s%d, 2' % (sT[0], sT[0]))
        a('s_mul_i32 s%d, s%d, 3' % (sT[1], sN))
        a('s_sub_u32 s%d, s%d, 200' % (sT[1], sT[1]))
        a('s_cmp_lt_u32 s%d, 80' % sN)
        a('s_cselect_b32 s%d, s%d, 0' % (sNM, sNM))
        a('s_cselect_b32 s%d, s%d, s%d' % (sT[0], sT[0], sT[1]))
        a('s_mov_b32 s%d, s%d' % (sJ0, sT[0]))
        a('s_mov_b32 s%d, s%d' % (sJ1, sT[6]))

    def slot(self, u):
        a = self.a
        ML = 256
        a('s_add_u32 s%d, s%d, %d' % (sT[1], sJ0, u))
        if self.o['lin']:
            a('s_lshl2_add_u32 s%d, s%d, s%d' % (sT[3], sT[1], sW))
            a('s_mul_i32 s%d, s%d, 6554' % (sT[4], sT[3]))
            a('s_lshr_b32 s%d, s%d, 16' % (sT[4], sT[4]))
            a('s_mul_i32 s%d, s%d, 10' % (sT[2], sT[4]))
            a('s_sub_u32 s%d, s%d, s%d' % (sT[3], sT[3], sT[2]))
            a('s_lshr_b32 s%d, s%d, 2' % (sT[2], sT[4]))
        else:
            a('s_mul_i32 s%d, s%d, 205' % (sT[2], sT[1]))
            a('s_lshr_b32 s%d, s%d, 11' % (sT[2], sT[2]))
            a('s_mul_i32 s%d, s%d, 10' % (sT[3], sT[2]))
            a('s_sub_u32 s%d, s%d, s%d' % (sT[3], sT[1], sT[3]))
            a('s_lshl2_add_u32 s%d, s%d, s%d' % (sT[4], sT[2], sW))
        a('s_mul_i32 s%d, s%d, 40960' % (sT[4], sT[4]))
        a('s_lshl_b32 s%d, s%d, 12' % (jD[u], sT[3]))
        a('s_add_u32 s%d, s%d, s%d' % (jD[u], jD[u], sT[4]))
        a('s_add_u32 s%d, s%d, 0x%x' % (jD[u], jD[u], W2T))
        a('s_lshl_b32 s%d, s%d, 7' % (sT[3], sT[3]))
        a('s_add_u32 s%d, s%d, s%d' % (sT[4], sT[4], sT[3]))
        a('s_sub_u32 s%d, s%d, 819200' % (sT[3], sT[4]))
        a('s_cmp_lt_u32 s%d, 170' % sT[1])
        a('s_cselect_b32 s%d, -1, 0' % jS[u])
        a('s_cmp_lt_u32 s%d, 5' % sT[2])
        a('s_cselect_b32 s%d, s%d, s%d' % (SJ, pWO, pW2))
        a('s_cselect_b32 s%d, s%d, s%d' % (SJ + 1, pWO + 1, pW2 + 1))
        a('s_cselect_b32 s%d, 5, 12' % sT[2])
        a('s_cselect_b32 s%d, s%d, s%d' % (sT[4], sT[4], sT[3]))
        a('s_cmp_gt_u32 s%d, %d' % (sNM, u))
        a('s_cselect_b32 s%d, s%d, s%d' % (SJ, pWM, SJ))
        a('s_cselect_b32 s%d, s%d, s%d' % (SJ + 1, pWM + 1, SJ + 1))
        a('s_cselect_b32 s%d, 30, s%d' % (sT[2], sT[2]))
        a('s_cselect_b32 s%d, s%d, s%d' % (sT[4], sJ1, sT[4]))
        a('s_cselect_b32 s%d, 6, 1' % sT[3])
        a('s_cselect_b32 s%d, -1, s%d' % (sT[1], jS[u]))
        a('s_cselect_b32 s%d, 0, s%d' % (jS[u], jS[u]))
        a('s_cselect_b64 vcc, -1, 0')
        a('s_and_b32 s%d, s%d, 0xffff' % (SJ + 1, SJ + 1))
        a('s_mul_i32 s%d, s%d, 163840' % (SJ + 2, sT[2]))
        a('s_mul_i32 s%d, s%d, 1280' % (sT[3], sT[3]))
        a('v_cndmask_b32 v40, v39, v38, vcc')
        self.exec_('s%d' % sT[1], 's%d' % sT[1])
        self.unit_load(ML + 16 * u, 40, sT[4], 's%d' % sT[3], 'm%d' % u)
        self.exec_all()
        a('s_add_u32 s%d, s%d, %d' % (sJ1, sJ1, 32 * 7680))

    def producer(self):
        a = self.a
        ML, XR_, XF_, MA, SF, MG = 256, 76, 176, 60, 128, 216
        E = self.o['early']
        a('s_mul_i32 s%d, s%d, %d' % (sT[5], sXO, 16 * 1280))
        a('s_mul_i32 s%d, s%d, 320' % (sT[1], sW))
        a('s_add_u32 s%d, s%d, s%d' % (sT[5], sT[5], sT[1]))
        CP = self.o['cp'] == 'p'
        if CP: self.cp_setup()
        a.wait_lg()
        self.stamp('karg', 0)
        a('s_load_dword s%d, s[%d:%d], 0' % (sTAG, pWS, pWS + 1))
        if CP and self.o['xo'] == 0: self.cp_load()
        self.srd(SX, pX, 2048 * 1280)
        for s in range(5):
            a('buffer_load_dwordx4 %s, v43, s[%d:%d], s%d offen offset:%d %s' % (V(XR_ + 4 * s, 4), SX, SX + 3, sT[5], 64 * s, self.o['hpol']), 'xt')
        if CP and self.o['xo']: self.cp_load()
        J = self.o['role'] == 'p'
        E2 = max(E, self.o['e2'])
        if J:
            a('s_mov_b32 s%d, s%d' % (sN, sT[3]))
            self.srd(S1, pC, 1280)
            self.job_setup()
            a('buffer_load_dword v52, v52, s[%d:%d], 0 offen' % (S1, S1 + 3), 'c2')
            a('s_mov_b32 s%d, 0x20000' % (SJ + 3))
            for u in range(E): self.slot(u)
            self.staging()
        self.srd(SW, pWS, WSZ)
        self.xi_publish()
        self.stamp('issued', 1)
        self.setup()
        a('s_lshl2_add_u32 s%d, s%d, s%d' % (sTILE, sXO, sW))
        a('s_mul_i32 s%d, s%d, 5120' % (sTILE, sTILE))
        a('s_add_u32 s%d, s%d, 0x%x' % (sTILE, sTILE, WHB))
        a('v_mov_b32 v34, 0')
        a('v_mov_b32 v35, 0')
        a('s_lshl_b32 s%d, s%d, 7' % (sT[0], sW))
        a('s_add_u32 s%d, s%d, %d' % (sT[0], sT[0], HST))
        a('v_lshl_add_u32 v60, v2, 3, s%d' % sT[0])
        a('v_lshlrev_b32 v61, 3, v2')
        a('v_add_u32 v61, %d, v61' % HST)
        if CP and self.o['xo'] == 0: self.cp_store()
        a.wait_vm('xt')
        self.stamp('c', 2)
        if J:
            for u in range(E, E2): self.slot(u)
        for d in range(20):
            a('v_dot2c_f32_bf16 v34, s%d, v%d' % (sONE, XR_ + d))
            a('v_dot2c_f32_bf16 v35, v%d, v%d' % (XR_ + d, XR_ + d))
        self.rowsum([34, 35], 36)
        a('ds_write_b64 v60, v[34:35]')
        if CP and self.o['xo'] == 1: self.cp_store()
        self.barrier()
        for i in range(4): a('ds_read_b64 %s, v61 offset:%d' % (V(62 + 2 * i, 2), 128 * i))
        self.stamp('mpub', 3)
        for d in range(20):
            a('v_lshlrev_b32 v%d, 16, v%d' % (XF_ + 2 * d, XR_ + d))
            a('v_and_b32 v%d, s%d, v%d' % (XF_ + 1 + 2 * d, sHI, XR_ + d))
        a.wait_lg()
        a('v_pk_add_f32 v[62:63], v[62:63], v[64:65]')
        a('v_pk_add_f32 v[66:67], v[66:67], v[68:69]')
        a('v_pk_add_f32 v[34:35], v[62:63], v[66:67]')

        a('s_mov_b32 s%d, 0x%x' % (sT[7], f2u(1 / 640)))
        self.finstats(34, 35, 36)
        a('v_mul_f32 v34, -v34, v35')
        if CP and self.o['xo'] == 0: self.cp_flag()
        for s in range(5):
            r = XF_ + 8 * s
            for d in range(4):
                a('v_pk_fma_f32 %s, %s, v[34:35], v[34:35] op_sel:[0,1,0] op_sel_hi:[1,1,0]' % (V(r + 2 * d, 2), V(r + 2 * d, 2)))
            for d, (e0, e1) in enumerate(((0, 2), (4, 6), (1, 3), (5, 7))):
                a('v_cvt_pk_f16_f32 v%d, v%d, v%d' % (XR_ + 4 * s + d, r + e0, r + e1))
            a('buffer_store_dwordx4 %s, v%d, s[%d:%d], s%d offen offset:%d %s' % (V(XR_ + 4 * s, 4), 1 if s < 4 else 5, SW, SW + 3, sTILE, 1024 * (s & 3), self.o['xpol']), 'hst')
        self.stamp('hst', 4)
        if CP and self.o['xo'] == 2: self.cp_store()
        if CP and self.o['xo'] == 1: self.cp_flag()
        a('s_lshl_b32 s%d, s%d, 7' % (sT[0], sXO))
        a('s_add_u32 s%d, s%d, 0x%x' % (sT[0], sT[0], FX))
        if J:
            self.silu(3, 52, 128, 'c2')
            self.jobs(0, min(E2, self.o['pre']))
        a.wait_vm('hst')
        a('s_barrier')
        self.flagstore(sT[0])
        self.stamp('pub', 5)
        if CP and self.o['xo'] == 2: self.cp_flag()
        if J:
            for u in range(E2, 3): self.slot(u)
            self.p1_gemm('pre', lambda k: self.jobs(3) if k else self.jobs(min(E2, self.o['pre']), 3))
        else: self.p1_gemm('pre')

    def jobs(self, u0=0, u1=None):
        a = self.a
        ML, MA, SF = 256, 204, 128
        F = [96, 112, 176]
        for u in range(u0, 3 if u1 is None else u1):
            a.wait_vm('m%d' % u)
            self.unit_tr(ML + 16 * u, F[u])
        if u1 is not None: return
        for u in range(3):
            a.wait_lg('jf%d' % F[u])
            if u == 2:
                Ls = a.newlabel('nomf')
                a('s_cmp_lg_u32 s%d, 3' % sNM)
                a('s_cbranch_scc1 %s' % Ls)
            for T in range(4): a(self.mfma(MA + 4 * T, F[u] + 4 * T, SF + 4 * u, first=(u == 0)))
            if u == 2: a.label(Ls)
            self.unit_store(F[u], jS[u], jD[u])
        self.mod_write(MA)
        self.barrier()
        self.mod_publish(MA)
        self.stamp('jobs', 6)

    def jobflag(self):
        a = self.a
        a('s_lshl_b32 s%d, s%d, 2' % (sT[2], sN))
        a('s_add_u32 s%d, s%d, 0x%x' % (sT[2], sT[2], JF))
        a('v_mov_b32 v14, s%d' % sTAG)
        a('s_cmp_eq_u32 s%d, 1' % sW)
        a('s_cselect_b32 s%d, 1, 0' % sT[3])
        a('%s exec_lo, s%d, s%d' % ('s_andn2_b32' if self.o['role'] == 'c' else 's_and_b32', sT[3], sPROD))
        a('s_mov_b32 exec_hi, 0')
        a('buffer_store_dword v14, off, s[%d:%d], s%d sc1' % (SW, SW + 3, sT[2]))
        self.exec_all()

    def setup(self):
        a = self.a
        self.srd(SO, pOUT, 2048 * 1280)
        a('v_min_u32 v7, 39, v0')
        a('s_mul_i32 s%d, s%d, 40' % (sT[0], sW))
        a('v_add_lshl_u32 v7, v7, s%d, 4' % sT[0])
        a('v_add_u32 v5, 4096, v1')
        a('v_mov_b32 v8, v1')
        a('v_and_b32 v149, 0x70, v1')
        a('v_lshl_add_u32 v152, v3, 7, v149')
        for i in range(1, 4):
            a('v_add_u32 v%d, %d, v8' % (8 + i, RGN * i))
            a('v_add_u32 v%d, %d, v152' % (152 + i, RGN * i))
        a('v_add_u32 v12, s%d, v8' % sRB)
        a('v_add_u32 v156, s%d, v152' % sRB)
        a('s_lshr_b32 s%d, s%d, 1' % (sT[0], sW))
        a('s_mul_i32 s%d, s%d, %d' % (sT[0], sT[0], RGN - 12288))
        a('s_mul_i32 s%d, s%d, 6144' % (sT[1], sW))
        a('s_add_u32 s%d, s%d, s%d' % (sT[0], sT[0], sT[1]))
        a('s_add_u32 s%d, s%d, %d' % (sT[0], sT[0], HP))
        a('v_add_u32 v4, s%d, v1' % sT[0])
        a('s_cmp_eq_u32 s%d, 1' % sW)
        a('s_cselect_b32 s%d, 512, 0' % sT[0])
        a('v_or_b32 v157, s%d, v1' % sT[0])
        a('s_lshl_b32 s%d, s%d, 10' % (sT[0], sW))
        a('s_add_u32 s%d, s%d, %d' % (sT[0], sT[0], HP))
        a('v_add_u32 v157, s%d, v157' % sT[0])
        a('s_add_u32 s%d, s%d, 4' % (sT[1], sW))
        a('s_min_u32 s%d, s%d, 5' % (sT[1], sT[1]))
        a('s_lshl_b32 s%d, s%d, 10' % (sT[0], sT[1]))
        a('s_add_u32 s%d, s%d, %d' % (sT[0], sT[0], HP))
        a('v_add_u32 v158, s%d, v1' % sT[0])
        a('s_lshl_b32 s%d, s%d, 9' % (sT[0], sW))
        a('s_add_u32 s%d, s%d, %d' % (sT[0], sT[0], EX))
        a('v_lshl_add_u32 v159, v0, 3, s%d' % sT[0])
        a('s_lshl_b32 s%d, s%d, 9' % (sT[0], sT[1]))
        a('s_add_u32 s%d, s%d, %d' % (sT[0], sT[0], EX))
        a('v_lshl_add_u32 v160, v0, 3, s%d' % sT[0])
        a('s_mul_i32 s%d, s%d, 3072' % (sT[0], sW))
        a('s_add_u32 s%d, s%d, %d' % (sT[0], sT[0], EX))
        a('v_lshl_add_u32 v161, v0, 3, s%d' % sT[0])
        a('v_and_b32 v148, 1, v3')
        a('v_lshrrev_b32 v149, 1, v3')
        a('v_mad_u32_u24 v162, v148, 3, v149')
        a('v_lshlrev_b32 v150, 4, v2')
        a('v_lshl_add_u32 v162, v162, 8, v150')
        a('v_mul_u32_u24 v149, 20480, v149')
        a('v_lshl_add_u32 v163, v148, 3, v150')
        a('v_add_u32 v163, v163, v149')
        NEG = 0xff61b1e6
        a('s_or_b32 s%d, s%d, s%d' % (sT[0], sC, sW))
        a('s_cselect_b32 s%d, 0, 0x%x' % (sT[0], NEG))
        a('s_mov_b32 s%d, 0x80000001' % sT[1])
        a('s_mov_b32 s%d, 0x80000000' % sT[2])
        a('s_mov_b32 s%d, 0x07070303' % sT[3])
        a('v_mov_b32 v150, 0x%x' % NEG)
        a('v_lshlrev_b32 v148, 2, v3')
        a('v_sub_u32 v148, v2, v148')
        for e in range(4):
            a('v_subrev_u32 v149, %d, v148' % e)
            a('v_and_b32 v149, s%d, v149' % sT[1])
            a('v_cmp_ne_u32 vcc, 0, v149')
            a('v_cndmask_b32 v%d, 0, v150, vcc' % (16 + e))
            a('v_cmp_ne_u32 vcc, s%d, v149' % sT[2])
            a('v_cndmask_b32 v%d, 0, v150, vcc' % (20 + e))
            a('v_or_b32 v%d, s%d, v%d' % (24 + e, sT[0], 20 + e))
        for x, r in enumerate((20, 22, 16, 18)):
            a('v_perm_b32 v%d, v%d, v%d, s%d' % (28 + x, r + 1, r, sT[3]))
        a('s_lshl2_add_u32 s%d, s%d, s%d' % (sT[0], sC, sW))
        a('s_mul_i32 s%d, s%d, 40960' % (sT[0], sT[0]))
        for t in range(2):
            for i in range(4): a('s_add_u32 s%d, s%d, 0x%x' % (sP[4 * t + i], sT[0], WHB + 20480 * t + 5120 * i))
        a('s_mul_i32 s%d, s%d, 1280' % (sT[1], sJ))
        a('s_add_u32 s%d, s%d, s%d' % (sP[9], sT[0], sT[1]))
        a('s_add_u32 s%d, s%d, 0x%x' % (sP[9], sP[9], WO_))
        a('s_lshl_b32 s%d, s%d, 3' % (sT[0], sC))
        a('s_max_u32 s%d, s%d, 1' % (sT[1], sT[0]))
        a('s_sub_u32 s%d, s%d, 1' % (sT[1], sT[1]))
        a('s_lshl2_add_u32 s%d, s%d, s%d' % (sT[2], sT[1], sW))
        a('s_mul_i32 s%d, s%d, 5120' % (sT[2], sT[2]))
        a('s_add_u32 s%d, s%d, 0x%x' % (sP[8], sT[2], WHB))
        a('s_lshl1_add_u32 s%d, s%d, s%d' % (sT[0], sW, sT[0]))
        a('v_add_u32 v13, s%d, v0' % sT[0])
        a('v_mov_b32 v148, s%d' % sT[1])
        a('v_cmp_gt_u32 vcc, 2, v0')
        a('v_cndmask_b32 v13, v148, v13, vcc')
        a('v_lshlrev_b32 v13, 7, v13')
        self.w_addr()

    def p1_gemm(self, part='loop', mid=None):
        a = self.a
        o = self.o
        ACC, HACC, BB, HB, HA = 32, 96, 120, 176, 200
        HT = [2, 4, 3, 5, 6, 7]
        steps = [(s, i) for s in range(5) for i in range(4)]
        def bread(n, T):
            s, i = steps[n]
            a('ds_read_b128 %s, v%d offset:%d' % (R(BB + 4 * T, 4), (152 if T == 7 else 8) + i, 7680 * s + 1024 * T), 'B%d_%d' % (n, T))
        def hread(s, x):
            a('ds_read_b128 %s, v%d offset:%d' % (R(HB + 4 * x, 4), 156 if HT[x] == 7 else 12, 7680 * s + 1024 * HT[x]), 'HB%d' % s)
        areg = lambda x: 220 + 4 * x if x < 8 else 256 + 4 * (x - 8)
        def aload(x):
            s, i = steps[x >> 1]
            if 'noA1' in o['exp']: return
            self.ld(areg(x), 1024 * s, sP[4 * (x & 1) + i], 'A%d' % x, o['apol'])
        def mm(d, w, act, T, first):
            return (self.mfma(d, act, w, first) if T >= 5 else self.mfma(d, w, act, first)).replace('bf16', 'f16')
        MG, MV, HV = 52, 168, 236
        outr = lambda n: 220 + 8 * n if n < 4 else 220 + 8 * (n & 1) if n < 14 else {14: 236, 15: 244, 16: 104, 17: 96, 18: 104, 19: 96}[n]
        def mvread(d, va, off, tag):
            return [lambda h=h: a('ds_read_b128 %s, v%d offset:%d' % (V(d + 4 * h, 4), va, off + 16 * h), tag) for h in range(2)]
        def modul(r, m):
            return [lambda d=d: a('v_pk_fma_f16 v%d, v%d, v%d, v%d' % (r + d, r + d, m + d, m + 4 + d)) for d in range(4)]
        if part == 'pre':
            assert o['cp'] == 'c' and o['ord'].index('c') < o['ord'].index('m')
            a('s_mov_b32 s%d, 0' % sFAIL)
            a('s_mov_b64 s[%d:%d], 0xffff' % (sG0, sG0 + 1))
            a('s_mov_b32 s%d, 0xffff0000' % sG1)
            a('s_mov_b32 s%d, 0' % (sG1 + 1))
            self.cf_addr()
            a('v_add_u32 v50, s%d, v50' % sT[6])
            a('v_add_u32 v13, 0x%x, v13' % FX)
            a('v_cmp_gt_u32 vcc, 32, v0')
            a('v_cndmask_b32 v50, v50, v13, vcc')
            L0, D0 = a.newlabel('cfp'), a.newlabel('cfd')
            a('s_mov_b32 s%d, 0x8000' % sCNT)
            m1 = 2 if mid else o['m1']
            if m1 == 2: self.mod_issue([0, 1], MG, 7, 'mod', 5)
            if mid: mid(0)
            a('buffer_load_dword v51, v50, s[%d:%d], 0 offen sc1' % (SW, SW + 3), 'fl')
            if mid: mid(1)
            a('s_mul_i32 s%d, s%d, 1408' % (sT[0], sW))
            a('s_add_u32 s%d, s%d, %d' % (sT[0], sT[0], SPARE))
            a('v_and_b32 v33, 16, v7')
            a('v_sub_u32 v34, v7, v33')
            a('v_lshrrev_b32 v33, 2, v33')
            a('v_add3_u32 v33, v33, v34, s%d' % sT[0])
            a('v_lshlrev_b32 v167, 5, v3')
            a('v_add_u32 v167, %d, v167' % SPARE)
            a('s_lshl_b32 s%d, s%d, 11' % (sT[0], sW))
            a('v_add_u32 v6, s%d, v167' % sT[0])
            a('s_mov_b32 s%d, 0' % sT[5])
            a.wait_vm('fl')
            a.label(L0)
            a('v_cmp_ne_u32 vcc, s%d, v51' % sTAG)
            if o['cf1']: a('s_or_b32 vcc_hi, vcc_hi, vcc_lo')
            a('s_cmp_eq_u32 vcc_hi, 0')
            a('s_cbranch_scc1 %s' % D0)
            a.items.append(Ins('buffer_load_dword v51, v50, s[%d:%d], 0 offen sc1' % (SW, SW + 3)))
            a('s_sub_u32 s%d, s%d, 1' % (sCNT, sCNT))
            a('s_cmp_lg_u32 s%d, 0' % sCNT)
            a('s_waitcnt vmcnt(0)')
            a('s_cbranch_scc1 %s' % L0)
            a.label(D0)
            self.stamp('cfok', 9)
            aq = list(range(40))
            if m1 == 1: self.mod_issue([0, 1], MG, 7, 'mod', 5)
            self.b1_issue(0, o['nb0'])
            if not mid and o['tb1']:
                a('v_lshlrev_b32 v35, 7, v0')
                for k in range(o['tb1']):
                    off = 1024 * o['tb0'] + 8192 * k
                    a('s_add_u32 s%d, s%d, %d' % (sT[7], sB1, off))
                    nl = min(64, (RGN - off) // 128)
                    if nl < 64: a('s_bfm_b64 exec, %d, 0' % nl)
                    a('buffer_load_dword v48, v35, s[%d:%d], s%d offen sc1' % (SW, SW + 3, sT[7]))
                self.exec_all()
            if not o['cf1']:
                Lc = a.newlabel('fxok')
                a('s_cmp_eq_u32 vcc_lo, 0')
                a('s_cbranch_scc1 %s' % Lc)
                save = list(a.vm)
                self.poll(13, sT[5], 32)
                a.vm = save
                a.label(Lc)
            self.stamp('fxok', 10)
            for _ in range(2): aload(aq.pop(0))
            self.ld(HA, 0, sP[8], 'HA0')
            self.b1_issue(o['nb0'], 8)
            if m1 == 0: self.mod_issue([0, 1], MG, 7, 'mod', 5)
            for _ in range(o['la0'] - 2): aload(aq.pop(0))
            self.mod_check([0, 1], MG, 7, 'mod', 36, 5)
            self.stamp('modok', 11)
            self.plus1(MG + 20)
            self.unpack4(40, MG)
            self.unpack4(44, MG + 20)
            a('v_cvt_pk_f16_f32 v36, v44, v46')
            a('v_cvt_pk_f16_f32 v37, v45, v47')
            a('v_cvt_pk_f16_f32 v38, v40, v42')
            a('v_cvt_pk_f16_f32 v39, v41, v43')
            a('ds_write2_b32 v33, v36, v37 offset0:0 offset1:2')
            a('ds_write2_b32 v33, v38, v39 offset0:4 offset1:6')
            x = 8
            while x < o['nb2'] or len(aq) > 40 - o['la1']:
                if len(aq) > 40 - o['la1']: aload(aq.pop(0))
                if x < o['nb2']: self.b1_one(x, x == 8); x += 1
            a.wait_vm(['b1_0', 'HA0'])
            a.wait_lg()
            return
        aq = list(range(o['la1'], 40))
        a('s_barrier')
        self.stamp('gemm0')
        for f in mvread(MV, 167, 0, 'mv0') + mvread(40, 6, 0, 'mv0'): f()
        for T in range(8): bread(0, T)
        self.jobflag()
        a.wait_lg('mv0')
        for f in modul(220, MV) + modul(224, MV) + modul(HA, 40): f()
        b1f = lambda x: (lambda: self.b1_one(x, x == o['nb2']))
        b1q = list(range(o['nb2'], 38))
        hrd = {1: (0, 0, 6), 3: (1, 0, 3), 4: (1, 3, 6), 6: (2, 0, 3), 7: (2, 3, 6), 9: (3, 0, 3), 10: (3, 3, 6), 12: (4, 0, 6)}
        hmm = {2: 0, 5: 1, 8: 2, 11: 3, 13: 4}
        HOFF = [0, 6144, 38400, 44544]
        for n in range(20):
            s, i = steps[n]
            if o['fine'] == 2 and n in (0, 1, 2, 4, 8, 12, 16): self.stamp('n%d' % n)
            if n in (3, 6, 9, 12):
                assert not b1q or 2 * b1q[0] // 15 > n // 3, (n, b1q)
                a.wait_vm('b1_%d' % (n // 3))
            if n in (3, 7): a('s_barrier')
            if n == 11:
                a('s_barrier'); self.level = 1
            if n == 15:
                a.wait_lg('hp'); a('s_barrier'); self.level = 2
            vm, ot = [], []
            k = o['ra0'] if b1q else o['ra1']
            for _ in range(k):
                if aq: vm.append(lambda x=aq.pop(0): aload(x))
            for q in range(int((str(o['rb1']) + str(o['rb1'])[-1] * 20)[n])):
                if b1q: vm.insert(min(len(vm), 2 * q), b1f(b1q.pop(0)))
            hl = {1: 1, 2: 2, 3: 3, 4: 4} if not o['hl'] else {1: 1, 4: 2, 7: 3, 9: 4}
            if n in hl: vm.append(lambda: self.ld(HA + 4 * hl[n], 1024 * hl[n], sP[8], 'HA%d' % hl[n]))
            if n in hrd:
                hs, x0, x1 = hrd[n]
                ot += [lambda x=x: hread(hs, x) for x in range(x0, x1)]
            hm = []
            if n in hmm:
                hs = hmm[n]
                hm = [mm(HACC + 4 * x, HB + 4 * x, HA + 4 * hs, HT[x], hs == 0) for x in range(6)]
            if n == 14:
                ot += [lambda x=x: a('ds_write_b128 v4, %s offset:%d' % (R(HACC + 4 * x, 4), 1024 * x), 'hp') for x in range(6)]
                pre = self.p2_pre()
            if n >= 14:
                vm += pre[:3]; pre = pre[3:]
            if n == 15:
                ot += [lambda y=y, p=p: a('ds_read_b128 %s, v%d offset:%d' % (V(HB + 16 * y + 4 * p, 4), 157 + y, HOFF[p]), 'hr') for y in range(2) for p in range(4)]
            if n in (16, 17):
                b = HB + 16 * (n - 16)
                if n == 16: a.wait_lg('hr')
                ot += [lambda e=e, p=p: a('v_add_f32 v%d, v%d, v%d' % (b + 8 * p + e, b + 8 * p + e, b + 8 * p + 4 + e)) for p in range(2) for e in range(4)]
                ot += [lambda e=e: a('v_add_f32 v%d, v%d, v%d' % (b + e, b + e, b + 8 + e)) for e in range(4)]
                ot += [lambda e=e: a('v_cvt_pk_bf16_f32 v%d, v%d, v%d' % (b + e, b + 2 * e, b + 2 * e + 1)) for e in range(2)]
                ot += [lambda: a('ds_write_b64 v%d, %s' % (159 + n - 16, V(b, 2)))]
            if n == o['jfi']: vm.append(lambda: self.jf_issue())
            if n == o['jfc']:
                self.jf_check()
                self.queue_after_jobs()
            if n == o['pw']:
                if o['pwm'] == 0:
                    vm.append(lambda: (a('v_lshlrev_b32 v252, 20, v0'), a('s_mov_b64 exec, 0x7ffff'),
                                       a('buffer_load_dword v253, v252, s[%d:%d], 0 offen offset:3968 sc1' % (SW, SW + 3)), a('s_mov_b64 exec, 7'),
                                       a('buffer_load_dword v254, v252, s[%d:%d], 0 offen' % (SO, SO + 3)), a('s_mov_b64 exec, -1')))
                else:
                    vm.append(lambda: (a('v_lshlrev_b32 v252, 23, v0'), a('s_lshl_b32 s%d, s%d, 16' % (sT[0], sTQ)), a('s_mov_b64 exec, 7'),
                                       a('buffer_load_dword v253, v252, s[%d:%d], s%d offen offset:3968 sc1' % (SW, SW + 3, sT[0])), a('s_mov_b64 exec, 1'),
                                       a('v_mov_b32 v252, s%d' % sT[0]),
                                       a('buffer_load_dword v254, v252, s[%d:%d], 0 offen' % (SO, SO + 3)), a('s_mov_b64 exec, -1')))
            if n == o['mx']:
                vm.append(lambda: (a('s_lshl2_add_u32 s%d, s2, s%d' % (sT[0], sW)), a('s_mul_i32 s%d, s%d, 2560' % (sT[0], sT[0])),
                                   a('v_lshlrev_b32 v255, 7, v0'), a('s_mov_b64 exec, 0xfffff'),
                                   a('buffer_load_dword v255, v255, s[%d:%d], s%d offen' % (SX, SX + 3, sT[0])), a('s_mov_b64 exec, -1')))
            if n == o['mw1']:
                vm.append(lambda: (a('s_lshl2_add_u32 s%d, s2, s%d' % (sT[0], sW)), a('s_mul_i32 s%d, s%d, 1920' % (sT[0], sT[0])),
                                   a('v_lshlrev_b32 v14, 7, v0'), a('s_mov_b64 exec, 0x7fff'),
                                   a('buffer_load_dword v14, v14, s[%d:%d], s%d offen %s' % (S1, S1 + 3, sT[0], o['mwp'])), a('s_mov_b64 exec, -1')))
            if n >= o['gp0']:
                vm += [self.pump] * max(0, o['g_pump'] - (len(vm) if n < 14 else 1))
            gaps = []
            for T in range(8): gaps += [(T, 0), (T, 1)] + ([(T, 2)] if hm and T >= 2 else [])
            ngap = len(gaps)
            slots = [[] for _ in gaps]
            cap = [2 - (k == 0 and (n < 19 or T == 0)) for T, k in gaps]
            for g in range(ngap):
                if g + 1 == ngap or gaps[g + 1] in ((4, 0), (2, 2)): cap[g] -= 1
            def put(L, g0, g1):
                G = list(range(g0, g1 + 1))
                lvl = 0
                while sum(max(0, cap[g] + lvl) for g in G) < len(L): lvl += 1
                seats = [g for g in G for _ in range(max(0, cap[g] + lvl - 1))] if lvl else []
                extra = [g for g in G if cap[g] + lvl > 0] if lvl else [g for g in G for _ in range(max(0, cap[g]))]
                k = len(L) - len(seats)
                if not lvl and k <= len(set(extra)):
                    best = max(cap[g] for g in G)
                    e2 = [g for g in G if cap[g] == best]
                    extra = e2 if len(e2) >= k else sorted(set(extra))
                seats = sorted(seats + [extra[(2 * q + 1) * len(extra) // (2 * k)] for q in range(k)])
                for g, f in zip(seats, L): slots[g].append(f); cap[g] -= 1
            h1 = hmm.get(n + 1) if n > 1 else None
            VL = []
            if n < 19:
                s1, i1 = steps[n + 1]
                r = outr(n + 1)
                for g, f in zip((1, 3), mvread(MV, 167, 2048 * i1 + 128 * s1, 'mv%d' % (n + 1))): slots[g].append(f); cap[g] -= 1
                x = 2 * n + 2
                VL.append(lambda: a.wait_vm('A%d' % (x + 1)))
                if x >= 8: VL += [lambda d=d: a('v_accvgpr_read_b32 v%d, a%d' % (r + d, areg(x) - 256 + d)) for d in range(8)]
                VL += [lambda f=f: (a.wait_lg('mv%d' % (n + 1)), f()) for f in modul(r, MV) + modul(r + 4, MV)]
                if 'noM' in o['exp']: VL = VL[:1]
            if h1:
                for g, f in zip((5, 7), mvread(HV, 6, 128 * h1, 'hv%d' % h1)): slots[g].append(f); cap[g] -= 1
                VL += [lambda f=f: (a.wait_vm('HA%d' % h1), a.wait_lg('hv%d' % h1), f()) for f in modul(HA + 4 * h1, HV)]
            if vm: put(vm, 0, ngap - 1)
            if ot: put(ot, 3 if n == 14 else 0, ngap - 1)
            if len(VL) > 13: put(VL, 0, ngap - 2)
            elif VL: put(VL, 7, ngap - 2)
            for T, k in gaps:
                if k == 0 and T in (0, 4): a.wait_lg('B%d_%d' % (n, T + 3))
                if k < 2:
                    a(mm(ACC + 32 * k + 4 * T, BB + 4 * T, outr(n) + 4 * k, T, n == 0))
                    if k == 0 and T > 0 and n + 1 < 20: bread(n + 1, T - 1)
                    if k == 0 and T == 0 and n > 0: bread(n, 7)
                else:
                    if T == 2: a.wait_lg('HB%d' % hs)
                    a(hm.pop(0))
                for f in slots.pop(0): f()
            assert not slots and not hm
        assert not aq and not b1q and not pre
        self.stamp('gemm1')
        a('v_lshlrev_b32 v167, 7, v0')
        for f in self.touches('s'): f()

    def p1_attn(self):
        a = self.a
        ACC, S_, P_, X_ = 32, 176, 64, 80
        K = lambda t: 102 + 6 * t
        Vv = lambda y, t: 116 + 6 * y + 2 * t
        Q = lambda t, h: 132 + 8 * t + 4 * h
        np_ = [self.o['at_pump']]
        def pump(k=1):
            k = min(k, np_[0]); np_[0] -= k; self.pump(k)
        def cvt(d, r):
            a('v_cvt_pk_bf16_f32 v%d, v%d, v%d' % (d, r, r + 1))
            a('v_cvt_pk_bf16_f32 v%d, v%d, v%d' % (d + 1, r + 2, r + 3))
        def kv(t):
            r = ACC + 32 * t
            cvt(K(t), r + 8); cvt(K(t) + 4, r + 12)
            cvt(K(t) + 2, r + 16); cvt(148 + 2 * t, r + 16)
            cvt(Vv(0, t), r + 20)
            for e in range(2): a('v_permlane32_swap_b32 v%d, v%d' % (148 + 2 * t + e, K(t) + 2 + e))
            cvt(Vv(1, t), r + 24); cvt(Vv(2, t), r + 28)
        def qq(t):
            r = ACC + 32 * t
            cvt(Q(t, 0), r); cvt(Q(t, 1) + 2, r + 4)
            for e in range(2):
                a('v_cndmask_b32 v%d, 0, v%d, s[%d:%d]' % (Q(t, 0) + 2 + e, 148 + 2 * t + e, sG0, sG0 + 1))
                a('v_cndmask_b32 v%d, 0, v%d, s[%d:%d]' % (Q(t, 1) + e, 148 + 2 * t + e, sG1, sG1 + 1))
        def smm(u, cur):
            t, h = u >> 1, u & 1
            m = 16 if cur else (24 if t == 0 else 20)
            a('v_mfma_f32_16x16x32_bf16 %s, %s, %s, %s' % (V(S_ + 8 * u + 4 * cur, 4), V(K(t - 1 + cur) + 2 * h, 4), V(Q(t, h), 4), V(m, 4)))
        kv(1)
        for x in range(3): a('ds_write_b64 v161, %s offset:%d' % (V(K(1) + 2 * x, 2), 3072 + 512 * x))
        for y in range(3): a('ds_write_b64 v161, %s offset:%d' % (V(Vv(y, 1), 2), 3072 + 1536 + 512 * y))
        for f in self.touches('a0'): f()
        pump(2)
        kv(0)
        self.barrier()
        self.level = 3
        for x in range(3): a('ds_read_b64 %s, v161 offset:%d' % (V(K(-1) + 2 * x, 2), 512 * x), 'ek')
        for y in range(3): a('ds_read_b64 %s, v161 offset:%d' % (V(Vv(y, -1), 2), 1536 + 512 * y), 'ev')
        pump(3)
        qq(1)
        for u in (2, 3): smm(u, 0); smm(u, 1)
        qq(0)
        pump(2)
        for u in (0, 1): smm(u, 1)
        a.wait_lg('ek')
        for u in (0, 1): smm(u, 0)
        self.stamp('S')
        cs = LOG2E / math.sqrt(20.0)
        a('s_mov_b32 s%d, 0x%x' % (sT[1], f2u(cs)))
        sv = lambda u, i: X_ + 2 * u + i
        M = X_ + 8
        for u in (2, 3, 0, 1):
            b = S_ + 8 * u
            for i in range(2): a('v_max3_f32 v%d, v%d, v%d, v%d' % (sv(u, i), b + 2 * i, b + 2 * i + 1, b + 4 + 2 * i))
            for i in range(2): a('v_max_f32 v%d, v%d, v%d' % (sv(u, i), sv(u, i), b + 5 + 2 * i))
            a('v_max_f32 v%d, v%d, v%d' % (M + u, sv(u, 0), sv(u, 1)))
            pump(1)
        def allred(op, mid):
            a('v_permlane32_swap_b32 v%d, v%d' % (M, M + 2))
            a('v_permlane32_swap_b32 v%d, v%d' % (M + 1, M + 3))
            pump(1)
            a('%s v%d, v%d, v%d' % (op, M, M, M + 2))
            a('%s v%d, v%d, v%d' % (op, M + 1, M + 1, M + 3))
            pump(1)
            a('v_permlane16_swap_b32 v%d, v%d' % (M, M + 1))
            a('%s v%d, v%d, v%d' % (op, M, M, M + 1))
            a(mid % (M + 1, M)); a(mid % (M + 2, M)); a(mid % (M + 3, M)); a(mid % (M, M))
            pump(1)
            a('v_permlane16_swap_b32 v%d, v%d' % (M + 2, M + 3))
            a('v_permlane16_swap_b32 v%d, v%d' % (M, M + 1))
            pump(1)
            a('v_permlane32_swap_b32 v%d, v%d' % (M, M + 2))
            a('v_permlane32_swap_b32 v%d, v%d' % (M + 1, M + 3))
        allred('v_max_f32', 'v_mul_f32 v%%d, s%d, v%%d' % sT[1])
        for u in range(4):
            for i in range(2): a('v_fma_f32 v%d, v%d, s%d, -v%d' % (sv(u, i), sv(u, i), sT[1], M + u))
        for u in range(4):
            for i in range(2): a('v_exp_f32 v%d, v%d' % (sv(u, i), sv(u, i)))
        for u in range(4): a('v_add_f32 v%d, v%d, v%d' % (M + u, sv(u, 0), sv(u, 1)))
        allred('v_add_f32', 'v_rcp_f32 v%d, v%d')
        a.wait_lg('ev')
        for u in range(4):
            t, h = u >> 1, u & 1
            for i in range(2): a('v_mul_f32 v%d, v%d, v%d' % (sv(u, i), sv(u, i), M + u))
            for i in range(2): a('v_cvt_pk_bf16_f32 v%d, v%d, v%d' % (sv(u, i), sv(u, i), sv(u, i)))
            for x in range(4): a('v_bfi_b32 v%d, v%d, 0, v%d' % (P_ + 4 * u + x, 28 + x, sv(u, x & 1)))
            if u > 0: self.pv(u - 1)
        self.pv(3)
        O = S_
        for t in range(2):
            cvt(O + 4 * t, ACC + 16 * t); cvt(O + 4 * t + 2, ACC + 16 * t + 8)
            cvt(O + 8 + 2 * t, ACC + 16 * t + 4); cvt(O + 12, ACC + 16 * t + 12)
            for e in range(2): a('v_permlane16_swap_b32 v%d, v%d' % (O + 4 * t + e, O + 4 * t + 2 + e))
            for e in range(2): a('v_cndmask_b32 v%d, v%d, v%d, s[%d:%d]' % (O + 8 + 2 * t + e, O + 8 + 2 * t + e, O + 12 + e, sG1, sG1 + 1))
        a('s_add_u32 s%d, s%d, 20480' % (sT[0], sP[9]))
        for e in range(2): a('v_permlane32_swap_b32 v%d, v%d' % (O + 8 + e, O + 10 + e))
        self.st2(['buffer_store_dwordx4 %s, v162, s[%d:%d], s%d offen' % (V(O, 4), SW, SW + 3, sP[9]),
                  'buffer_store_dwordx4 %s, v162, s[%d:%d], s%d offen' % (V(O + 4, 4), SW, SW + 3, sT[0]),
                  'buffer_store_dwordx2 %s, v163, s[%d:%d], s%d offen offset:512' % (V(O + 8, 2), SW, SW + 3, sP[9])], 'ost')
        self.stamp('attn')

    def pv(self, u):
        t, h = u >> 1, u & 1
        for x, y in enumerate((h, 2)):
            self.a('v_mfma_f32_16x16x32_bf16 %s, %s, %s, 0' % (V(32 + 8 * u + 4 * x, 4), V(114 + 6 * y + 2 * t, 4), V(64 + 4 * u, 4)))

    def finish(self):
        a = self.a
        D = a.newlabel('ep')
        a('s_or_b32 s%d, s2, s%d' % (sT[0], sW))
        a('s_cmp_lg_u32 s%d, 0' % sT[0])
        a('s_cbranch_scc1 %s' % D)
        a('v_mov_b32 v14, s%d' % sTAG)
        self.exec_(1, 0)
        a('buffer_store_dword v14, off, s[%d:%d], 0 sc1' % (SW, SW + 3))
        self.exec_all()
        a.label(D)
        if self.stamps:
            a.wait_vm()
            self.stamp('end')
            a('v_writelane_b32 v15, s%d, 63' % sFAIL)
            a('v_writelane_b32 v15, s%d, 62' % sSLOW)
            a('s_lshl_b32 s%d, s2, 2' % sT[0])
            a('s_add_u32 s%d, s%d, s%d' % (sT[0], sT[0], sW))
            a('s_lshl_b32 s%d, s%d, 8' % (sT[0], sT[0]))
            a('s_add_u32 s%d, s%d, 0x%x' % (sT[0], sT[0], DBG))
            a('v_lshlrev_b32 v14, 2, v0')
            if not self.o.get('nodbg'): a('buffer_store_dword v15, v14, s[%d:%d], s%d offen sc0 sc1' % (SW, SW + 3, sT[0]))
            amp = self.o.get('amp', 0)
            if amp:
                L, E = a.newlabel('amp'), a.newlabel('ampe')
                a('v_readlane_b32 s%d, v15, 0' % sT[2])
                a('v_readlane_b32 s%d, v15, %d' % (sT[3], amp))
                a('v_readlane_b32 s%d, v15, %d' % (sT[4], self.nst - 1))
                if amp == 40:
                    a('v_readlane_b32 s%d, v15, 40' % sT[2])
                    a('v_readlane_b32 s%d, v15, 0' % sT[3])
                if amp in (42, 43):
                    a('s_mov_b32 s%d, 0x%x' % (sT[5], DBG - 256))
                    a('buffer_load_dword v12, off, s[%d:%d], s%d sc0 sc1' % (SW, SW + 3, sT[5]))
                    a('s_waitcnt vmcnt(0)')
                    x, y = (sT[2], sT[3]) if amp == 42 else (sT[3], sT[2])
                    a('v_readlane_b32 s%d, v12, 40' % x)
                    a('v_readlane_b32 s%d, v15, 40' % y)
                    a('s_sub_u32 s%d, s%d, 1000' % (sT[2], sT[2]))
                if amp == 41:
                    R = a.newlabel('rr')
                    a('s_mov_b32 s%d, 8' % sCNT)
                    a.label(R)
                    a('s_mov_b32 s%d, 0x%x' % (sT[5], DBG))
                    a('buffer_load_dword v12, v14, s[%d:%d], s%d offen sc0 sc1' % (SW, SW + 3, sT[5]))
                    a('s_waitcnt vmcnt(0)')
                    a('s_sub_u32 s%d, s%d, 1' % (sCNT, sCNT))
                    a('s_cmp_lg_u32 s%d, 0' % sCNT)
                    a('s_cbranch_scc1 %s' % R)
                    a('v_readlane_b32 s%d, v12, 40' % sT[2])
                    a('v_readlane_b32 s%d, v15, 40' % sT[3])
                    a('s_sub_u32 s%d, s%d, 1000' % (sT[2], sT[2]))
                a('s_cmp_eq_u32 s%d, 0' % sT[3])
                a('s_cbranch_scc1 %s' % E)
                a('s_sub_u32 s%d, s%d, s%d' % (sT[3], sT[3], sT[2]))
                a('s_min_u32 s%d, s%d, 6000' % (sT[3], sT[3]))
                a('s_lshl_b32 s%d, s%d, 2' % (sT[3], sT[3]))
                a('s_mov_b32 s%d, 0x100000' % sCNT)
                a.label(L)
                a('s_memrealtime s[98:99]')
                a('s_waitcnt lgkmcnt(0)')
                a('s_sub_u32 s%d, s%d, 1' % (sCNT, sCNT))
                a('s_cmp_eq_u32 s%d, 0' % sCNT)
                a('s_cbranch_scc1 %s' % E)
                a('s_sub_u32 s%d, s98, s%d' % (sT[5], sT[4]))
                a('s_cmp_lt_u32 s%d, s%d' % (sT[5], sT[3]))
                a('s_cbranch_scc1 %s' % L)
                a.label(E)
            hd = self.o.get('hd', 0)
            if hd:
                a('s_load_dwordx2 s[%d:%d], s[0:1], 72' % (sT[0], sT[1]))
                a.wait_lg()
                self.srd(SJ, sT[0], 64)
                sh = 0 if hd in (1, 3) else 11
                a('v_subrev_u32 v13, %d, v0' % sh)
                a('v_max_i32 v13, 0, v13')
                a('v_lshlrev_b32 v13, 2, v13')
                if hd in (1, 2):
                    a('v_not_b32 v12, v15')
                    a('v_cmp_eq_u32 vcc, 0, v0')
                    a('v_cndmask_b32 v12, v15, v12, vcc')
                    op = 'umax'
                else:
                    a('v_readlane_b32 s%d, v15, 0' % sT[2])
                    a('v_subrev_u32 v12, s%d, v15' % sT[2])
                    a('v_cmp_eq_u32 vcc, 0, v15')
                    a('v_cndmask_b32 v12, v12, 0, vcc') if 0 else a('v_cndmask_b32 v12, v12, v15, vcc')
                    op = 'add'
                self.exec_('0xffff' if sh == 0 else '0x%x' % (1 | (0x7fff << 12)), 0)
                a('buffer_atomic_%s v12, v13, s[%d:%d], 0 offen' % (op, SJ, SJ + 3))
                self.exec_all()
        a.label('L_end')
        a('s_endpgm')
        for c in self.cold: c()
        a.label('CODE_END')
        a('s_endpgm')

from gen2 import add_phases
add_phases(Gen, globals())

def build(stamps=False, opt=None):
    g = Gen(stamps, opt)
    g.run()
    body = g.a.finish()
    hdr = '''; fused adaLN block: persistent single launch, 256 workgroups (one per CU)
; @launch grid=(256,1,1) block=(256,1,1) lds=163840
.amdgcn_target "amdgcn-amd-amdhsa--gfx950"
.text
.globl {n}_kernel
.p2align 8
.type {n}_kernel,@function
{n}_kernel:
'''.format(n=NAME)
    tail = '''
.section .rodata,"a"
.p2align 6
.amdhsa_kernel {n}_kernel
  .amdhsa_next_free_vgpr 512
  .amdhsa_next_free_sgpr 102
  .amdhsa_accum_offset 256
  .amdhsa_group_segment_fixed_size 0
  .amdhsa_kernarg_size 88
  .amdhsa_user_sgpr_count 2
  .amdhsa_user_sgpr_kernarg_segment_ptr 1
  .amdhsa_system_sgpr_workgroup_id_x 1
.end_amdhsa_kernel
'''.format(n=NAME)
    return hdr + body + tail, g

def parse(kvs):
    o = {}
    for kv in kvs:
        k, v = kv.split('=', 1)
        o[k] = int(v) if v.lstrip('-').isdigit() else v.replace('+', ' ')
    return o

if __name__ == '__main__':
    if len(sys.argv) > 2 and sys.argv[1] == 'var':
        o = parse(sys.argv[3:])
        txt, g = build(True, o)
        open('v_%s.s' % sys.argv[2], 'w').write(txt)
        open('v_%s.names' % sys.argv[2], 'w').write('\n'.join(g.names))
        txt, g = build(False, o)
        open('p_%s.s' % sys.argv[2], 'w').write(txt)
    else:
        out = 'cdna_kernels/%s.s' % NAME
        txt, g = build(False)
        open(out, 'w').write(txt)
        print('written', out, len(txt), 'bytes; nops', g.a.npad)
```

```python
import sys, os, math
sys.path.insert(0, os.path.dirname(os.path.abspath(__file__)))
from asmlib import *

NAME = 'adaLN_cond__sliding_local_dilated__dense_activation_silu__prompt'

JF   = 0x1000
CF   = 0x60000
FO   = 0x2000
FY   = 0xA000
FH   = 0x12000
FX   = 0x1A000
XI   = 0x22000
MODP = 0x24000
ST   = 0x40000
W2T  = 0x80000
W4T  = W2T + 819200
WO_  = W4T + 1966080
WY   = WO_ + 2621440
WH   = WY + 2621440
WHB  = WH + 6291456
W1C  = WHB + 2621440
DBG  = W1C + 2457600 + 256
WSZ  = DBG + 1024 * 256

RGN   = 38400
SPARE = 153600
HST   = SPARE + 8192
MRED  = SPARE + 8704
HP    = 76800
EX    = 76800 + 12288
RED   = 92160
X1S   = 122880
UT    = 143360
GA_, C2F, GB_, C2B, S2B = SPARE, SPARE + 2560, SPARE + 5120, SPARE + 7680, SPARE + 8960
TOFF = [0, 48, 80, 128, 32, 160, 208, 192]

sW, sC, sJ, sTAG, sCI = 3, 4, 5, 6, 7
pX, pQ, pWO, pW1, pW2, pC, pWM, pOUT, pWS = 8, 10, 12, 16, 18, 20, 22, 24, 28
SX, SQ, SW, SO, S1, SJ = 32, 36, 40, 44, 48, 52
sRG, sCG = 30, 31
sP = [56, 57, 58, 59, 60, 61, 62, 63, 64, 65, 66, 67]
sB3M, sB4O = 68, 69
sG0, sG1 = 70, 72
jD = [74, 75, 76]; jS = [77, 78, 79]
sJ0, sJ1 = 100, 101
sTQ = 100
sNM = 80
sMO = 81
sRB = 82
sXO = 83
sB1 = 84
sPROD = 85
sT = [86, 87, 88, 89, 90, 91, 92, 93]
sCNT = 94
sONE = 95
sHI = 96
sFAIL = 97
sSLOW = 14
sN = 15
sTILE = 26
sSL2 = 27
sCP = 97
CPP = 976

LOG2E = 1.4426950408889634
def f2u(x):
    import struct
    return struct.unpack('<I', struct.pack('<f', x))[0]

DEF = dict(bpol='sc1', jpol='nt', hpol='', fast=0, cwarm=1, wpol='sc1', w1pol='', apol='sc1', spol='', touch=0, early=2, lin=1, gp0=12, t2='x', t3a='x', t3b='x', t4a='x', t4b='x', fine=0, exp='',
           ord='cmf', role='p', cp='c', xo=0, e2=3, mxp=0, pre=3, xpol='sc1', cf1=0, pm=2, m1=1, nb0=8, mpg=1, la0=4, nb2=15, rb1=32322, ra0=2, cpol='', ra1=4, la1=8, jfi=13, jfc=15, g_pump=3, at_pump=21,
           la2=12, la3=12, la4=12, mw1=10, mwp='', hl=1, pw=9, pwm=0, mx=-1, tb1=0, tb0=8, b3l=0, ra3=3, rp3=3, p3min=0, o_pre=0, p2_pump=10, y_pre=0, p3_pump=60, h_pre=0)

class Gen:
    def __init__(self, stamps=False, opt=None):
        self.a = Asm()
        self.stamps = stamps
        self.o = dict(DEF); self.o.update(opt or {})
        self.nst = 0
        self.fq = []
        self.cold = []
        self.level = 0

    def stamp(self, name, idx=None):
        if not self.stamps: return
        a = self.a
        idx = self.nst if idx is None else idx
        a.c('stamp %d %s' % (idx, name))
        if name == 'karg':
            a.wait_lg()
            a('v_writelane_b32 v15, s98, 40')
        a('s_memtime s[98:99]' if self.o.get('cyc') else 's_memrealtime s[98:99]')
        a.wait_lg()
        a('v_writelane_b32 v15, s98, %d' % idx)
        if name == 'gemm0' and self.o.get('amp', 0) in (42, 43):
            a('s_mov_b32 s98, 0x%x' % (DBG - 256))
            a('s_or_b32 s99, s2, s%d' % sW)
            a('s_cmp_eq_u32 s99, 0')
            a('s_cselect_b32 exec_hi, 256, 0')
            a('s_mov_b32 exec_lo, 0')
            a('buffer_store_dword v15, off, s[%d:%d], s98 sc0 sc1' % (SW, SW + 3))
            a('s_mov_b64 exec, -1')
        self.nm = getattr(self, 'nm', {})
        self.nm[idx] = name
        self.nst = max(self.nst, idx + 1)
        self.names = [self.nm.get(i, '-') for i in range(self.nst)]

    def srd(self, d, p, n):
        a = self.a
        a('s_mov_b32 s%d, s%d' % (d, p))
        a('s_and_b32 s%d, s%d, 0xffff' % (d + 1, p + 1))
        a('s_mov_b32 s%d, %d' % (d + 2, n))
        a('s_mov_b32 s%d, 0x20000' % (d + 3))

    def exec_(self, lo, hi):
        self.a('s_mov_b32 exec_lo, %s' % lo)
        self.a('s_mov_b32 exec_hi, %s' % hi)
    def exec_all(self):
        self.a('s_mov_b64 exec, -1')

    def barrier(self):
        self.a.wait_lg()
        self.a('s_barrier')

    def rowsum(self, regs, tmp):
        a = self.a
        for sw in ('v_permlane32_swap_b32', 'v_permlane16_swap_b32'):
            for i, r in enumerate(regs): a('v_mov_b32 v%d, v%d' % (tmp + i, r))
            for i, r in enumerate(regs): a('%s v%d, v%d' % (sw, r, tmp + i))
            for i, r in enumerate(regs): a('v_add_f32 v%d, v%d, v%d' % (r, r, tmp + i))

    def finstats(self, s1, s2, t):
        a = self.a
        a('v_mul_f32 v%d, 0x%x, v%d' % (s1, f2u(1 / 640), s1))
        a('v_mul_f32 v%d, v%d, v%d' % (t, s1, s1))
        a('v_fma_f32 v%d, v%d, s%d, -v%d' % (s2, s2, sT[7], t))
        a('v_max_f32 v%d, 0, v%d' % (s2, s2))
        a('v_add_f32 v%d, 0x%x, v%d' % (s2, f2u(1e-5), s2))
        a('v_rsq_f32 v%d, v%d' % (s2, s2))

    def poll(self, vaddr, soff, vt):
        a = self.a
        L, D = a.newlabel('poll'), a.newlabel('pdone')
        a('s_mov_b32 s%d, 0x8000' % sCNT)
        a.label(L)
        a('buffer_load_dword v%d, v%d, s[%d:%d], s%d offen sc1' % (vt, vaddr, SW, SW + 3, soff))
        a.wait_vm()
        a('v_cmp_ne_u32 vcc, s%d, v%d' % (sTAG, vt))
        a('s_cbranch_vccz %s' % D)
        a('s_sub_u32 s%d, s%d, 1' % (sCNT, sCNT))
        a('s_cmp_lg_u32 s%d, 0' % sCNT)
        a('s_cbranch_scc1 %s' % L)
        a.label(D)

    def mod_issue(self, vecs, r0, vaddr, tag, NP=2):
        a = self.a
        for i, vec in enumerate(vecs):
            for p in range(NP):
                a('s_mov_b32 s%d, 0x%x' % (sT[0], MODP + p * 15360 + vec * 2560))
                a('buffer_load_dwordx4 %s, v%d, s[%d:%d], s%d offen sc1' % (V(r0 + 4 * NP * i + 4 * p, 4), vaddr, SW, SW + 3, sT[0]), tag)

    def mod_check(self, vecs, r0, vaddr, tag, t, NP=2):
        a = self.a
        L, C, D = a.newlabel('mchk'), a.newlabel('mcold'), a.newlabel('mok')
        N = 4 * NP * len(vecs)
        a('s_mov_b32 s%d, 0x8000' % sCNT)
        for e in range(4): a('s_bfe_u32 s%d, s%d, 0x%x' % (sT[1 + e], sTAG, 0x80000 + 8 * e))
        a.wait_vm(tag)
        a.label(L)
        for x in range(N):
            a('v_xor_b32 v%d, s%d, v%d' % (r0 + x, sT[1 + (x & 3)], r0 + x))
            if x == 1: a('v_or_b32 v%d, v%d, v%d' % (t, r0, r0 + 1))
            elif x & 1: a('v_or3_b32 v%d, v%d, v%d, v%d' % (t, t, r0 + x - 1, r0 + x))
        a('v_cmp_ne_u32_sdwa vcc, v%d, v%d src0_sel:BYTE_0 src1_sel:BYTE_3' % (t, 0))
        a('s_cbranch_vccnz %s' % C)
        a.label(D)
        def cold():
            a.label(C)
            a('s_add_u32 s%d, s%d, 1' % (sFAIL, sFAIL))
            a('s_sub_u32 s%d, s%d, 1' % (sCNT, sCNT))
            a('s_cmp_eq_u32 s%d, 0' % sCNT)
            a('s_cbranch_scc1 %s' % D)
            self.mod_issue(vecs, r0, vaddr, None, NP)
            a('s_waitcnt vmcnt(0)')
            a('s_branch %s' % L)
        self.cold.append(cold)
        for p in range(1, NP):
            for i in range(len(vecs)):
                r = r0 + 4 * NP * i
                for e in (0, 2): a('v_pk_add_f32 %s, %s, %s' % (V(r + e, 2), V(r + e, 2), V(r + 4 * p + e, 2)))
        for i in range(len(vecs)):
            r = r0 + 4 * NP * i
            a('v_cvt_pk_bf16_f32 v%d, v%d, v%d' % (r, r, r + 1))
            a('v_cvt_pk_bf16_f32 v%d, v%d, v%d' % (r + 1, r + 2, r + 3))

    def unpack4(self, d, s):
        a = self.a
        a('v_lshlrev_b32 v%d, 16, v%d' % (d, s))
        a('v_and_b32 v%d, s%d, v%d' % (d + 1, sHI, s))
        a('v_lshlrev_b32 v%d, 16, v%d' % (d + 2, s + 1))
        a('v_and_b32 v%d, s%d, v%d' % (d + 3, sHI, s + 1))

    def plus1(self, r):
        a = self.a
        self.unpack4(r + 4, r)
        for e in range(4): a('v_add_f32 v%d, 1.0, v%d' % (r + 4 + e, r + 4 + e))
        a('v_cvt_pk_bf16_f32 v%d, v%d, v%d' % (r, r + 4, r + 5))
        a('v_cvt_pk_bf16_f32 v%d, v%d, v%d' % (r + 1, r + 6, r + 7))

    def mfma(self, d, wa, act, first=False):
        c = '0' if first else R(d, 4)
        return 'v_mfma_f32_16x16x32_bf16 %s, %s, %s, %s' % (R(d, 4), R(wa, 4), R(act, 4), c)

    def pump(self, k=1):
        while k > 0 and self.fq and self.fq[0][0] <= self.level:
            self.fq.pop(0)[1]()
            k -= 1
    def flush(self, name):
        while any(e[2] == name for e in self.fq):
            assert self.fq[0][0] <= self.level
            self.fq.pop(0)[1]()

    def st2(self, texts, tag=None, sl=None):
        a = self.a
        if not self.o['fast']:
            for t in texts:
                if t.startswith('buffer'): a(t + ' sc1', tag)
                else: a(t)
            return
        Ls, Ld = a.newlabel('slow'), a.newlabel('sdone')
        a('s_cmp_lg_u32 s%d, 0' % (sSLOW if sl is None else sl))
        a('s_cbranch_scc1 %s' % Ls)
        for t in texts: a(t + (' ' + self.o['spol'] if t.startswith('buffer') else ''), tag)
        a.label(Ld)
        def cold():
            a.label(Ls)
            a('s_nop 4')
            for t in texts: a.items.append(Ins(t + (' sc1' if t.startswith('buffer') else '')))
            a('s_nop 1')
            a('s_branch %s' % Ld)
        self.cold.append(cold)

    def flagstore(self, soff, sl=None):
        a = self.a
        D = a.newlabel('pub')
        a('s_cmp_lg_u32 s%d, 0' % sW)
        a('s_cbranch_scc1 %s' % D)
        a('v_mov_b32 v14, s%d' % sTAG)
        self.exec_(1, 0)
        save = list(a.vm)
        self.st2(['buffer_store_dword v14, off, s[%d:%d], s%d' % (SW, SW + 3, soff)], None, sl)
        a.vm = save
        self.exec_all()
        a.label(D)

    def publish(self, base, tag=None, touch=None):
        a = self.a
        a('s_lshl_b32 s%d, s%d, 7' % (sT[0], sCI))
        a('s_add_u32 s%d, s%d, 0x%x' % (sT[0], sT[0], base))
        if touch and self.o['touch']: touch[0]()
        a.wait_vm(tag)
        if touch and self.o['touch']: touch[1]()
        self.barrier()
        self.flagstore(sT[0])

    def xi_issue(self, tag):
        a = self.a
        a('s_lshl_b32 s%d, s%d, 7' % (sT[0], sC))
        a('s_add_u32 s%d, s%d, 0x%x' % (sT[0], sT[0], XI))
        a('v_lshlrev_b32 v32, 2, v2')
        a('buffer_load_dword v33, v32, s[%d:%d], s%d offen sc1' % (SW, SW + 3, sT[0]), tag)
    def xi_check(self, tag):
        a = self.a
        L, D = a.newlabel('xi'), a.newlabel('xiok')
        a.wait_vm(tag)
        a('s_mov_b32 s%d, 0x8000' % sCNT)
        a.label(L)
        a('v_subrev_u32 v33, s%d, v33' % sTAG)
        a('v_cmp_lt_u32 vcc, 15, v33')
        a('s_cbranch_vccz %s' % D)
        a('s_sub_u32 s%d, s%d, 1' % (sCNT, sCNT))
        a('s_cmp_eq_u32 s%d, 0' % sCNT)
        a('s_cbranch_scc1 %s' % D)
        save = list(a.vm)
        self.xi_issue(None)
        a('s_waitcnt vmcnt(0)')
        a.vm = save
        a('s_branch %s' % L)
        a.label(D)
        a('v_readfirstlane_b32 s%d, v33' % sT[0])
        a('v_cmp_ne_u32 vcc, s%d, v33' % sT[0])
        a('s_or_b32 s%d, vcc_lo, vcc_hi' % sSLOW)

    def b1_one(self, x, force=False, mask=None):
        a = self.a
        if force or x % 4 == 0:
            a('s_add_u32 m0, s%d, %d' % (sRB, 4096 * (x // 4)))
            a('s_add_u32 s%d, s%d, %d' % (sT[7], sB1, 4096 * (x // 4)))
        if mask is not None: a('s_mov_b32 exec_lo, s%d' % mask)
        if x == 37: a('s_mov_b32 exec_hi, 0')
        elif mask is not None: a('s_mov_b32 exec_hi, s%d' % mask)
        a('buffer_load_dwordx4 v1, s[%d:%d], s%d offen offset:%d %s lds' % (SW, SW + 3, sT[7], 1024 * (x & 3), self.o['bpol']), 'b1_%d' % (2 * x // 15))
        if x == 37 or mask is not None: self.exec_all()
    def b1_issue(self, x0, x1):
        for x in range(x0, x1): self.b1_one(x, x == x0)

    def xi_publish(self):
        a = self.a
        a.wait_lg()
        a('s_add_u32 s%d, s%d, 0x9e3779b9' % (sTAG, sTAG))

    def prologue(self):
        a = self.a
        a('s_cmp_ge_u32 s2, 256')
        a('s_cbranch_scc1 L_end')
        if self.stamps: a('s_memrealtime s[98:99]')
        a('s_load_dwordx16 s[8:23], s[0:1], 0')
        a('s_load_dwordx4 s[24:27], s[0:1], 64')
        a('s_load_dwordx2 s[28:29], s[0:1], 80')
        if self.o['cwarm']:
            a('s_getpc_b64 s[%d:%d]' % (SJ, SJ + 1))
            a('s_and_b32 s%d, s%d, 0xffff' % (SJ + 1, SJ + 1))
            a('s_mov_b32 s%d, CODE_END-%s_kernel-64' % (SJ + 2, NAME))
            a('s_mov_b32 s%d, 0x20000' % (SJ + 3))
            a('s_bfe_u32 s%d, s2, 0x10003' % sT[0])
            a('s_lshl_b32 s%d, s%d, 15' % (sT[0], sT[0]))
            a('v_lshl_add_u32 v1, v0, 7, s%d' % sT[0])
            a('buffer_load_dword v255, v1, s[%d:%d], 0 offen' % (SJ, SJ + 3), 'cw')
        a('v_lshrrev_b32 v1, 6, v0')
        a('v_and_b32 v0, 63, v0')
        a('v_readfirstlane_b32 s%d, v1' % sW)
        a('v_lshlrev_b32 v1, 4, v0')
        if self.stamps: a('v_mov_b32 v15, 0')
        assert not self.o['fast']
        a('s_and_b32 s%d, s2, 7' % sT[0])
        a('s_lshr_b32 s%d, s2, 7' % sT[1])
        a('s_lshl1_add_u32 s%d, s%d, s%d' % (sC, sT[0], sT[1]))
        a('s_bfe_u32 s%d, s2, 0x40003' % sJ)
        a('s_lshl4_add_u32 s%d, s%d, s%d' % (sCI, sC, sJ))
        a('s_lshr_b32 s%d, s%d, 3' % (sRG, sJ))
        a('s_and_b32 s%d, s%d, 7' % (sCG, sJ))
        a('s_mov_b32 s%d, 0x3f803f80' % sONE)
        a('s_mov_b32 s%d, 0xffff0000' % sHI)
        a('s_mul_i32 s%d, s%d, %d' % (sRB, sW, RGN))
        a('s_mul_i32 s%d, s%d, 153600' % (sB1, sJ))
        a('s_add_u32 s%d, s%d, s%d' % (sB1, sB1, sRB))
        a('s_add_u32 s%d, s%d, 0x%x' % (sB1, sB1, W1C))
        a('v_and_b32 v2, 15, v0')
        a('v_lshrrev_b32 v3, 4, v0')
        a('v_lshrrev_b32 v36, 5, v0')
        a('v_bfe_u32 v37, v0, 3, 2')
        a('v_lshl_add_u32 v36, v36, 3, v37')
        a('v_and_b32 v37, 0x70, v1')
        a('v_mul_u32_u24 v38, 7680, v36')
        a('v_add_u32 v38, v38, v37')
        a('v_mul_u32_u24 v39, 1280, v36')
        a('v_add_u32 v39, v39, v37')
        a('v_lshlrev_b32 v41, 2, v0')
        a('v_mul_u32_u24 v6, 13, v0')
        a('v_lshrrev_b32 v6, 8, v6')
        a('v_mul_u32_u24 v6, 960, v6')
        a('v_add_u32 v6, v6, v1')
        a('v_mul_u32_u24 v43, 1280, v2')
        a('v_lshl_add_u32 v43, v3, 4, v43')
        a('s_lshr_b32 s%d, s%d, 1' % (sT[2], sJ))
        a('s_lshl3_add_u32 s%d, s%d, s%d' % (sT[3], sT[1], sT[2]))
        a('s_lshl3_add_u32 s%d, s%d, s%d' % (sT[3], sT[3], sT[0]))
        a('s_lshl3_add_u32 s%d, s%d, s%d' % (sXO, sC, sT[2]))
        a('s_xor_b32 s%d, s%d, s%d' % (sT[1], sT[1], sJ))
        a('s_and_b32 s%d, s%d, 1' % (sT[1], sT[1]))
        a('s_sub_u32 s%d, 0, s%d' % (sPROD, sT[1]))
        Lp, Ld = a.newlabel('prod'), a.newlabel('join')
        a('s_cbranch_scc1 %s' % Lp)
        save = (list(a.vm), list(a.lg))
        self.plain()
        a('s_branch %s' % Ld)
        q = list(a.vm)
        a.vm, a.lg = save
        a.label(Lp)
        self.producer()
        assert q == a.vm, (q, a.vm)
        a.label(Ld)

    def staging(self):
        a = self.a
        a('s_lshl_b32 s%d, s%d, 11' % (sT[0], sW))
        a('s_add_u32 s%d, s%d, %d' % (sT[0], sT[0], SPARE))
        a('v_and_b32 v42, 0x30, v0')
        a('v_lshlrev_b32 v42, 1, v42')
        a('v_xor_b32 v42, v42, v1')
        a('v_add_u32 v42, s%d, v42' % sT[0])
        a('v_lshrrev_b32 v140, 2, v0')
        a('v_and_b32 v141, 6, v140')
        a('v_lshlrev_b32 v141, 4, v141')
        a('v_lshl_add_u32 v140, v140, 7, v141')
        a('v_and_b32 v141, 3, v0')
        a('v_lshl_add_u32 v140, v141, 3, v140')
        a('v_add_u32 v140, s%d, v140' % sT[0])
        for T in range(1, 4): a('v_xor_b32 v%d, %d, v140' % (140 + T, 32 * T))
        a('v_add_u32 v41, s%d, v41' % sT[0])
        a('v_lshl_add_u32 v45, v3, 4, s%d' % sT[0])
        a('v_lshl_add_u32 v145, v3, 6, s%d' % sT[0])
        a('s_lshl_b32 s%d, s%d, 8' % (sT[0], sW))
        a('s_add_u32 s%d, s%d, %d' % (sT[0], sT[0], MRED))
        a('v_lshl_add_u32 v144, v3, 4, s%d' % sT[0])
        a('v_lshlrev_b32 v146, 4, v2')
        a('v_add_u32 v147, %d, v146' % MRED)
    def silu(self, nu, C=44, D=128, tag='c'):
        a = self.a
        a.wait_vm(tag)
        a('v_lshlrev_b32 v46, 16, v%d' % C)
        a('v_and_b32 v47, s%d, v%d' % (sHI, C))
        for r in (46, 47): a('v_mul_f32 v%d, 0x%x, v%d' % (r + 2, f2u(-LOG2E), r))
        for r in (46, 47): a('v_exp_f32 v%d, v%d' % (r + 2, r + 2))
        for r in (46, 47): a('v_add_f32 v%d, 1.0, v%d' % (r + 2, r + 2))
        for r in (46, 47): a('v_rcp_f32 v%d, v%d' % (r + 2, r + 2))
        for r in (46, 47): a('v_mul_f32 v%d, v%d, v%d' % (r, r, r + 2))
        a('v_cvt_pk_bf16_f32 v44, v46, v47')
        a('ds_write_b32 v41, v44')
        for u in range(nu):
            a('ds_read_b128 %s, v45 offset:%d' % (V(D + 4 * u, 4), 64 * u), 'silu')
    def mod_write(self, MA=60):
        a = self.a
        self.exec_('0x00010001', '0x00010001')
        a('s_nop 6')
        for T in range(4): a('ds_write_b128 v144, %s offset:%d' % (V(MA + 4 * T, 4), 64 * T))
        self.exec_all()
    def mod_publish(self, MA=60, sNM=sNM, sMO=sMO):
        a = self.a
        Ld = a.newlabel('nomod')
        a('s_cmp_eq_u32 s%d, 0' % sNM)
        a('s_cselect_b32 s%d, 1, s%d' % (sT[5], sW))
        a('s_cmp_lg_u32 s%d, 0' % sT[5])
        a('s_cselect_b32 s%d, 0, 0xffff' % sT[5])
        a('s_cbranch_scc1 %s' % Ld)
        for i in range(4): a('ds_read_b128 %s, v147 offset:%d' % (V(MA + 4 * i, 4), 256 * i))
        a('s_mov_b32 s%d, 0xffffff00' % sT[0])
        for e in range(4): a('s_bfe_u32 s%d, s%d, 0x%x' % (sT[1 + e], sTAG, 0x80000 + 8 * e))
        a.wait_lg()
        for hh in (0, 2):
            a('v_pk_add_f32 %s, %s, %s' % (V(MA + hh, 2), V(MA + hh, 2), V(MA + 4 + hh, 2)))
            a('v_pk_add_f32 %s, %s, %s' % (V(MA + 8 + hh, 2), V(MA + 8 + hh, 2), V(MA + 12 + hh, 2)))
        for hh in (0, 2):
            a('v_pk_add_f32 %s, %s, %s' % (V(MA + hh, 2), V(MA + hh, 2), V(MA + 8 + hh, 2)))
        for e in range(4): a('v_and_b32 v%d, s%d, v%d' % (MA + e, sT[0], MA + e))
        for e in range(4): a('v_or_b32 v%d, s%d, v%d' % (MA + e, sT[1 + e], MA + e))
        a.label(Ld)
        self.exec_('s%d' % sT[5], 0)
        a('buffer_store_dwordx4 %s, v146, s[%d:%d], s%d offen sc1' % (V(MA, 4), SW, SW + 3, sMO), 'mp')
        self.exec_all()
    def cf_addr(self):
        a = self.a
        a('s_lshl_b32 s%d, s%d, 12' % (sT[6], sJ))
        a('s_mul_i32 s%d, s%d, 640' % (sT[0], sW))
        a('s_add_u32 s%d, s%d, s%d' % (sT[6], sT[6], sT[0]))
        a('s_add_u32 s%d, s%d, 0x%x' % (sT[6], sT[6], CF))
        a('v_and_b32 v50, 7, v0')
        a('v_min_u32 v50, 4, v50')
        a('v_lshlrev_b32 v50, 7, v50')

    def cp_setup(self):
        a = self.a
        a('s_sub_u32 s%d, s%d, 48' % (sT[1], sT[3]))
        a('s_cselect_b32 s%d, 0, -1' % sCP)
        a('s_and_b32 s%d, s%d, s%d' % (sT[1], sT[1], sCP))
        a('s_lshr_b32 s%d, s%d, 2' % (sT[0], sT[1]))
        a('s_and_b32 s%d, s%d, 3' % (sT[1], sT[1]))
        a('s_lshl2_add_u32 s%d, s%d, s%d' % (sT[2], sT[0], sW))
        a('s_mul_i32 s%d, s%d, %d' % (sT[2], sT[2], 8 * 3840))
        a('s_mul_i32 s%d, s%d, 320' % (sT[4], sT[1]))
        a('s_add_u32 s%d, s%d, s%d' % (sT[2], sT[2], sT[4]))
        a('s_lshl2_add_u32 s%d, s%d, s%d' % (sT[1], sT[1], sW))
        a('s_mul_i32 s%d, s%d, 20' % (sT[4], sT[1]))
        a('s_add_u32 s%d, s%d, s%d' % (sT[4], sT[4], sT[0]))
        a('s_mul_i32 s%d, s%d, 7680' % (sG0, sT[4]))
        a('s_add_u32 s%d, s%d, 0x%x' % (sG0, sG0, W1C))
        a('s_lshl_b32 s%d, s%d, 5' % (sT[1], sT[1]))
        a('s_add_u32 s%d, s%d, s%d' % (sT[1], sT[1], sT[0]))
        a('s_lshl_b32 s%d, s%d, 7' % (sG0 + 1, sT[1]))
        a('s_add_u32 s%d, s%d, 0x%x' % (sG0 + 1, sG0 + 1, CF))
        a('s_mul_i32 m0, s%d, %d' % (sW, 8 * CPP))
    def cp_load(self):
        a = self.a
        self.srd(SQ, pQ, 640 * 3840)
        a('s_mov_b32 exec_lo, s%d' % sCP)
        a('s_lshr_b32 exec_hi, s%d, 4' % sCP)
        for x in range(8):
            a('buffer_load_dwordx4 v6, s[%d:%d], s%d offen %s lds' % (SQ, SQ + 3, sT[2], self.o['cpol']), 'cp')
            if x < 7:
                a('s_add_u32 m0, m0, %d' % CPP)
                a('s_add_u32 s%d, s%d, 3840' % (sT[2], sT[2]))
        self.exec_all()
    def cp_store(self):
        a = self.a
        a('s_mul_i32 s%d, s%d, 80' % (sT[0], sW))
        a('v_lshrrev_b32 v216, 2, v0')
        a('v_mul_u32_u24 v216, %d, v216' % (2 * CPP))
        a('v_and_b32 v217, 3, v0')
        a('v_lshl_add_u32 v216, v217, 3, v216')
        a('v_add_u32 v216, s%d, v216' % sT[0])
        a('v_and_b32 v217, 2, v0')
        a('v_mul_u32_u24 v217, 152, v217')
        a('v_add_u32 v217, v217, v216')
        a('v_add_u32 v218, 4096, v152')
        a.wait_vm('cp')
        a('s_barrier')
        for T, off in enumerate([0, 48, 320, 368, 32, 640, 688, 672]):
            for h in range(2):
                a('ds_read_b64_tr_b16 %s, v%d offset:%d' % (V(220 + 4 * T + 2 * h, 2), 217 if T == 4 else 216, off + CPP * h), 'ct%d' % T)
        for T in range(8):
            a.wait_lg('ct%d' % T)
            for d in range(4):
                r = 220 + 4 * T + d
                a('v_lshlrev_b32 v%d, 16, v%d' % (212 + d, r))
                a('v_and_b32 v%d, s%d, v%d' % (r, sHI, r))
            for d in range(4): a('v_cvt_pk_f16_f32 v%d, v%d, v%d' % (220 + 4 * T + d, 212 + d, 220 + 4 * T + d))
            if T == 7:
                a('s_and_b32 exec_lo, s%d, 0x00ff00ff' % sCP)
                a('s_mov_b32 exec_hi, exec_lo')
            else: self.exec_('s%d' % sCP, 's%d' % sCP)
            a('buffer_store_dwordx4 %s, v%d, s[%d:%d], s%d offen offset:%d sc1' % (V(220 + 4 * T, 4), 218 if T == 7 else 1 if T < 4 else 5, SW, SW + 3, sG0, 1024 * (T & 3)), 'cs')
            self.exec_all()
        self.stamp('cs', 7)
    def cp_flag(self):
        a = self.a
        a('v_mov_b32 v14, s%d' % sTAG)
        a('s_and_b32 exec_lo, s%d, 1' % sCP)
        a('s_mov_b32 exec_hi, 0')
        a.wait_vm('cs')
        a('buffer_store_dword v14, off, s[%d:%d], s%d sc1' % (SW, SW + 3, sG0 + 1))
        self.exec_all()
        self.stamp('cf', 8)

    def plain(self):
        a = self.a
        sG2 = sG1 + 1
        a('s_mul_i32 s%d, s%d, 205' % (sT[0], sT[3]))
        a('s_lshr_b32 s%d, s%d, 10' % (sT[0], sT[0]))
        a('s_mul_i32 s%d, s%d, 5' % (sT[1], sT[0]))
        a('s_sub_u32 s%d, s%d, s%d' % (sT[1], sT[3], sT[1]))
        a('s_lshl2_add_u32 s%d, s%d, s%d' % (sT[2], sT[1], sW))
        a('s_lshl_b32 s%d, s%d, 6' % (sT[6], sT[2]))
        a('s_mul_i32 s%d, s%d, %d' % (sT[5], sT[2], 32 * 7680))
        a('s_lshl_b32 s%d, s%d, 7' % (sT[4], sT[0]))
        a('s_add_u32 s%d, s%d, s%d' % (sT[5], sT[5], sT[4]))
        a('s_mul_i32 s%d, s%d, 15360' % (sG2, sT[1]))
        a('s_lshl1_add_u32 s%d, s%d, s%d' % (sG2, sT[4], sG2))
        a('s_add_u32 s%d, s%d, 0x%x' % (sG2, sG2, MODP))
        a('s_cmp_lt_u32 s%d, 100' % sT[3])
        a('s_cselect_b32 s%d, -1, 0' % sG1)
        a('v_add_u32 v44, s%d, v41' % sT[6])
        CP = self.o['cp'] == 'c'
        if CP: self.cp_setup()
        a.wait_lg()
        self.stamp('karg', 0)
        a('s_load_dword s%d, s[%d:%d], 0' % (sTAG, pWS, pWS + 1))
        a('s_mov_b32 s%d, s%d' % (sN, sT[3]))
        self.srd(S1, pC, 1280)
        a('buffer_load_dword v44, v44, s[%d:%d], 0 offen' % (S1, S1 + 3), 'c')
        self.srd(SJ, pWM, 640 * 7680)
        self.exec_('s%d' % sG1, 's%d' % sG1)
        self.unit_load(176, 38, sT[5], 7680, 'mc')
        self.exec_all()
        if CP: self.cp_load()
        J = self.o['role'] == 'c'
        if J:
            self.job_setup()
            a('buffer_load_dword v52, v52, s[%d:%d], 0 offen' % (S1, S1 + 3), 'c2')
            for u in range(self.o['early']): self.slot(u)
        self.srd(SW, pWS, WSZ)
        self.srd(SX, pX, 2048 * 1280)
        self.staging()
        self.xi_publish()
        self.stamp('issued', 1)
        self.setup()
        self.silu(1, 44, 112)
        self.stamp('c', 2)
        def modpart():
            a.wait_vm('mc')
            self.unit_tr(176, 96)
            a.wait_lg()
            for T in range(4): a(self.mfma(60 + 4 * T, 96 + 4 * T, 112, first=True))
            self.mod_write()
            self.barrier()
            self.mod_publish(60, sG1, sG2)
            self.stamp('mpub', 3)
        def slots():
            if J:
                for u in range(self.o['early'], 3): self.slot(u)
        for c in self.o['ord']: dict(c=self.cp_store, m=modpart, f=self.cp_flag, s=slots)[c]()
        if self.o['mxp']:
            a('s_lshl2_add_u32 s%d, s%d, s%d' % (sT[0], sN, sW))
            a('v_lshlrev_b32 v48, 7, v0')
            if self.o['mxp'] & 1:
                a('s_mul_i32 s%d, s%d, 5120' % (sT[1], sT[0]))
                a('s_mov_b32 exec_hi, 0xff')
                a('buffer_load_dword v49, v48, s[%d:%d], s%d offen' % (SX, SX + 3, sT[1]))
            if self.o['mxp'] & 2:
                a('s_mul_i32 s%d, s%d, 3840' % (sT[1], sT[0]))
                a('s_mov_b64 exec, 0x3fffffff')
                a('buffer_load_dword v49, v48, s[%d:%d], s%d offen' % (S1, S1 + 3, sT[1]))
            self.exec_all()
        if J:
            self.silu(3, 52, 128, 'c2')
            self.p1_gemm('pre', lambda k: self.jobs(3) if k else self.jobs(0, 3))
        else: self.p1_gemm('pre')

    def unit_load(self, dst, va, soff, pitch, tag):
        a = self.a
        for q in range(4):
            h, gp = q >> 1, q & 1
            if isinstance(pitch, int):
                a('s_add_u32 s%d, s%d, %d' % (sT[7], soff, (16 * gp + 4 * h) * pitch))
            else:
                a('s_mul_i32 s%d, %s, %d' % (sT[7], pitch, 16 * gp + 4 * h))
                a('s_add_u32 s%d, s%d, s%d' % (sT[7], sT[7], soff))
            a('buffer_load_dwordx4 %s, v%d, s[%d:%d], s%d offen %s' % (R(dst + 4 * q, 4), va, SJ, SJ + 3, sT[7], self.o['jpol']), tag)
    def unit_tr(self, src, f):
        a = self.a
        for h in range(2):
            for gp in range(2): a('ds_write_b128 v42, %s offset:%d' % (R(src + 8 * h + 4 * gp, 4), 1024 * gp))
            for T in range(4): a('ds_read_b64_tr_b16 %s, v%d' % (V(f + 4 * T + 2 * h, 2), 140 + T), 'jf%d' % f)
    def unit_store(self, f, mask, dst):
        a = self.a
        self.exec_('s%d' % mask, 's%d' % mask)
        for T in range(4):
            a('buffer_store_dwordx4 %s, v1, s[%d:%d], s%d offen offset:%d sc1' % (V(f + 4 * T, 4), SW, SW + 3, dst, 1024 * T), 'jst')
        self.exec_all()

    def job_setup(self):
        a = self.a
        a('s_lshr_b32 s%d, s%d, 1' % (sT[0], sN))
        a('s_and_b32 s%d, s%d, 1' % (sT[1], sN))
        a('s_sub_u32 s%d, 3, s%d' % (sNM, sT[1]))
        a('s_mul_i32 s%d, s%d, s%d' % (sT[2], sNM, sW))
        a('s_mul_i32 s%d, s%d, 12' % (sT[4], sT[1]))
        a('s_add_u32 s%d, s%d, s%d' % (sT[2], sT[2], sT[4]))
        a('s_lshl_b32 s%d, s%d, 6' % (sT[6], sT[2]))
        a('v_lshl_add_u32 v52, v0, 2, s%d' % sT[6])
        a('s_mul_i32 s%d, s%d, %d' % (sT[6], sT[2], 32 * 7680))
        a('s_lshl_b32 s%d, s%d, 7' % (sT[4], sT[0]))
        a('s_add_u32 s%d, s%d, 2560' % (sT[4], sT[4]))
        a('s_add_u32 s%d, s%d, s%d' % (sT[6], sT[6], sT[4]))
        a('s_mul_i32 s%d, s%d, 15360' % (sMO, sT[1]))
        a('s_lshl1_add_u32 s%d, s%d, s%d' % (sMO, sT[4], sMO))
        a('s_add_u32 s%d, s%d, 0x%x' % (sMO, sMO, MODP))
        a('s_sub_u32 s%d, s%d, 2' % (sT[0], sT[0]))
        a('s_mul_i32 s%d, s%d, 3' % (sT[1], sN))
        a('s_sub_u32 s%d, s%d, 200' % (sT[1], sT[1]))
        a('s_cmp_lt_u32 s%d, 80' % sN)
        a('s_cselect_b32 s%d, s%d, 0' % (sNM, sNM))
        a('s_cselect_b32 s%d, s%d, s%d' % (sT[0], sT[0], sT[1]))
        a('s_mov_b32 s%d, s%d' % (sJ0, sT[0]))
        a('s_mov_b32 s%d, s%d' % (sJ1, sT[6]))

    def slot(self, u):
        a = self.a
        ML = 256
        a('s_add_u32 s%d, s%d, %d' % (sT[1], sJ0, u))
        if self.o['lin']:
            a('s_lshl2_add_u32 s%d, s%d, s%d' % (sT[3], sT[1], sW))
            a('s_mul_i32 s%d, s%d, 6554' % (sT[4], sT[3]))
            a('s_lshr_b32 s%d, s%d, 16' % (sT[4], sT[4]))
            a('s_mul_i32 s%d, s%d, 10' % (sT[2], sT[4]))
            a('s_sub_u32 s%d, s%d, s%d' % (sT[3], sT[3], sT[2]))
            a('s_lshr_b32 s%d, s%d, 2' % (sT[2], sT[4]))
        else:
            a('s_mul_i32 s%d, s%d, 205' % (sT[2], sT[1]))
            a('s_lshr_b32 s%d, s%d, 11' % (sT[2], sT[2]))
            a('s_mul_i32 s%d, s%d, 10' % (sT[3], sT[2]))
            a('s_sub_u32 s%d, s%d, s%d' % (sT[3], sT[1], sT[3]))
            a('s_lshl2_add_u32 s%d, s%d, s%d' % (sT[4], sT[2], sW))
        a('s_mul_i32 s%d, s%d, 40960' % (sT[4], sT[4]))
        a('s_lshl_b32 s%d, s%d, 12' % (jD[u], sT[3]))
        a('s_add_u32 s%d, s%d, s%d' % (jD[u], jD[u], sT[4]))
        a('s_add_u32 s%d, s%d, 0x%x' % (jD[u], jD[u], W2T))
        a('s_lshl_b32 s%d, s%d, 7' % (sT[3], sT[3]))
        a('s_add_u32 s%d, s%d, s%d' % (sT[4], sT[4], sT[3]))
        a('s_sub_u32 s%d, s%d, 819200' % (sT[3], sT[4]))
        a('s_cmp_lt_u32 s%d, 170' % sT[1])
        a('s_cselect_b32 s%d, -1, 0' % jS[u])
        a('s_cmp_lt_u32 s%d, 5' % sT[2])
        a('s_cselect_b32 s%d, s%d, s%d' % (SJ, pWO, pW2))
        a('s_cselect_b32 s%d, s%d, s%d' % (SJ + 1, pWO + 1, pW2 + 1))
        a('s_cselect_b32 s%d, 5, 12' % sT[2])
        a('s_cselect_b32 s%d, s%d, s%d' % (sT[4], sT[4], sT[3]))
        a('s_cmp_gt_u32 s%d, %d' % (sNM, u))
        a('s_cselect_b32 s%d, s%d, s%d' % (SJ, pWM, SJ))
        a('s_cselect_b32 s%d, s%d, s%d' % (SJ + 1, pWM + 1, SJ + 1))
        a('s_cselect_b32 s%d, 30, s%d' % (sT[2], sT[2]))
        a('s_cselect_b32 s%d, s%d, s%d' % (sT[4], sJ1, sT[4]))
        a('s_cselect_b32 s%d, 6, 1' % sT[3])
        a('s_cselect_b32 s%d, -1, s%d' % (sT[1], jS[u]))
        a('s_cselect_b32 s%d, 0, s%d' % (jS[u], jS[u]))
        a('s_cselect_b64 vcc, -1, 0')
        a('s_and_b32 s%d, s%d, 0xffff' % (SJ + 1, SJ + 1))
        a('s_mul_i32 s%d, s%d, 163840' % (SJ + 2, sT[2]))
        a('s_mul_i32 s%d, s%d, 1280' % (sT[3], sT[3]))
        a('v_cndmask_b32 v40, v39, v38, vcc')
        self.exec_('s%d' % sT[1], 's%d' % sT[1])
        self.unit_load(ML + 16 * u, 40, sT[4], 's%d' % sT[3], 'm%d' % u)
        self.exec_all()
        a('s_add_u32 s%d, s%d, %d' % (sJ1, sJ1, 32 * 7680))

    def producer(self):
        a = self.a
        ML, XR_, XF_, MA, SF, MG = 256, 76, 176, 60, 128, 216
        E = self.o['early']
        a('s_mul_i32 s%d, s%d, %d' % (sT[5], sXO, 16 * 1280))
        a('s_mul_i32 s%d, s%d, 320' % (sT[1], sW))
        a('s_add_u32 s%d, s%d, s%d' % (sT[5], sT[5], sT[1]))
        CP = self.o['cp'] == 'p'
        if CP: self.cp_setup()
        a.wait_lg()
        self.stamp('karg', 0)
        a('s_load_dword s%d, s[%d:%d], 0' % (sTAG, pWS, pWS + 1))
        if CP and self.o['xo'] == 0: self.cp_load()
        self.srd(SX, pX, 2048 * 1280)
        for s in range(5):
            a('buffer_load_dwordx4 %s, v43, s[%d:%d], s%d offen offset:%d %s' % (V(XR_ + 4 * s, 4), SX, SX + 3, sT[5], 64 * s, self.o['hpol']), 'xt')
        if CP and self.o['xo']: self.cp_load()
        J = self.o['role'] == 'p'
        E2 = max(E, self.o['e2'])
        if J:
            a('s_mov_b32 s%d, s%d' % (sN, sT[3]))
            self.srd(S1, pC, 1280)
            self.job_setup()
            a('buffer_load_dword v52, v52, s[%d:%d], 0 offen' % (S1, S1 + 3), 'c2')
            a('s_mov_b32 s%d, 0x20000' % (SJ + 3))
            for u in range(E): self.slot(u)
            self.staging()
        self.srd(SW, pWS, WSZ)
        self.xi_publish()
        self.stamp('issued', 1)
        self.setup()
        a('s_lshl2_add_u32 s%d, s%d, s%d' % (sTILE, sXO, sW))
        a('s_mul_i32 s%d, s%d, 5120' % (sTILE, sTILE))
        a('s_add_u32 s%d, s%d, 0x%x' % (sTILE, sTILE, WHB))
        a('v_mov_b32 v34, 0')
        a('v_mov_b32 v35, 0')
        a('s_lshl_b32 s%d, s%d, 7' % (sT[0], sW))
        a('s_add_u32 s%d, s%d, %d' % (sT[0], sT[0], HST))
        a('v_lshl_add_u32 v60, v2, 3, s%d' % sT[0])
        a('v_lshlrev_b32 v61, 3, v2')
        a('v_add_u32 v61, %d, v61' % HST)
        if CP and self.o['xo'] == 0: self.cp_store()
        a.wait_vm('xt')
        self.stamp('c', 2)
        if J:
            for u in range(E, E2): self.slot(u)
        for d in range(20):
            a('v_dot2c_f32_bf16 v34, s%d, v%d' % (sONE, XR_ + d))
            a('v_dot2c_f32_bf16 v35, v%d, v%d' % (XR_ + d, XR_ + d))
        self.rowsum([34, 35], 36)
        a('ds_write_b64 v60, v[34:35]')
        if CP and self.o['xo'] == 1: self.cp_store()
        self.barrier()
        for i in range(4): a('ds_read_b64 %s, v61 offset:%d' % (V(62 + 2 * i, 2), 128 * i))
        self.stamp('mpub', 3)
        for d in range(20):
            a('v_lshlrev_b32 v%d, 16, v%d' % (XF_ + 2 * d, XR_ + d))
            a('v_and_b32 v%d, s%d, v%d' % (XF_ + 1 + 2 * d, sHI, XR_ + d))
        a.wait_lg()
        a('v_pk_add_f32 v[62:63], v[62:63], v[64:65]')
        a('v_pk_add_f32 v[66:67], v[66:67], v[68:69]')
        a('v_pk_add_f32 v[34:35], v[62:63], v[66:67]')

        a('s_mov_b32 s%d, 0x%x' % (sT[7], f2u(1 / 640)))
        self.finstats(34, 35, 36)
        a('v_mul_f32 v34, -v34, v35')
        if CP and self.o['xo'] == 0: self.cp_flag()
        for s in range(5):
            r = XF_ + 8 * s
            for d in range(4):
                a('v_pk_fma_f32 %s, %s, v[34:35], v[34:35] op_sel:[0,1,0] op_sel_hi:[1,1,0]' % (V(r + 2 * d, 2), V(r + 2 * d, 2)))
            for d, (e0, e1) in enumerate(((0, 2), (4, 6), (1, 3), (5, 7))):
                a('v_cvt_pk_f16_f32 v%d, v%d, v%d' % (XR_ + 4 * s + d, r + e0, r + e1))
            a('buffer_store_dwordx4 %s, v%d, s[%d:%d], s%d offen offset:%d %s' % (V(XR_ + 4 * s, 4), 1 if s < 4 else 5, SW, SW + 3, sTILE, 1024 * (s & 3), self.o['xpol']), 'hst')
        self.stamp('hst', 4)
        if CP and self.o['xo'] == 2: self.cp_store()
        if CP and self.o['xo'] == 1: self.cp_flag()
        a('s_lshl_b32 s%d, s%d, 7' % (sT[0], sXO))
        a('s_add_u32 s%d, s%d, 0x%x' % (sT[0], sT[0], FX))
        if J:
            self.silu(3, 52, 128, 'c2')
            self.jobs(0, min(E2, self.o['pre']))
        a.wait_vm('hst')
        a('s_barrier')
        self.flagstore(sT[0])
        self.stamp('pub', 5)
        if CP and self.o['xo'] == 2: self.cp_flag()
        if J:
            for u in range(E2, 3): self.slot(u)
            self.p1_gemm('pre', lambda k: self.jobs(3) if k else self.jobs(min(E2, self.o['pre']), 3))
        else: self.p1_gemm('pre')

    def jobs(self, u0=0, u1=None):
        a = self.a
        ML, MA, SF = 256, 204, 128
        F = [96, 112, 176]
        for u in range(u0, 3 if u1 is None else u1):
            a.wait_vm('m%d' % u)
            self.unit_tr(ML + 16 * u, F[u])
        if u1 is not None: return
        for u in range(3):
            a.wait_lg('jf%d' % F[u])
            if u == 2:
                Ls = a.newlabel('nomf')
                a('s_cmp_lg_u32 s%d, 3' % sNM)
                a('s_cbranch_scc1 %s' % Ls)
            for T in range(4): a(self.mfma(MA + 4 * T, F[u] + 4 * T, SF + 4 * u, first=(u == 0)))
            if u == 2: a.label(Ls)
            self.unit_store(F[u], jS[u], jD[u])
        self.mod_write(MA)
        self.barrier()
        self.mod_publish(MA)
        self.stamp('jobs', 6)

    def jobflag(self):
        a = self.a
        a('s_lshl_b32 s%d, s%d, 2' % (sT[2], sN))
        a('s_add_u32 s%d, s%d, 0x%x' % (sT[2], sT[2], JF))
        a('v_mov_b32 v14, s%d' % sTAG)
        a('s_cmp_eq_u32 s%d, 1' % sW)
        a('s_cselect_b32 s%d, 1, 0' % sT[3])
        a('%s exec_lo, s%d, s%d' % ('s_andn2_b32' if self.o['role'] == 'c' else 's_and_b32', sT[3], sPROD))
        a('s_mov_b32 exec_hi, 0')
        a('buffer_store_dword v14, off, s[%d:%d], s%d sc1' % (SW, SW + 3, sT[2]))
        self.exec_all()

    def setup(self):
        a = self.a
        self.srd(SO, pOUT, 2048 * 1280)
        a('v_min_u32 v7, 39, v0')
        a('s_mul_i32 s%d, s%d, 40' % (sT[0], sW))
        a('v_add_lshl_u32 v7, v7, s%d, 4' % sT[0])
        a('v_add_u32 v5, 4096, v1')
        a('v_mov_b32 v8, v1')
        a('v_and_b32 v149, 0x70, v1')
        a('v_lshl_add_u32 v152, v3, 7, v149')
        for i in range(1, 4):
            a('v_add_u32 v%d, %d, v8' % (8 + i, RGN * i))
            a('v_add_u32 v%d, %d, v152' % (152 + i, RGN * i))
        a('v_add_u32 v12, s%d, v8' % sRB)
        a('v_add_u32 v156, s%d, v152' % sRB)
        a('s_lshr_b32 s%d, s%d, 1' % (sT[0], sW))
        a('s_mul_i32 s%d, s%d, %d' % (sT[0], sT[0], RGN - 12288))
        a('s_mul_i32 s%d, s%d, 6144' % (sT[1], sW))
        a('s_add_u32 s%d, s%d, s%d' % (sT[0], sT[0], sT[1]))
        a('s_add_u32 s%d, s%d, %d' % (sT[0], sT[0], HP))
        a('v_add_u32 v4, s%d, v1' % sT[0])
        a('s_cmp_eq_u32 s%d, 1' % sW)
        a('s_cselect_b32 s%d, 512, 0' % sT[0])
        a('v_or_b32 v157, s%d, v1' % sT[0])
        a('s_lshl_b32 s%d, s%d, 10' % (sT[0], sW))
        a('s_add_u32 s%d, s%d, %d' % (sT[0], sT[0], HP))
        a('v_add_u32 v157, s%d, v157' % sT[0])
        a('s_add_u32 s%d, s%d, 4' % (sT[1], sW))
        a('s_min_u32 s%d, s%d, 5' % (sT[1], sT[1]))
        a('s_lshl_b32 s%d, s%d, 10' % (sT[0], sT[1]))
        a('s_add_u32 s%d, s%d, %d' % (sT[0], sT[0], HP))
        a('v_add_u32 v158, s%d, v1' % sT[0])
        a('s_lshl_b32 s%d, s%d, 9' % (sT[0], sW))
        a('s_add_u32 s%d, s%d, %d' % (sT[0], sT[0], EX))
        a('v_lshl_add_u32 v159, v0, 3, s%d' % sT[0])
        a('s_lshl_b32 s%d, s%d, 9' % (sT[0], sT[1]))
        a('s_add_u32 s%d, s%d, %d' % (sT[0], sT[0], EX))
        a('v_lshl_add_u32 v160, v0, 3, s%d' % sT[0])
        a('s_mul_i32 s%d, s%d, 3072' % (sT[0], sW))
        a('s_add_u32 s%d, s%d, %d' % (sT[0], sT[0], EX))
        a('v_lshl_add_u32 v161, v0, 3, s%d' % sT[0])
        a('v_and_b32 v148, 1, v3')
        a('v_lshrrev_b32 v149, 1, v3')
        a('v_mad_u32_u24 v162, v148, 3, v149')
        a('v_lshlrev_b32 v150, 4, v2')
        a('v_lshl_add_u32 v162, v162, 8, v150')
        a('v_mul_u32_u24 v149, 20480, v149')
        a('v_lshl_add_u32 v163, v148, 3, v150')
        a('v_add_u32 v163, v163, v149')
        NEG = 0xff61b1e6
        a('s_or_b32 s%d, s%d, s%d' % (sT[0], sC, sW))
        a('s_cselect_b32 s%d, 0, 0x%x' % (sT[0], NEG))
        a('s_mov_b32 s%d, 0x80000001' % sT[1])
        a('s_mov_b32 s%d, 0x80000000' % sT[2])
        a('s_mov_b32 s%d, 0x07070303' % sT[3])
        a('v_mov_b32 v150, 0x%x' % NEG)
        a('v_lshlrev_b32 v148, 2, v3')
        a('v_sub_u32 v148, v2, v148')
        for e in range(4):
            a('v_subrev_u32 v149, %d, v148' % e)
            a('v_and_b32 v149, s%d, v149' % sT[1])
            a('v_cmp_ne_u32 vcc, 0, v149')
            a('v_cndmask_b32 v%d, 0, v150, vcc' % (16 + e))
            a('v_cmp_ne_u32 vcc, s%d, v149' % sT[2])
            a('v_cndmask_b32 v%d, 0, v150, vcc' % (20 + e))
            a('v_or_b32 v%d, s%d, v%d' % (24 + e, sT[0], 20 + e))
        for x, r in enumerate((20, 22, 16, 18)):
            a('v_perm_b32 v%d, v%d, v%d, s%d' % (28 + x, r + 1, r, sT[3]))
        a('s_lshl2_add_u32 s%d, s%d, s%d' % (sT[0], sC, sW))
        a('s_mul_i32 s%d, s%d, 40960' % (sT[0], sT[0]))
        for t in range(2):
            for i in range(4): a('s_add_u32 s%d, s%d, 0x%x' % (sP[4 * t + i], sT[0], WHB + 20480 * t + 5120 * i))
        a('s_mul_i32 s%d, s%d, 1280' % (sT[1], sJ))
        a('s_add_u32 s%d, s%d, s%d' % (sP[9], sT[0], sT[1]))
        a('s_add_u32 s%d, s%d, 0x%x' % (sP[9], sP[9], WO_))
        a('s_lshl_b32 s%d, s%d, 3' % (sT[0], sC))
        a('s_max_u32 s%d, s%d, 1' % (sT[1], sT[0]))
        a('s_sub_u32 s%d, s%d, 1' % (sT[1], sT[1]))
        a('s_lshl2_add_u32 s%d, s%d, s%d' % (sT[2], sT[1], sW))
        a('s_mul_i32 s%d, s%d, 5120' % (sT[2], sT[2]))
        a('s_add_u32 s%d, s%d, 0x%x' % (sP[8], sT[2], WHB))
        a('s_lshl1_add_u32 s%d, s%d, s%d' % (sT[0], sW, sT[0]))
        a('v_add_u32 v13, s%d, v0' % sT[0])
        a('v_mov_b32 v148, s%d' % sT[1])
        a('v_cmp_gt_u32 vcc, 2, v0')
        a('v_cndmask_b32 v13, v148, v13, vcc')
        a('v_lshlrev_b32 v13, 7, v13')
        self.w_addr()

    def p1_gemm(self, part='loop', mid=None):
        a = self.a
        o = self.o
        ACC, HACC, BB, HB, HA = 32, 96, 120, 176, 200
        HT = [2, 4, 3, 5, 6, 7]
        steps = [(s, i) for s in range(5) for i in range(4)]
        def bread(n, T):
            s, i = steps[n]
            a('ds_read_b128 %s, v%d offset:%d' % (R(BB + 4 * T, 4), (152 if T == 7 else 8) + i, 7680 * s + 1024 * T), 'B%d_%d' % (n, T))
        def hread(s, x):
            a('ds_read_b128 %s, v%d offset:%d' % (R(HB + 4 * x, 4), 156 if HT[x] == 7 else 12, 7680 * s + 1024 * HT[x]), 'HB%d' % s)
        areg = lambda x: 220 + 4 * x if x < 8 else 256 + 4 * (x - 8)
        def aload(x):
            s, i = steps[x >> 1]
            if 'noA1' in o['exp']: return
            self.ld(areg(x), 1024 * s, sP[4 * (x & 1) + i], 'A%d' % x, o['apol'])
        def mm(d, w, act, T, first):
            return (self.mfma(d, act, w, first) if T >= 5 else self.mfma(d, w, act, first)).replace('bf16', 'f16')
        MG, MV, HV = 52, 168, 236
        outr = lambda n: 220 + 8 * n if n < 4 else 220 + 8 * (n & 1) if n < 14 else {14: 236, 15: 244, 16: 104, 17: 96, 18: 104, 19: 96}[n]
        def mvread(d, va, off, tag):
            return [lambda h=h: a('ds_read_b128 %s, v%d offset:%d' % (V(d + 4 * h, 4), va, off + 16 * h), tag) for h in range(2)]
        def modul(r, m):
            return [lambda d=d: a('v_pk_fma_f16 v%d, v%d, v%d, v%d' % (r + d, r + d, m + d, m + 4 + d)) for d in range(4)]
        if part == 'pre':
            assert o['cp'] == 'c' and o['ord'].index('c') < o['ord'].index('m')
            a('s_mov_b32 s%d, 0' % sFAIL)
            a('s_mov_b64 s[%d:%d], 0xffff' % (sG0, sG0 + 1))
            a('s_mov_b32 s%d, 0xffff0000' % sG1)
            a('s_mov_b32 s%d, 0' % (sG1 + 1))
            self.cf_addr()
            a('v_add_u32 v50, s%d, v50' % sT[6])
            a('v_add_u32 v13, 0x%x, v13' % FX)
            a('v_cmp_gt_u32 vcc, 32, v0')
            a('v_cndmask_b32 v50, v50, v13, vcc')
            L0, D0 = a.newlabel('cfp'), a.newlabel('cfd')
            a('s_mov_b32 s%d, 0x8000' % sCNT)
            m1 = o['pm'] if mid else o['m1']
            if m1 == 2: self.mod_issue([0, 1], MG, 7, 'mod', 5)
            if mid: mid(0)
            a('buffer_load_dword v51, v50, s[%d:%d], 0 offen sc1' % (SW, SW + 3), 'fl')
            if m1 == 3: self.mod_issue([0, 1], MG, 7, 'mod', 5)
            if mid: mid(1)
            if m1 == 4: self.mod_issue([0, 1], MG, 7, 'mod', 5)
            a('s_mul_i32 s%d, s%d, 1408' % (sT[0], sW))
            a('s_add_u32 s%d, s%d, %d' % (sT[0], sT[0], SPARE))
            a('v_and_b32 v33, 16, v7')
            a('v_sub_u32 v34, v7, v33')
            a('v_lshrrev_b32 v33, 2, v33')
            a('v_add3_u32 v33, v33, v34, s%d' % sT[0])
            a('v_lshlrev_b32 v167, 5, v3')
            a('v_add_u32 v167, %d, v167' % SPARE)
            a('s_lshl_b32 s%d, s%d, 11' % (sT[0], sW))
            a('v_add_u32 v6, s%d, v167' % sT[0])
            a('s_mov_b32 s%d, 0' % sT[5])
            a.wait_vm('fl')
            a.label(L0)
            a('v_cmp_ne_u32 vcc, s%d, v51' % sTAG)
            if o['cf1']: a('s_or_b32 vcc_hi, vcc_hi, vcc_lo')
            a('s_cmp_eq_u32 vcc_hi, 0')
            a('s_cbranch_scc1 %s' % D0)
            a.items.append(Ins('buffer_load_dword v51, v50, s[%d:%d], 0 offen sc1' % (SW, SW + 3)))
            a('s_sub_u32 s%d, s%d, 1' % (sCNT, sCNT))
            a('s_cmp_lg_u32 s%d, 0' % sCNT)
            a('s_waitcnt vmcnt(0)')
            a('s_cbranch_scc1 %s' % L0)
            a.label(D0)
            self.stamp('cfok', 9)
            aq = list(range(40))
            if m1 == 1: self.mod_issue([0, 1], MG, 7, 'mod', 5)
            self.b1_issue(0, o['nb0'])
            if not mid and o['tb1']:
                a('v_lshlrev_b32 v35, 7, v0')
                for k in range(o['tb1']):
                    off = 1024 * o['tb0'] + 8192 * k
                    a('s_add_u32 s%d, s%d, %d' % (sT[7], sB1, off))
                    nl = min(64, (RGN - off) // 128)
                    if nl < 64: a('s_bfm_b64 exec, %d, 0' % nl)
                    a('buffer_load_dword v48, v35, s[%d:%d], s%d offen sc1' % (SW, SW + 3, sT[7]))
                self.exec_all()
            if not o['cf1']:
                Lc = a.newlabel('fxok')
                a('s_cmp_eq_u32 vcc_lo, 0')
                a('s_cbranch_scc1 %s' % Lc)
                save = list(a.vm)
                self.poll(13, sT[5], 32)
                a.vm = save
                a.label(Lc)
            self.stamp('fxok', 10)
            for _ in range(2): aload(aq.pop(0))
            self.ld(HA, 0, sP[8], 'HA0')
            self.b1_issue(o['nb0'], 8)
            if m1 == 0: self.mod_issue([0, 1], MG, 7, 'mod', 5)
            for _ in range(o['la0'] - 2): aload(aq.pop(0))
            self.mod_check([0, 1], MG, 7, 'mod', 36, 5)
            self.stamp('modok', 11)
            self.plus1(MG + 20)
            self.unpack4(40, MG)
            self.unpack4(44, MG + 20)
            a('v_cvt_pk_f16_f32 v36, v44, v46')
            a('v_cvt_pk_f16_f32 v37, v45, v47')
            a('v_cvt_pk_f16_f32 v38, v40, v42')
            a('v_cvt_pk_f16_f32 v39, v41, v43')
            a('ds_write2_b32 v33, v36, v37 offset0:0 offset1:2')
            a('ds_write2_b32 v33, v38, v39 offset0:4 offset1:6')
            x = 8
            while x < o['nb2'] or len(aq) > 40 - o['la1']:
                if len(aq) > 40 - o['la1']: aload(aq.pop(0))
                if x < o['nb2']: self.b1_one(x, x == 8); x += 1
            a.wait_vm(['b1_0', 'HA0'])
            a.wait_lg()
            return
        aq = list(range(o['la1'], 40))
        a('s_barrier')
        self.stamp('gemm0')
        for f in mvread(MV, 167, 0, 'mv0') + mvread(40, 6, 0, 'mv0'): f()
        for T in range(8): bread(0, T)
        self.jobflag()
        a.wait_lg('mv0')
        for f in modul(220, MV) + modul(224, MV) + modul(HA, 40): f()
        b1f = lambda x: (lambda: self.b1_one(x, x == o['nb2']))
        b1q = list(range(o['nb2'], 38))
        hrd = {1: (0, 0, 6), 3: (1, 0, 3), 4: (1, 3, 6), 6: (2, 0, 3), 7: (2, 3, 6), 9: (3, 0, 3), 10: (3, 3, 6), 12: (4, 0, 6)}
        hmm = {2: 0, 5: 1, 8: 2, 11: 3, 13: 4}
        HOFF = [0, 6144, 38400, 44544]
        for n in range(20):
            s, i = steps[n]
            if o['fine'] == 2 and n in (0, 1, 2, 4, 8, 12, 16): self.stamp('n%d' % n)
            if n in (3, 6, 9, 12):
                assert not b1q or 2 * b1q[0] // 15 > n // 3, (n, b1q)
                a.wait_vm('b1_%d' % (n // 3))
            if n in (3, 7): a('s_barrier')
            if n == 11:
                a('s_barrier'); self.level = 1
            if n == 15:
                a.wait_lg('hp'); a('s_barrier'); self.level = 2
            vm, ot = [], []
            k = o['ra0'] if b1q else o['ra1']
            for _ in range(k):
                if aq: vm.append(lambda x=aq.pop(0): aload(x))
            for q in range(int((str(o['rb1']) + str(o['rb1'])[-1] * 20)[n])):
                if b1q: vm.insert(min(len(vm), 2 * q), b1f(b1q.pop(0)))
            hl = {1: 1, 2: 2, 3: 3, 4: 4} if not o['hl'] else {1: 1, 4: 2, 7: 3, 9: 4}
            if n in hl: vm.append(lambda: self.ld(HA + 4 * hl[n], 1024 * hl[n], sP[8], 'HA%d' % hl[n]))
            if n in hrd:
                hs, x0, x1 = hrd[n]
                ot += [lambda x=x: hread(hs, x) for x in range(x0, x1)]
            hm = []
            if n in hmm:
                hs = hmm[n]
                hm = [mm(HACC + 4 * x, HB + 4 * x, HA + 4 * hs, HT[x], hs == 0) for x in range(6)]
            if n == 14:
                ot += [lambda x=x: a('ds_write_b128 v4, %s offset:%d' % (R(HACC + 4 * x, 4), 1024 * x), 'hp') for x in range(6)]
                pre = self.p2_pre()
            if n >= 14:
                vm += pre[:3]; pre = pre[3:]
            if n == 15:
                ot += [lambda y=y, p=p: a('ds_read_b128 %s, v%d offset:%d' % (V(HB + 16 * y + 4 * p, 4), 157 + y, HOFF[p]), 'hr') for y in range(2) for p in range(4)]
            if n in (16, 17):
                b = HB + 16 * (n - 16)
                if n == 16: a.wait_lg('hr')
                ot += [lambda e=e, p=p: a('v_add_f32 v%d, v%d, v%d' % (b + 8 * p + e, b + 8 * p + e, b + 8 * p + 4 + e)) for p in range(2) for e in range(4)]
                ot += [lambda e=e: a('v_add_f32 v%d, v%d, v%d' % (b + e, b + e, b + 8 + e)) for e in range(4)]
                ot += [lambda e=e: a('v_cvt_pk_bf16_f32 v%d, v%d, v%d' % (b + e, b + 2 * e, b + 2 * e + 1)) for e in range(2)]
                ot += [lambda: a('ds_write_b64 v%d, %s' % (159 + n - 16, V(b, 2)))]
            if n == o['jfi']: vm.append(lambda: self.jf_issue())
            if n == o['jfc']:
                self.jf_check()
                self.queue_after_jobs()
            if n == o['pw']:
                if o['pwm'] == 0:
                    vm.append(lambda: (a('v_lshlrev_b32 v252, 20, v0'), a('s_mov_b64 exec, 0x7ffff'),
                                       a('buffer_load_dword v253, v252, s[%d:%d], 0 offen offset:3968 sc1' % (SW, SW + 3)), a('s_mov_b64 exec, 7'),
                                       a('buffer_load_dword v254, v252, s[%d:%d], 0 offen' % (SO, SO + 3)), a('s_mov_b64 exec, -1')))
                else:
                    vm.append(lambda: (a('v_lshlrev_b32 v252, 23, v0'), a('s_lshl_b32 s%d, s%d, 16' % (sT[0], sTQ)), a('s_mov_b64 exec, 7'),
                                       a('buffer_load_dword v253, v252, s[%d:%d], s%d offen offset:3968 sc1' % (SW, SW + 3, sT[0])), a('s_mov_b64 exec, 1'),
                                       a('v_mov_b32 v252, s%d' % sT[0]),
                                       a('buffer_load_dword v254, v252, s[%d:%d], 0 offen' % (SO, SO + 3)), a('s_mov_b64 exec, -1')))
            if n == o['mx']:
                vm.append(lambda: (a('s_lshl2_add_u32 s%d, s2, s%d' % (sT[0], sW)), a('s_mul_i32 s%d, s%d, 2560' % (sT[0], sT[0])),
                                   a('v_lshlrev_b32 v255, 7, v0'), a('s_mov_b64 exec, 0xfffff'),
                                   a('buffer_load_dword v255, v255, s[%d:%d], s%d offen' % (SX, SX + 3, sT[0])), a('s_mov_b64 exec, -1')))
            if n == o['mw1']:
                vm.append(lambda: (a('s_lshl2_add_u32 s%d, s2, s%d' % (sT[0], sW)), a('s_mul_i32 s%d, s%d, 1920' % (sT[0], sT[0])),
                                   a('v_lshlrev_b32 v14, 7, v0'), a('s_mov_b64 exec, 0x7fff'),
                                   a('buffer_load_dword v14, v14, s[%d:%d], s%d offen %s' % (S1, S1 + 3, sT[0], o['mwp'])), a('s_mov_b64 exec, -1')))
            if n >= o['gp0']:
                vm += [self.pump] * max(0, o['g_pump'] - (len(vm) if n < 14 else 1))
            gaps = []
            for T in range(8): gaps += [(T, 0), (T, 1)] + ([(T, 2)] if hm and T >= 2 else [])
            ngap = len(gaps)
            slots = [[] for _ in gaps]
            cap = [2 - (k == 0 and (n < 19 or T == 0)) for T, k in gaps]
            for g in range(ngap):
                if g + 1 == ngap or gaps[g + 1] in ((4, 0), (2, 2)): cap[g] -= 1
            def put(L, g0, g1):
                G = list(range(g0, g1 + 1))
                lvl = 0
                while sum(max(0, cap[g] + lvl) for g in G) < len(L): lvl += 1
                seats = [g for g in G for _ in range(max(0, cap[g] + lvl - 1))] if lvl else []
                extra = [g for g in G if cap[g] + lvl > 0] if lvl else [g for g in G for _ in range(max(0, cap[g]))]
                k = len(L) - len(seats)
                if not lvl and k <= len(set(extra)):
                    best = max(cap[g] for g in G)
                    e2 = [g for g in G if cap[g] == best]
                    extra = e2 if len(e2) >= k else sorted(set(extra))
                seats = sorted(seats + [extra[(2 * q + 1) * len(extra) // (2 * k)] for q in range(k)])
                for g, f in zip(seats, L): slots[g].append(f); cap[g] -= 1
            h1 = hmm.get(n + 1) if n > 1 else None
            VL = []
            if n < 19:
                s1, i1 = steps[n + 1]
                r = outr(n + 1)
                for g, f in zip((1, 3), mvread(MV, 167, 2048 * i1 + 128 * s1, 'mv%d' % (n + 1))): slots[g].append(f); cap[g] -= 1
                x = 2 * n + 2
                VL.append(lambda: a.wait_vm('A%d' % (x + 1)))
                if x >= 8: VL += [lambda d=d: a('v_accvgpr_read_b32 v%d, a%d' % (r + d, areg(x) - 256 + d)) for d in range(8)]
                VL += [lambda f=f: (a.wait_lg('mv%d' % (n + 1)), f()) for f in modul(r, MV) + modul(r + 4, MV)]
                if 'noM' in o['exp']: VL = VL[:1]
            if h1:
                for g, f in zip((5, 7), mvread(HV, 6, 128 * h1, 'hv%d' % h1)): slots[g].append(f); cap[g] -= 1
                VL += [lambda f=f: (a.wait_vm('HA%d' % h1), a.wait_lg('hv%d' % h1), f()) for f in modul(HA + 4 * h1, HV)]
            if vm: put(vm, 0, ngap - 1)
            if ot: put(ot, 3 if n == 14 else 0, ngap - 1)
            if len(VL) > 13: put(VL, 0, ngap - 2)
            elif VL: put(VL, 7, ngap - 2)
            for T, k in gaps:
                if k == 0 and T in (0, 4): a.wait_lg('B%d_%d' % (n, T + 3))
                if k < 2:
                    a(mm(ACC + 32 * k + 4 * T, BB + 4 * T, outr(n) + 4 * k, T, n == 0))
                    if k == 0 and T > 0 and n + 1 < 20: bread(n + 1, T - 1)
                    if k == 0 and T == 0 and n > 0: bread(n, 7)
                else:
                    if T == 2: a.wait_lg('HB%d' % hs)
                    a(hm.pop(0))
                for f in slots.pop(0): f()
            assert not slots and not hm
        assert not aq and not b1q and not pre
        self.stamp('gemm1')
        a('v_lshlrev_b32 v167, 7, v0')
        for f in self.touches('s'): f()

    def p1_attn(self):
        a = self.a
        ACC, S_, P_, X_ = 32, 176, 64, 80
        K = lambda t: 102 + 6 * t
        Vv = lambda y, t: 116 + 6 * y + 2 * t
        Q = lambda t, h: 132 + 8 * t + 4 * h
        np_ = [self.o['at_pump']]
        def pump(k=1):
            k = min(k, np_[0]); np_[0] -= k; self.pump(k)
        def cvt(d, r):
            a('v_cvt_pk_bf16_f32 v%d, v%d, v%d' % (d, r, r + 1))
            a('v_cvt_pk_bf16_f32 v%d, v%d, v%d' % (d + 1, r + 2, r + 3))
        def kv(t):
            r = ACC + 32 * t
            cvt(K(t), r + 8); cvt(K(t) + 4, r + 12)
            cvt(K(t) + 2, r + 16); cvt(148 + 2 * t, r + 16)
            cvt(Vv(0, t), r + 20)
            for e in range(2): a('v_permlane32_swap_b32 v%d, v%d' % (148 + 2 * t + e, K(t) + 2 + e))
            cvt(Vv(1, t), r + 24); cvt(Vv(2, t), r + 28)
        def qq(t):
            r = ACC + 32 * t
            cvt(Q(t, 0), r); cvt(Q(t, 1) + 2, r + 4)
            for e in range(2):
                a('v_cndmask_b32 v%d, 0, v%d, s[%d:%d]' % (Q(t, 0) + 2 + e, 148 + 2 * t + e, sG0, sG0 + 1))
                a('v_cndmask_b32 v%d, 0, v%d, s[%d:%d]' % (Q(t, 1) + e, 148 + 2 * t + e, sG1, sG1 + 1))
        def smm(u, cur):
            t, h = u >> 1, u & 1
            m = 16 if cur else (24 if t == 0 else 20)
            a('v_mfma_f32_16x16x32_bf16 %s, %s, %s, %s' % (V(S_ + 8 * u + 4 * cur, 4), V(K(t - 1 + cur) + 2 * h, 4), V(Q(t, h), 4), V(m, 4)))
        kv(1)
        for x in range(3): a('ds_write_b64 v161, %s offset:%d' % (V(K(1) + 2 * x, 2), 3072 + 512 * x))
        for y in range(3): a('ds_write_b64 v161, %s offset:%d' % (V(Vv(y, 1), 2), 3072 + 1536 + 512 * y))
        for f in self.touches('a0'): f()
        pump(2)
        kv(0)
        self.barrier()
        self.level = 3
        for x in range(3): a('ds_read_b64 %s, v161 offset:%d' % (V(K(-1) + 2 * x, 2), 512 * x), 'ek')
        for y in range(3): a('ds_read_b64 %s, v161 offset:%d' % (V(Vv(y, -1), 2), 1536 + 512 * y), 'ev')
        pump(3)
        qq(1)
        for u in (2, 3): smm(u, 0); smm(u, 1)
        qq(0)
        pump(2)
        for u in (0, 1): smm(u, 1)
        a.wait_lg('ek')
        for u in (0, 1): smm(u, 0)
        self.stamp('S')
        cs = LOG2E / math.sqrt(20.0)
        a('s_mov_b32 s%d, 0x%x' % (sT[1], f2u(cs)))
        sv = lambda u, i: X_ + 2 * u + i
        M = X_ + 8
        for u in (2, 3, 0, 1):
            b = S_ + 8 * u
            for i in range(2): a('v_max3_f32 v%d, v%d, v%d, v%d' % (sv(u, i), b + 2 * i, b + 2 * i + 1, b + 4 + 2 * i))
            for i in range(2): a('v_max_f32 v%d, v%d, v%d' % (sv(u, i), sv(u, i), b + 5 + 2 * i))
            a('v_max_f32 v%d, v%d, v%d' % (M + u, sv(u, 0), sv(u, 1)))
            pump(1)
        def allred(op, mid):
            a('v_permlane32_swap_b32 v%d, v%d' % (M, M + 2))
            a('v_permlane32_swap_b32 v%d, v%d' % (M + 1, M + 3))
            pump(1)
            a('%s v%d, v%d, v%d' % (op, M, M, M + 2))
            a('%s v%d, v%d, v%d' % (op, M + 1, M + 1, M + 3))
            pump(1)
            a('v_permlane16_swap_b32 v%d, v%d' % (M, M + 1))
            a('%s v%d, v%d, v%d' % (op, M, M, M + 1))
            a(mid % (M + 1, M)); a(mid % (M + 2, M)); a(mid % (M + 3, M)); a(mid % (M, M))
            pump(1)
            a('v_permlane16_swap_b32 v%d, v%d' % (M + 2, M + 3))
            a('v_permlane16_swap_b32 v%d, v%d' % (M, M + 1))
            pump(1)
            a('v_permlane32_swap_b32 v%d, v%d' % (M, M + 2))
            a('v_permlane32_swap_b32 v%d, v%d' % (M + 1, M + 3))
        allred('v_max_f32', 'v_mul_f32 v%%d, s%d, v%%d' % sT[1])
        for u in range(4):
            for i in range(2): a('v_fma_f32 v%d, v%d, s%d, -v%d' % (sv(u, i), sv(u, i), sT[1], M + u))
        for u in range(4):
            for i in range(2): a('v_exp_f32 v%d, v%d' % (sv(u, i), sv(u, i)))
        for u in range(4): a('v_add_f32 v%d, v%d, v%d' % (M + u, sv(u, 0), sv(u, 1)))
        allred('v_add_f32', 'v_rcp_f32 v%d, v%d')
        a.wait_lg('ev')
        for u in range(4):
            t, h = u >> 1, u & 1
            for i in range(2): a('v_mul_f32 v%d, v%d, v%d' % (sv(u, i), sv(u, i), M + u))
            for i in range(2): a('v_cvt_pk_bf16_f32 v%d, v%d, v%d' % (sv(u, i), sv(u, i), sv(u, i)))
            for x in range(4): a('v_bfi_b32 v%d, v%d, 0, v%d' % (P_ + 4 * u + x, 28 + x, sv(u, x & 1)))
            if u > 0: self.pv(u - 1)
        self.pv(3)
        O = S_
        for t in range(2):
            cvt(O + 4 * t, ACC + 16 * t); cvt(O + 4 * t + 2, ACC + 16 * t + 8)
            cvt(O + 8 + 2 * t, ACC + 16 * t + 4); cvt(O + 12, ACC + 16 * t + 12)
            for e in range(2): a('v_permlane16_swap_b32 v%d, v%d' % (O + 4 * t + e, O + 4 * t + 2 + e))
            for e in range(2): a('v_cndmask_b32 v%d, v%d, v%d, s[%d:%d]' % (O + 8 + 2 * t + e, O + 8 + 2 * t + e, O + 12 + e, sG1, sG1 + 1))
        a('s_add_u32 s%d, s%d, 20480' % (sT[0], sP[9]))
        for e in range(2): a('v_permlane32_swap_b32 v%d, v%d' % (O + 8 + e, O + 10 + e))
        self.st2(['buffer_store_dwordx4 %s, v162, s[%d:%d], s%d offen' % (V(O, 4), SW, SW + 3, sP[9]),
                  'buffer_store_dwordx4 %s, v162, s[%d:%d], s%d offen' % (V(O + 4, 4), SW, SW + 3, sT[0]),
                  'buffer_store_dwordx2 %s, v163, s[%d:%d], s%d offen offset:512' % (V(O + 8, 2), SW, SW + 3, sP[9])], 'ost')
        self.stamp('attn')

    def pv(self, u):
        t, h = u >> 1, u & 1
        for x, y in enumerate((h, 2)):
            self.a('v_mfma_f32_16x16x32_bf16 %s, %s, %s, 0' % (V(32 + 8 * u + 4 * x, 4), V(114 + 6 * y + 2 * t, 4), V(64 + 4 * u, 4)))

    def finish(self):
        a = self.a
        D = a.newlabel('ep')
        a('s_or_b32 s%d, s2, s%d' % (sT[0], sW))
        a('s_cmp_lg_u32 s%d, 0' % sT[0])
        a('s_cbranch_scc1 %s' % D)
        a('v_mov_b32 v14, s%d' % sTAG)
        self.exec_(1, 0)
        a('buffer_store_dword v14, off, s[%d:%d], 0 sc1' % (SW, SW + 3))
        self.exec_all()
        a.label(D)
        if self.stamps:
            a.wait_vm()
            self.stamp('end')
            a('v_writelane_b32 v15, s%d, 63' % sFAIL)
            a('v_writelane_b32 v15, s%d, 62' % sSLOW)
            a('s_lshl_b32 s%d, s2, 2' % sT[0])
            a('s_add_u32 s%d, s%d, s%d' % (sT[0], sT[0], sW))
            a('s_lshl_b32 s%d, s%d, 8' % (sT[0], sT[0]))
            a('s_add_u32 s%d, s%d, 0x%x' % (sT[0], sT[0], DBG))
            a('v_lshlrev_b32 v14, 2, v0')
            if not self.o.get('nodbg'): a('buffer_store_dword v15, v14, s[%d:%d], s%d offen sc0 sc1' % (SW, SW + 3, sT[0]))
            amp = self.o.get('amp', 0)
            if amp:
                L, E = a.newlabel('amp'), a.newlabel('ampe')
                a('v_readlane_b32 s%d, v15, 0' % sT[2])
                a('v_readlane_b32 s%d, v15, %d' % (sT[3], amp))
                a('v_readlane_b32 s%d, v15, %d' % (sT[4], self.nst - 1))
                if amp == 40:
                    a('v_readlane_b32 s%d, v15, 40' % sT[2])
                    a('v_readlane_b32 s%d, v15, 0' % sT[3])
                if amp in (42, 43):
                    a('s_mov_b32 s%d, 0x%x' % (sT[5], DBG - 256))
                    a('buffer_load_dword v12, off, s[%d:%d], s%d sc0 sc1' % (SW, SW + 3, sT[5]))
                    a('s_waitcnt vmcnt(0)')
                    x, y = (sT[2], sT[3]) if amp == 42 else (sT[3], sT[2])
                    a('v_readlane_b32 s%d, v12, 40' % x)
                    a('v_readlane_b32 s%d, v15, 40' % y)
                    a('s_sub_u32 s%d, s%d, 1000' % (sT[2], sT[2]))
                if amp == 41:
                    R = a.newlabel('rr')
                    a('s_mov_b32 s%d, 8' % sCNT)
                    a.label(R)
                    a('s_mov_b32 s%d, 0x%x' % (sT[5], DBG))
                    a('buffer_load_dword v12, v14, s[%d:%d], s%d offen sc0 sc1' % (SW, SW + 3, sT[5]))
                    a('s_waitcnt vmcnt(0)')
                    a('s_sub_u32 s%d, s%d, 1' % (sCNT, sCNT))
                    a('s_cmp_lg_u32 s%d, 0' % sCNT)
                    a('s_cbranch_scc1 %s' % R)
                    a('v_readlane_b32 s%d, v12, 40' % sT[2])
                    a('v_readlane_b32 s%d, v15, 40' % sT[3])
                    a('s_sub_u32 s%d, s%d, 1000' % (sT[2], sT[2]))
                a('s_cmp_eq_u32 s%d, 0' % sT[3])
                a('s_cbranch_scc1 %s' % E)
                a('s_sub_u32 s%d, s%d, s%d' % (sT[3], sT[3], sT[2]))
                a('s_min_u32 s%d, s%d, 6000' % (sT[3], sT[3]))
                a('s_lshl_b32 s%d, s%d, 2' % (sT[3], sT[3]))
                a('s_mov_b32 s%d, 0x100000' % sCNT)
                a.label(L)
                a('s_memrealtime s[98:99]')
                a('s_waitcnt lgkmcnt(0)')
                a('s_sub_u32 s%d, s%d, 1' % (sCNT, sCNT))
                a('s_cmp_eq_u32 s%d, 0' % sCNT)
                a('s_cbranch_scc1 %s' % E)
                a('s_sub_u32 s%d, s98, s%d' % (sT[5], sT[4]))
                a('s_cmp_lt_u32 s%d, s%d' % (sT[5], sT[3]))
                a('s_cbranch_scc1 %s' % L)
                a.label(E)
            hd = self.o.get('hd', 0)
            if hd:
                a('s_load_dwordx2 s[%d:%d], s[0:1], 72' % (sT[0], sT[1]))
                a.wait_lg()
                self.srd(SJ, sT[0], 64)
                sh = 0 if hd in (1, 3) else 11
                a('v_subrev_u32 v13, %d, v0' % sh)
                a('v_max_i32 v13, 0, v13')
                a('v_lshlrev_b32 v13, 2, v13')
                if hd in (1, 2):
                    a('v_not_b32 v12, v15')
                    a('v_cmp_eq_u32 vcc, 0, v0')
                    a('v_cndmask_b32 v12, v15, v12, vcc')
                    op = 'umax'
                else:
                    a('v_readlane_b32 s%d, v15, 0' % sT[2])
                    a('v_subrev_u32 v12, s%d, v15' % sT[2])
                    a('v_cmp_eq_u32 vcc, 0, v15')
                    a('v_cndmask_b32 v12, v12, 0, vcc') if 0 else a('v_cndmask_b32 v12, v12, v15, vcc')
                    op = 'add'
                self.exec_('0xffff' if sh == 0 else '0x%x' % (1 | (0x7fff << 12)), 0)
                a('buffer_atomic_%s v12, v13, s[%d:%d], 0 offen' % (op, SJ, SJ + 3))
                self.exec_all()
        a.label('L_end')
        a('s_endpgm')
        for c in self.cold: c()
        a.label('CODE_END')
        a('s_endpgm')

from gen2 import add_phases
add_phases(Gen, globals())

def build(stamps=False, opt=None):
    g = Gen(stamps, opt)
    g.run()
    body = g.a.finish()
    hdr = '''; fused adaLN block: persistent single launch, 256 workgroups (one per CU)
; @launch grid=(256,1,1) block=(256,1,1) lds=163840
.amdgcn_target "amdgcn-amd-amdhsa--gfx950"
.text
.globl {n}_kernel
.p2align 8
.type {n}_kernel,@function
{n}_kernel:
'''.format(n=NAME)
    tail = '''
.section .rodata,"a"
.p2align 6
.amdhsa_kernel {n}_kernel
  .amdhsa_next_free_vgpr 512
  .amdhsa_next_free_sgpr 102
  .amdhsa_accum_offset 256
  .amdhsa_group_segment_fixed_size 0
  .amdhsa_kernarg_size 88
  .amdhsa_user_sgpr_count 2
  .amdhsa_user_sgpr_kernarg_segment_ptr 1
  .amdhsa_system_sgpr_workgroup_id_x 1
.end_amdhsa_kernel
'''.format(n=NAME)
    return hdr + body + tail, g

def parse(kvs):
    o = {}
    for kv in kvs:
        k, v = kv.split('=', 1)
        o[k] = int(v) if v.lstrip('-').isdigit() else v.replace('+', ' ')
    return o

if __name__ == '__main__':
    if len(sys.argv) > 2 and sys.argv[1] == 'var':
        o = parse(sys.argv[3:])
        txt, g = build(True, o)
        open('v_%s.s' % sys.argv[2], 'w').write(txt)
        open('v_%s.names' % sys.argv[2], 'w').write('\n'.join(g.names))
        txt, g = build(False, o)
        open('p_%s.s' % sys.argv[2], 'w').write(txt)
    else:
        out = 'cdna_kernels/%s.s' % NAME
        txt, g = build(False)
        open(out, 'w').write(txt)
        print('written', out, len(txt), 'bytes; nops', g.a.npad)
```

```python
import sys, os, math
sys.path.insert(0, os.path.dirname(os.path.abspath(__file__)))
from asmlib import *

NAME = 'adaLN_cond__sliding_local_dilated__dense_activation_silu__prompt'

JF   = 0x1000
CF   = 0x60000
FO   = 0x2000
FY   = 0xA000
FH   = 0x12000
FX   = 0x1A000
XI   = 0x22000
MODP = 0x24000
ST   = 0x40000
W2T  = 0x80000
W4T  = W2T + 819200
WO_  = W4T + 1966080
WY   = WO_ + 2621440
WH   = WY + 2621440
WHB  = WH + 6291456
W1C  = WHB + 2621440
DBG  = W1C + 2457600 + 256
WSZ  = DBG + 1024 * 256

RGN   = 38400
SPARE = 153600
HST   = SPARE + 8192
MRED  = SPARE + 8704
HP    = 76800
EX    = 76800 + 12288
RED   = 92160
X1S   = 122880
UT    = 143360
GA_, C2F, GB_, C2B, S2B = SPARE, SPARE + 2560, SPARE + 5120, SPARE + 7680, SPARE + 8960
TOFF = [0, 48, 80, 128, 32, 160, 208, 192]

sW, sC, sJ, sTAG, sCI = 3, 4, 5, 6, 7
pX, pQ, pWO, pW1, pW2, pC, pWM, pOUT, pWS = 8, 10, 12, 16, 18, 20, 22, 24, 28
SX, SQ, SW, SO, S1, SJ = 32, 36, 40, 44, 48, 52
sRG, sCG = 30, 31
sP = [56, 57, 58, 59, 60, 61, 62, 63, 64, 65, 66, 67]
sB3M, sB4O = 68, 69
sG0, sG1 = 70, 72
jD = [74, 75, 76]; jS = [77, 78, 79]
sJ0, sJ1 = 100, 101
sTQ = 100
sNM = 80
sMO = 81
sRB = 82
sXO = 83
sB1 = 84
sPROD = 85
sT = [86, 87, 88, 89, 90, 91, 92, 93]
sCNT = 94
sONE = 95
sHI = 96
sFAIL = 97
sSLOW = 14
sN = 15
sTILE = 26
sSL2 = 27
sCP = 97
CPP = 976

LOG2E = 1.4426950408889634
def f2u(x):
    import struct
    return struct.unpack('<I', struct.pack('<f', x))[0]

DEF = dict(bpol='sc1', jpol='nt', hpol='', fast=0, cwarm=1, wpol='sc1', w1pol='', apol='sc1', spol='', touch=0, early=1, lin=1, gp0=12, t2='x', t3a='x', t3b='x', t4a='x', t4b='x', fine=0, exp='',
           ord='cmf', role='p', cp='c', xo=0, e2=3, mxp=0, pre=3, xpol='sc1', cf1=0, jl=3, jm=1, jx=14, pm=2, m1=1, nb0=8, mpg=1, la0=4, nb2=15, rb1=32322, ra0=2, cpol='', ra1=4, la1=8, jfi=13, jfc=15, g_pump=3, at_pump=21,
           la2=12, la3=12, la4=12, mw1=14, mwp='', hl=1, pw=16, pwm=0, mx=-1, tb1=0, tb0=8, b3l=0, ra3=3, rp3=3, p3min=0, o_pre=0, p2_pump=10, y_pre=0, p3_pump=60, h_pre=0)

class Gen:
    def __init__(self, stamps=False, opt=None):
        self.a = Asm()
        self.stamps = stamps
        self.o = dict(DEF); self.o.update(opt or {})
        self.nst = 0
        self.fq = []
        self.cold = []
        self.level = 0

    def stamp(self, name, idx=None):
        if not self.stamps: return
        a = self.a
        idx = self.nst if idx is None else idx
        a.c('stamp %d %s' % (idx, name))
        if name == 'karg':
            a.wait_lg()
            a('v_writelane_b32 v15, s98, 40')
        a('s_memtime s[98:99]' if self.o.get('cyc') else 's_memrealtime s[98:99]')
        a.wait_lg()
        a('v_writelane_b32 v15, s98, %d' % idx)
        if name == 'gemm0' and self.o.get('amp', 0) in (42, 43):
            a('s_mov_b32 s98, 0x%x' % (DBG - 256))
            a('s_or_b32 s99, s2, s%d' % sW)
            a('s_cmp_eq_u32 s99, 0')
            a('s_cselect_b32 exec_hi, 256, 0')
            a('s_mov_b32 exec_lo, 0')
            a('buffer_store_dword v15, off, s[%d:%d], s98 sc0 sc1' % (SW, SW + 3))
            a('s_mov_b64 exec, -1')
        self.nm = getattr(self, 'nm', {})
        self.nm[idx] = name
        self.nst = max(self.nst, idx + 1)
        self.names = [self.nm.get(i, '-') for i in range(self.nst)]

    def srd(self, d, p, n):
        a = self.a
        a('s_mov_b32 s%d, s%d' % (d, p))
        a('s_and_b32 s%d, s%d, 0xffff' % (d + 1, p + 1))
        a('s_mov_b32 s%d, %d' % (d + 2, n))
        a('s_mov_b32 s%d, 0x20000' % (d + 3))

    def exec_(self, lo, hi):
        self.a('s_mov_b32 exec_lo, %s' % lo)
        self.a('s_mov_b32 exec_hi, %s' % hi)
    def exec_all(self):
        self.a('s_mov_b64 exec, -1')

    def barrier(self):
        self.a.wait_lg()
        self.a('s_barrier')

    def rowsum(self, regs, tmp):
        a = self.a
        for sw in ('v_permlane32_swap_b32', 'v_permlane16_swap_b32'):
            for i, r in enumerate(regs): a('v_mov_b32 v%d, v%d' % (tmp + i, r))
            for i, r in enumerate(regs): a('%s v%d, v%d' % (sw, r, tmp + i))
            for i, r in enumerate(regs): a('v_add_f32 v%d, v%d, v%d' % (r, r, tmp + i))

    def finstats(self, s1, s2, t):
        a = self.a
        a('v_mul_f32 v%d, 0x%x, v%d' % (s1, f2u(1 / 640), s1))
        a('v_mul_f32 v%d, v%d, v%d' % (t, s1, s1))
        a('v_fma_f32 v%d, v%d, s%d, -v%d' % (s2, s2, sT[7], t))
        a('v_max_f32 v%d, 0, v%d' % (s2, s2))
        a('v_add_f32 v%d, 0x%x, v%d' % (s2, f2u(1e-5), s2))
        a('v_rsq_f32 v%d, v%d' % (s2, s2))

    def poll(self, vaddr, soff, vt):
        a = self.a
        L, D = a.newlabel('poll'), a.newlabel('pdone')
        a('s_mov_b32 s%d, 0x8000' % sCNT)
        a.label(L)
        a('buffer_load_dword v%d, v%d, s[%d:%d], s%d offen sc1' % (vt, vaddr, SW, SW + 3, soff))
        a.wait_vm()
        a('v_cmp_ne_u32 vcc, s%d, v%d' % (sTAG, vt))
        a('s_cbranch_vccz %s' % D)
        a('s_sub_u32 s%d, s%d, 1' % (sCNT, sCNT))
        a('s_cmp_lg_u32 s%d, 0' % sCNT)
        a('s_cbranch_scc1 %s' % L)
        a.label(D)

    def mod_issue(self, vecs, r0, vaddr, tag, NP=2):
        a = self.a
        for i, vec in enumerate(vecs):
            for p in range(NP):
                a('s_mov_b32 s%d, 0x%x' % (sT[0], MODP + p * 15360 + vec * 2560))
                a('buffer_load_dwordx4 %s, v%d, s[%d:%d], s%d offen sc1' % (V(r0 + 4 * NP * i + 4 * p, 4), vaddr, SW, SW + 3, sT[0]), tag)

    def mod_check(self, vecs, r0, vaddr, tag, t, NP=2):
        a = self.a
        L, C, D = a.newlabel('mchk'), a.newlabel('mcold'), a.newlabel('mok')
        N = 4 * NP * len(vecs)
        a('s_mov_b32 s%d, 0x8000' % sCNT)
        for e in range(4): a('s_bfe_u32 s%d, s%d, 0x%x' % (sT[1 + e], sTAG, 0x80000 + 8 * e))
        a.wait_vm(tag)
        a.label(L)
        for x in range(N):
            a('v_xor_b32 v%d, s%d, v%d' % (r0 + x, sT[1 + (x & 3)], r0 + x))
            if x == 1: a('v_or_b32 v%d, v%d, v%d' % (t, r0, r0 + 1))
            elif x & 1: a('v_or3_b32 v%d, v%d, v%d, v%d' % (t, t, r0 + x - 1, r0 + x))
        a('v_cmp_ne_u32_sdwa vcc, v%d, v%d src0_sel:BYTE_0 src1_sel:BYTE_3' % (t, 0))
        a('s_cbranch_vccnz %s' % C)
        a.label(D)
        def cold():
            a.label(C)
            a('s_add_u32 s%d, s%d, 1' % (sFAIL, sFAIL))
            a('s_sub_u32 s%d, s%d, 1' % (sCNT, sCNT))
            a('s_cmp_eq_u32 s%d, 0' % sCNT)
            a('s_cbranch_scc1 %s' % D)
            self.mod_issue(vecs, r0, vaddr, None, NP)
            a('s_waitcnt vmcnt(0)')
            a('s_branch %s' % L)
        self.cold.append(cold)
        for p in range(1, NP):
            for i in range(len(vecs)):
                r = r0 + 4 * NP * i
                for e in (0, 2): a('v_pk_add_f32 %s, %s, %s' % (V(r + e, 2), V(r + e, 2), V(r + 4 * p + e, 2)))
        for i in range(len(vecs)):
            r = r0 + 4 * NP * i
            a('v_cvt_pk_bf16_f32 v%d, v%d, v%d' % (r, r, r + 1))
            a('v_cvt_pk_bf16_f32 v%d, v%d, v%d' % (r + 1, r + 2, r + 3))

    def unpack4(self, d, s):
        a = self.a
        a('v_lshlrev_b32 v%d, 16, v%d' % (d, s))
        a('v_and_b32 v%d, s%d, v%d' % (d + 1, sHI, s))
        a('v_lshlrev_b32 v%d, 16, v%d' % (d + 2, s + 1))
        a('v_and_b32 v%d, s%d, v%d' % (d + 3, sHI, s + 1))

    def plus1(self, r):
        a = self.a
        self.unpack4(r + 4, r)
        for e in range(4): a('v_add_f32 v%d, 1.0, v%d' % (r + 4 + e, r + 4 + e))
        a('v_cvt_pk_bf16_f32 v%d, v%d, v%d' % (r, r + 4, r + 5))
        a('v_cvt_pk_bf16_f32 v%d, v%d, v%d' % (r + 1, r + 6, r + 7))

    def mfma(self, d, wa, act, first=False):
        c = '0' if first else R(d, 4)
        return 'v_mfma_f32_16x16x32_bf16 %s, %s, %s, %s' % (R(d, 4), R(wa, 4), R(act, 4), c)

    def pump(self, k=1):
        while k > 0 and self.fq and self.fq[0][0] <= self.level:
            self.fq.pop(0)[1]()
            k -= 1
    def flush(self, name):
        while any(e[2] == name for e in self.fq):
            assert self.fq[0][0] <= self.level
            self.fq.pop(0)[1]()

    def st2(self, texts, tag=None, sl=None):
        a = self.a
        if not self.o['fast']:
            for t in texts:
                if t.startswith('buffer'): a(t + ' sc1', tag)
                else: a(t)
            return
        Ls, Ld = a.newlabel('slow'), a.newlabel('sdone')
        a('s_cmp_lg_u32 s%d, 0' % (sSLOW if sl is None else sl))
        a('s_cbranch_scc1 %s' % Ls)
        for t in texts: a(t + (' ' + self.o['spol'] if t.startswith('buffer') else ''), tag)
        a.label(Ld)
        def cold():
            a.label(Ls)
            a('s_nop 4')
            for t in texts: a.items.append(Ins(t + (' sc1' if t.startswith('buffer') else '')))
            a('s_nop 1')
            a('s_branch %s' % Ld)
        self.cold.append(cold)

    def flagstore(self, soff, sl=None):
        a = self.a
        D = a.newlabel('pub')
        a('s_cmp_lg_u32 s%d, 0' % sW)
        a('s_cbranch_scc1 %s' % D)
        a('v_mov_b32 v14, s%d' % sTAG)
        self.exec_(1, 0)
        save = list(a.vm)
        self.st2(['buffer_store_dword v14, off, s[%d:%d], s%d' % (SW, SW + 3, soff)], None, sl)
        a.vm = save
        self.exec_all()
        a.label(D)

    def publish(self, base, tag=None, touch=None):
        a = self.a
        a('s_lshl_b32 s%d, s%d, 7' % (sT[0], sCI))
        a('s_add_u32 s%d, s%d, 0x%x' % (sT[0], sT[0], base))
        if touch and self.o['touch']: touch[0]()
        a.wait_vm(tag)
        if touch and self.o['touch']: touch[1]()
        self.barrier()
        self.flagstore(sT[0])

    def xi_issue(self, tag):
        a = self.a
        a('s_lshl_b32 s%d, s%d, 7' % (sT[0], sC))
        a('s_add_u32 s%d, s%d, 0x%x' % (sT[0], sT[0], XI))
        a('v_lshlrev_b32 v32, 2, v2')
        a('buffer_load_dword v33, v32, s[%d:%d], s%d offen sc1' % (SW, SW + 3, sT[0]), tag)
    def xi_check(self, tag):
        a = self.a
        L, D = a.newlabel('xi'), a.newlabel('xiok')
        a.wait_vm(tag)
        a('s_mov_b32 s%d, 0x8000' % sCNT)
        a.label(L)
        a('v_subrev_u32 v33, s%d, v33' % sTAG)
        a('v_cmp_lt_u32 vcc, 15, v33')
        a('s_cbranch_vccz %s' % D)
        a('s_sub_u32 s%d, s%d, 1' % (sCNT, sCNT))
        a('s_cmp_eq_u32 s%d, 0' % sCNT)
        a('s_cbranch_scc1 %s' % D)
        save = list(a.vm)
        self.xi_issue(None)
        a('s_waitcnt vmcnt(0)')
        a.vm = save
        a('s_branch %s' % L)
        a.label(D)
        a('v_readfirstlane_b32 s%d, v33' % sT[0])
        a('v_cmp_ne_u32 vcc, s%d, v33' % sT[0])
        a('s_or_b32 s%d, vcc_lo, vcc_hi' % sSLOW)

    def b1_one(self, x, force=False, mask=None):
        a = self.a
        if force or x % 4 == 0:
            a('s_add_u32 m0, s%d, %d' % (sRB, 4096 * (x // 4)))
            a('s_add_u32 s%d, s%d, %d' % (sT[7], sB1, 4096 * (x // 4)))
        if mask is not None: a('s_mov_b32 exec_lo, s%d' % mask)
        if x == 37: a('s_mov_b32 exec_hi, 0')
        elif mask is not None: a('s_mov_b32 exec_hi, s%d' % mask)
        a('buffer_load_dwordx4 v1, s[%d:%d], s%d offen offset:%d %s lds' % (SW, SW + 3, sT[7], 1024 * (x & 3), self.o['bpol']), 'b1_%d' % (2 * x // 15))
        if x == 37 or mask is not None: self.exec_all()
    def b1_issue(self, x0, x1):
        for x in range(x0, x1): self.b1_one(x, x == x0)

    def xi_publish(self):
        a = self.a
        a.wait_lg()
        a('s_add_u32 s%d, s%d, 0x9e3779b9' % (sTAG, sTAG))

    def prologue(self):
        a = self.a
        a('s_cmp_ge_u32 s2, 256')
        a('s_cbranch_scc1 L_end')
        if self.stamps: a('s_memrealtime s[98:99]')
        a('s_load_dwordx16 s[8:23], s[0:1], 0')
        a('s_load_dwordx4 s[24:27], s[0:1], 64')
        a('s_load_dwordx2 s[28:29], s[0:1], 80')
        if self.o['cwarm']:
            a('s_getpc_b64 s[%d:%d]' % (SJ, SJ + 1))
            a('s_and_b32 s%d, s%d, 0xffff' % (SJ + 1, SJ + 1))
            a('s_mov_b32 s%d, CODE_END-%s_kernel-64' % (SJ + 2, NAME))
            a('s_mov_b32 s%d, 0x20000' % (SJ + 3))
            a('s_bfe_u32 s%d, s2, 0x10003' % sT[0])
            a('s_lshl_b32 s%d, s%d, 15' % (sT[0], sT[0]))
            a('v_lshl_add_u32 v1, v0, 7, s%d' % sT[0])
            a('buffer_load_dword v255, v1, s[%d:%d], 0 offen' % (SJ, SJ + 3), 'cw')
        a('v_lshrrev_b32 v1, 6, v0')
        a('v_and_b32 v0, 63, v0')
        a('v_readfirstlane_b32 s%d, v1' % sW)
        a('v_lshlrev_b32 v1, 4, v0')
        if self.stamps: a('v_mov_b32 v15, 0')
        assert not self.o['fast']
        a('s_and_b32 s%d, s2, 7' % sT[0])
        a('s_lshr_b32 s%d, s2, 7' % sT[1])
        a('s_lshl1_add_u32 s%d, s%d, s%d' % (sC, sT[0], sT[1]))
        a('s_bfe_u32 s%d, s2, 0x40003' % sJ)
        a('s_lshl4_add_u32 s%d, s%d, s%d' % (sCI, sC, sJ))
        a('s_lshr_b32 s%d, s%d, 3' % (sRG, sJ))
        a('s_and_b32 s%d, s%d, 7' % (sCG, sJ))
        a('s_mov_b32 s%d, 0x3f803f80' % sONE)
        a('s_mov_b32 s%d, 0xffff0000' % sHI)
        a('s_mul_i32 s%d, s%d, %d' % (sRB, sW, RGN))
        a('s_mul_i32 s%d, s%d, 153600' % (sB1, sJ))
        a('s_add_u32 s%d, s%d, s%d' % (sB1, sB1, sRB))
        a('s_add_u32 s%d, s%d, 0x%x' % (sB1, sB1, W1C))
        a('v_and_b32 v2, 15, v0')
        a('v_lshrrev_b32 v3, 4, v0')
        a('v_lshrrev_b32 v36, 5, v0')
        a('v_bfe_u32 v37, v0, 3, 2')
        a('v_lshl_add_u32 v36, v36, 3, v37')
        a('v_and_b32 v37, 0x70, v1')
        a('v_mul_u32_u24 v38, 7680, v36')
        a('v_add_u32 v38, v38, v37')
        a('v_mul_u32_u24 v39, 1280, v36')
        a('v_add_u32 v39, v39, v37')
        a('v_lshlrev_b32 v41, 2, v0')
        a('v_mul_u32_u24 v6, 13, v0')
        a('v_lshrrev_b32 v6, 8, v6')
        a('v_mul_u32_u24 v6, 960, v6')
        a('v_add_u32 v6, v6, v1')
        a('v_mul_u32_u24 v43, 1280, v2')
        a('v_lshl_add_u32 v43, v3, 4, v43')
        a('s_lshr_b32 s%d, s%d, 1' % (sT[2], sJ))
        a('s_lshl3_add_u32 s%d, s%d, s%d' % (sT[3], sT[1], sT[2]))
        a('s_lshl3_add_u32 s%d, s%d, s%d' % (sT[3], sT[3], sT[0]))
        a('s_lshl3_add_u32 s%d, s%d, s%d' % (sXO, sC, sT[2]))
        a('s_xor_b32 s%d, s%d, s%d' % (sT[1], sT[1], sJ))
        a('s_and_b32 s%d, s%d, 1' % (sT[1], sT[1]))
        a('s_sub_u32 s%d, 0, s%d' % (sPROD, sT[1]))
        Lp, Ld = a.newlabel('prod'), a.newlabel('join')
        a('s_cbranch_scc1 %s' % Lp)
        save = (list(a.vm), list(a.lg))
        self.plain()
        a('s_branch %s' % Ld)
        q = list(a.vm)
        a.vm, a.lg = save
        a.label(Lp)
        self.producer()
        assert q == a.vm, (q, a.vm)
        a.label(Ld)

    def staging(self):
        a = self.a
        a('s_lshl_b32 s%d, s%d, 11' % (sT[0], sW))
        a('s_add_u32 s%d, s%d, %d' % (sT[0], sT[0], SPARE))
        a('v_and_b32 v42, 0x30, v0')
        a('v_lshlrev_b32 v42, 1, v42')
        a('v_xor_b32 v42, v42, v1')
        a('v_add_u32 v42, s%d, v42' % sT[0])
        a('v_lshrrev_b32 v140, 2, v0')
        a('v_and_b32 v141, 6, v140')
        a('v_lshlrev_b32 v141, 4, v141')
        a('v_lshl_add_u32 v140, v140, 7, v141')
        a('v_and_b32 v141, 3, v0')
        a('v_lshl_add_u32 v140, v141, 3, v140')
        a('v_add_u32 v140, s%d, v140' % sT[0])
        for T in range(1, 4): a('v_xor_b32 v%d, %d, v140' % (140 + T, 32 * T))
        a('v_add_u32 v41, s%d, v41' % sT[0])
        a('v_lshl_add_u32 v45, v3, 4, s%d' % sT[0])
        a('v_lshl_add_u32 v145, v3, 6, s%d' % sT[0])
        a('s_lshl_b32 s%d, s%d, 8' % (sT[0], sW))
        a('s_add_u32 s%d, s%d, %d' % (sT[0], sT[0], MRED))
        a('v_lshl_add_u32 v144, v3, 4, s%d' % sT[0])
        a('v_lshlrev_b32 v146, 4, v2')
        a('v_add_u32 v147, %d, v146' % MRED)
    def silu(self, nu, C=44, D=128, tag='c'):
        a = self.a
        a.wait_vm(tag)
        a('v_lshlrev_b32 v46, 16, v%d' % C)
        a('v_and_b32 v47, s%d, v%d' % (sHI, C))
        for r in (46, 47): a('v_mul_f32 v%d, 0x%x, v%d' % (r + 2, f2u(-LOG2E), r))
        for r in (46, 47): a('v_exp_f32 v%d, v%d' % (r + 2, r + 2))
        for r in (46, 47): a('v_add_f32 v%d, 1.0, v%d' % (r + 2, r + 2))
        for r in (46, 47): a('v_rcp_f32 v%d, v%d' % (r + 2, r + 2))
        for r in (46, 47): a('v_mul_f32 v%d, v%d, v%d' % (r, r, r + 2))
        a('v_cvt_pk_bf16_f32 v44, v46, v47')
        a('ds_write_b32 v41, v44')
        for u in range(nu):
            a('ds_read_b128 %s, v45 offset:%d' % (V(D + 4 * u, 4), 64 * u), 'silu')
    def mod_write(self, MA=60):
        a = self.a
        self.exec_('0x00010001', '0x00010001')
        a('s_nop 6')
        for T in range(4): a('ds_write_b128 v144, %s offset:%d' % (V(MA + 4 * T, 4), 64 * T))
        self.exec_all()
    def mod_publish(self, MA=60, sNM=sNM, sMO=sMO):
        a = self.a
        Ld = a.newlabel('nomod')
        a('s_cmp_eq_u32 s%d, 0' % sNM)
        a('s_cselect_b32 s%d, 1, s%d' % (sT[5], sW))
        a('s_cmp_lg_u32 s%d, 0' % sT[5])
        a('s_cselect_b32 s%d, 0, 0xffff' % sT[5])
        a('s_cbranch_scc1 %s' % Ld)
        for i in range(4): a('ds_read_b128 %s, v147 offset:%d' % (V(MA + 4 * i, 4), 256 * i))
        a('s_mov_b32 s%d, 0xffffff00' % sT[0])
        for e in range(4): a('s_bfe_u32 s%d, s%d, 0x%x' % (sT[1 + e], sTAG, 0x80000 + 8 * e))
        a.wait_lg()
        for hh in (0, 2):
            a('v_pk_add_f32 %s, %s, %s' % (V(MA + hh, 2), V(MA + hh, 2), V(MA + 4 + hh, 2)))
            a('v_pk_add_f32 %s, %s, %s' % (V(MA + 8 + hh, 2), V(MA + 8 + hh, 2), V(MA + 12 + hh, 2)))
        for hh in (0, 2):
            a('v_pk_add_f32 %s, %s, %s' % (V(MA + hh, 2), V(MA + hh, 2), V(MA + 8 + hh, 2)))
        for e in range(4): a('v_and_b32 v%d, s%d, v%d' % (MA + e, sT[0], MA + e))
        for e in range(4): a('v_or_b32 v%d, s%d, v%d' % (MA + e, sT[1 + e], MA + e))
        a.label(Ld)
        self.exec_('s%d' % sT[5], 0)
        a('buffer_store_dwordx4 %s, v146, s[%d:%d], s%d offen sc1' % (V(MA, 4), SW, SW + 3, sMO), 'mp')
        self.exec_all()
    def cf_addr(self):
        a = self.a
        a('s_lshl_b32 s%d, s%d, 12' % (sT[6], sJ))
        a('s_mul_i32 s%d, s%d, 640' % (sT[0], sW))
        a('s_add_u32 s%d, s%d, s%d' % (sT[6], sT[6], sT[0]))
        a('s_add_u32 s%d, s%d, 0x%x' % (sT[6], sT[6], CF))
        a('v_and_b32 v50, 7, v0')
        a('v_min_u32 v50, 4, v50')
        a('v_lshlrev_b32 v50, 7, v50')

    def cp_setup(self):
        a = self.a
        a('s_sub_u32 s%d, s%d, 48' % (sT[1], sT[3]))
        a('s_cselect_b32 s%d, 0, -1' % sCP)
        a('s_and_b32 s%d, s%d, s%d' % (sT[1], sT[1], sCP))
        a('s_lshr_b32 s%d, s%d, 2' % (sT[0], sT[1]))
        a('s_and_b32 s%d, s%d, 3' % (sT[1], sT[1]))
        a('s_lshl2_add_u32 s%d, s%d, s%d' % (sT[2], sT[0], sW))
        a('s_mul_i32 s%d, s%d, %d' % (sT[2], sT[2], 8 * 3840))
        a('s_mul_i32 s%d, s%d, 320' % (sT[4], sT[1]))
        a('s_add_u32 s%d, s%d, s%d' % (sT[2], sT[2], sT[4]))
        a('s_lshl2_add_u32 s%d, s%d, s%d' % (sT[1], sT[1], sW))
        a('s_mul_i32 s%d, s%d, 20' % (sT[4], sT[1]))
        a('s_add_u32 s%d, s%d, s%d' % (sT[4], sT[4], sT[0]))
        a('s_mul_i32 s%d, s%d, 7680' % (sG0, sT[4]))
        a('s_add_u32 s%d, s%d, 0x%x' % (sG0, sG0, W1C))
        a('s_lshl_b32 s%d, s%d, 5' % (sT[1], sT[1]))
        a('s_add_u32 s%d, s%d, s%d' % (sT[1], sT[1], sT[0]))
        a('s_lshl_b32 s%d, s%d, 7' % (sG0 + 1, sT[1]))
        a('s_add_u32 s%d, s%d, 0x%x' % (sG0 + 1, sG0 + 1, CF))
        a('s_mul_i32 m0, s%d, %d' % (sW, 8 * CPP))
    def cp_load(self):
        a = self.a
        self.srd(SQ, pQ, 640 * 3840)
        a('s_mov_b32 exec_lo, s%d' % sCP)
        a('s_lshr_b32 exec_hi, s%d, 4' % sCP)
        for x in range(8):
            a('buffer_load_dwordx4 v6, s[%d:%d], s%d offen %s lds' % (SQ, SQ + 3, sT[2], self.o['cpol']), 'cp')
            if x < 7:
                a('s_add_u32 m0, m0, %d' % CPP)
                a('s_add_u32 s%d, s%d, 3840' % (sT[2], sT[2]))
        self.exec_all()
    def cp_store(self):
        a = self.a
        a('s_mul_i32 s%d, s%d, 80' % (sT[0], sW))
        a('v_lshrrev_b32 v216, 2, v0')
        a('v_mul_u32_u24 v216, %d, v216' % (2 * CPP))
        a('v_and_b32 v217, 3, v0')
        a('v_lshl_add_u32 v216, v217, 3, v216')
        a('v_add_u32 v216, s%d, v216' % sT[0])
        a('v_and_b32 v217, 2, v0')
        a('v_mul_u32_u24 v217, 152, v217')
        a('v_add_u32 v217, v217, v216')
        a('v_add_u32 v218, 4096, v152')
        a.wait_vm('cp')
        a('s_barrier')
        for T, off in enumerate([0, 48, 320, 368, 32, 640, 688, 672]):
            for h in range(2):
                a('ds_read_b64_tr_b16 %s, v%d offset:%d' % (V(220 + 4 * T + 2 * h, 2), 217 if T == 4 else 216, off + CPP * h), 'ct%d' % T)
        for T in range(8):
            a.wait_lg('ct%d' % T)
            for d in range(4):
                r = 220 + 4 * T + d
                a('v_lshlrev_b32 v%d, 16, v%d' % (212 + d, r))
                a('v_and_b32 v%d, s%d, v%d' % (r, sHI, r))
            for d in range(4): a('v_cvt_pk_f16_f32 v%d, v%d, v%d' % (220 + 4 * T + d, 212 + d, 220 + 4 * T + d))
            if T == 7:
                a('s_and_b32 exec_lo, s%d, 0x00ff00ff' % sCP)
                a('s_mov_b32 exec_hi, exec_lo')
            else: self.exec_('s%d' % sCP, 's%d' % sCP)
            a('buffer_store_dwordx4 %s, v%d, s[%d:%d], s%d offen offset:%d sc1' % (V(220 + 4 * T, 4), 218 if T == 7 else 1 if T < 4 else 5, SW, SW + 3, sG0, 1024 * (T & 3)), 'cs')
            self.exec_all()
        self.stamp('cs', 7)
    def cp_flag(self):
        a = self.a
        a('v_mov_b32 v14, s%d' % sTAG)
        a('s_and_b32 exec_lo, s%d, 1' % sCP)
        a('s_mov_b32 exec_hi, 0')
        a.wait_vm('cs')
        a('buffer_store_dword v14, off, s[%d:%d], s%d sc1' % (SW, SW + 3, sG0 + 1))
        self.exec_all()
        self.stamp('cf', 8)

    def plain(self):
        a = self.a
        sG2 = sG1 + 1
        a('s_mul_i32 s%d, s%d, 205' % (sT[0], sT[3]))
        a('s_lshr_b32 s%d, s%d, 10' % (sT[0], sT[0]))
        a('s_mul_i32 s%d, s%d, 5' % (sT[1], sT[0]))
        a('s_sub_u32 s%d, s%d, s%d' % (sT[1], sT[3], sT[1]))
        a('s_lshl2_add_u32 s%d, s%d, s%d' % (sT[2], sT[1], sW))
        a('s_lshl_b32 s%d, s%d, 6' % (sT[6], sT[2]))
        a('s_mul_i32 s%d, s%d, %d' % (sT[5], sT[2], 32 * 7680))
        a('s_lshl_b32 s%d, s%d, 7' % (sT[4], sT[0]))
        a('s_add_u32 s%d, s%d, s%d' % (sT[5], sT[5], sT[4]))
        a('s_mul_i32 s%d, s%d, 15360' % (sG2, sT[1]))
        a('s_lshl1_add_u32 s%d, s%d, s%d' % (sG2, sT[4], sG2))
        a('s_add_u32 s%d, s%d, 0x%x' % (sG2, sG2, MODP))
        a('s_cmp_lt_u32 s%d, 100' % sT[3])
        a('s_cselect_b32 s%d, -1, 0' % sG1)
        a('v_add_u32 v44, s%d, v41' % sT[6])
        CP = self.o['cp'] == 'c'
        if CP: self.cp_setup()
        a.wait_lg()
        self.stamp('karg', 0)
        a('s_load_dword s%d, s[%d:%d], 0' % (sTAG, pWS, pWS + 1))
        a('s_mov_b32 s%d, s%d' % (sN, sT[3]))
        self.srd(S1, pC, 1280)
        a('buffer_load_dword v44, v44, s[%d:%d], 0 offen' % (S1, S1 + 3), 'c')
        self.srd(SJ, pWM, 640 * 7680)
        self.exec_('s%d' % sG1, 's%d' % sG1)
        self.unit_load(176, 38, sT[5], 7680, 'mc')
        self.exec_all()
        if CP: self.cp_load()
        J = self.o['role'] == 'c'
        if J:
            self.job_setup()
            a('buffer_load_dword v52, v52, s[%d:%d], 0 offen' % (S1, S1 + 3), 'c2')
            for u in range(self.o['early']): self.slot(u)
        self.srd(SW, pWS, WSZ)
        self.srd(SX, pX, 2048 * 1280)
        self.staging()
        self.xi_publish()
        self.stamp('issued', 1)
        self.setup()
        self.silu(1, 44, 112)
        self.stamp('c', 2)
        def modpart():
            a.wait_vm('mc')
            self.unit_tr(176, 96)
            a.wait_lg()
            for T in range(4): a(self.mfma(60 + 4 * T, 96 + 4 * T, 112, first=True))
            self.mod_write()
            self.barrier()
            self.mod_publish(60, sG1, sG2)
            self.stamp('mpub', 3)
        def slots():
            if J:
                for u in range(self.o['early'], 3): self.slot(u)
        for c in self.o['ord']: dict(c=self.cp_store, m=modpart, f=self.cp_flag, s=slots)[c]()
        if self.o['mxp']:
            a('s_lshl2_add_u32 s%d, s%d, s%d' % (sT[0], sN, sW))
            a('v_lshlrev_b32 v48, 7, v0')
            if self.o['mxp'] & 1:
                a('s_mul_i32 s%d, s%d, 5120' % (sT[1], sT[0]))
                a('s_mov_b32 exec_hi, 0xff')
                a('buffer_load_dword v49, v48, s[%d:%d], s%d offen' % (SX, SX + 3, sT[1]))
            if self.o['mxp'] & 2:
                a('s_mul_i32 s%d, s%d, 3840' % (sT[1], sT[0]))
                a('s_mov_b64 exec, 0x3fffffff')
                a('buffer_load_dword v49, v48, s[%d:%d], s%d offen' % (S1, S1 + 3, sT[1]))
            self.exec_all()
        if J:
            self.silu(3, 52, 128, 'c2')
            self.p1_gemm('pre', lambda k: self.jobs(3) if k else self.jobs(0, 3))
        else: self.p1_gemm('pre')

    def unit_load(self, dst, va, soff, pitch, tag):
        a = self.a
        for q in range(4):
            h, gp = q >> 1, q & 1
            if isinstance(pitch, int):
                a('s_add_u32 s%d, s%d, %d' % (sT[7], soff, (16 * gp + 4 * h) * pitch))
            else:
                a('s_mul_i32 s%d, %s, %d' % (sT[7], pitch, 16 * gp + 4 * h))
                a('s_add_u32 s%d, s%d, s%d' % (sT[7], sT[7], soff))
            a('buffer_load_dwordx4 %s, v%d, s[%d:%d], s%d offen %s' % (R(dst + 4 * q, 4), va, SJ, SJ + 3, sT[7], self.o['jpol']), tag)
    def unit_tr(self, src, f):
        a = self.a
        for h in range(2):
            for gp in range(2): a('ds_write_b128 v42, %s offset:%d' % (R(src + 8 * h + 4 * gp, 4), 1024 * gp))
            for T in range(4): a('ds_read_b64_tr_b16 %s, v%d' % (V(f + 4 * T + 2 * h, 2), 140 + T), 'jf%d' % f)
    def unit_store(self, f, mask, dst):
        a = self.a
        self.exec_('s%d' % mask, 's%d' % mask)
        for T in range(4):
            a('buffer_store_dwordx4 %s, v1, s[%d:%d], s%d offen offset:%d sc1' % (V(f + 4 * T, 4), SW, SW + 3, dst, 1024 * T), 'jst')
        self.exec_all()

    def job_setup(self):
        a = self.a
        a('s_lshr_b32 s%d, s%d, 1' % (sT[0], sN))
        a('s_and_b32 s%d, s%d, 1' % (sT[1], sN))
        a('s_sub_u32 s%d, 3, s%d' % (sNM, sT[1]))
        a('s_mul_i32 s%d, s%d, s%d' % (sT[2], sNM, sW))
        a('s_mul_i32 s%d, s%d, 12' % (sT[4], sT[1]))
        a('s_add_u32 s%d, s%d, s%d' % (sT[2], sT[2], sT[4]))
        a('s_lshl_b32 s%d, s%d, 6' % (sT[6], sT[2]))
        a('v_lshl_add_u32 v52, v0, 2, s%d' % sT[6])
        a('s_mul_i32 s%d, s%d, %d' % (sT[6], sT[2], 32 * 7680))
        a('s_lshl_b32 s%d, s%d, 7' % (sT[4], sT[0]))
        a('s_add_u32 s%d, s%d, 2560' % (sT[4], sT[4]))
        a('s_add_u32 s%d, s%d, s%d' % (sT[6], sT[6], sT[4]))
        a('s_mul_i32 s%d, s%d, 15360' % (sMO, sT[1]))
        a('s_lshl1_add_u32 s%d, s%d, s%d' % (sMO, sT[4], sMO))
        a('s_add_u32 s%d, s%d, 0x%x' % (sMO, sMO, MODP))
        a('s_sub_u32 s%d, s%d, 2' % (sT[0], sT[0]))
        a('s_mul_i32 s%d, s%d, 3' % (sT[1], sN))
        a('s_sub_u32 s%d, s%d, 200' % (sT[1], sT[1]))
        a('s_cmp_lt_u32 s%d, 80' % sN)
        a('s_cselect_b32 s%d, s%d, 0' % (sNM, sNM))
        a('s_cselect_b32 s%d, s%d, s%d' % (sT[0], sT[0], sT[1]))
        a('s_mov_b32 s%d, s%d' % (sJ0, sT[0]))
        a('s_mov_b32 s%d, s%d' % (sJ1, sT[6]))

    def slot(self, u):
        a = self.a
        ML = 256
        a('s_add_u32 s%d, s%d, %d' % (sT[1], sJ0, u))
        if self.o['lin']:
            a('s_lshl2_add_u32 s%d, s%d, s%d' % (sT[3], sT[1], sW))
            a('s_mul_i32 s%d, s%d, 6554' % (sT[4], sT[3]))
            a('s_lshr_b32 s%d, s%d, 16' % (sT[4], sT[4]))
            a('s_mul_i32 s%d, s%d, 10' % (sT[2], sT[4]))
            a('s_sub_u32 s%d, s%d, s%d' % (sT[3], sT[3], sT[2]))
            a('s_lshr_b32 s%d, s%d, 2' % (sT[2], sT[4]))
        else:
            a('s_mul_i32 s%d, s%d, 205' % (sT[2], sT[1]))
            a('s_lshr_b32 s%d, s%d, 11' % (sT[2], sT[2]))
            a('s_mul_i32 s%d, s%d, 10' % (sT[3], sT[2]))
            a('s_sub_u32 s%d, s%d, s%d' % (sT[3], sT[1], sT[3]))
            a('s_lshl2_add_u32 s%d, s%d, s%d' % (sT[4], sT[2], sW))
        a('s_mul_i32 s%d, s%d, 40960' % (sT[4], sT[4]))
        a('s_lshl_b32 s%d, s%d, 12' % (jD[u], sT[3]))
        a('s_add_u32 s%d, s%d, s%d' % (jD[u], jD[u], sT[4]))
        a('s_add_u32 s%d, s%d, 0x%x' % (jD[u], jD[u], W2T))
        a('s_lshl_b32 s%d, s%d, 7' % (sT[3], sT[3]))
        a('s_add_u32 s%d, s%d, s%d' % (sT[4], sT[4], sT[3]))
        a('s_sub_u32 s%d, s%d, 819200' % (sT[3], sT[4]))
        a('s_cmp_lt_u32 s%d, 170' % sT[1])
        a('s_cselect_b32 s%d, -1, 0' % jS[u])
        a('s_cmp_lt_u32 s%d, 5' % sT[2])
        a('s_cselect_b32 s%d, s%d, s%d' % (SJ, pWO, pW2))
        a('s_cselect_b32 s%d, s%d, s%d' % (SJ + 1, pWO + 1, pW2 + 1))
        a('s_cselect_b32 s%d, 5, 12' % sT[2])
        a('s_cselect_b32 s%d, s%d, s%d' % (sT[4], sT[4], sT[3]))
        a('s_cmp_gt_u32 s%d, %d' % (sNM, u))
        a('s_cselect_b32 s%d, s%d, s%d' % (SJ, pWM, SJ))
        a('s_cselect_b32 s%d, s%d, s%d' % (SJ + 1, pWM + 1, SJ + 1))
        a('s_cselect_b32 s%d, 30, s%d' % (sT[2], sT[2]))
        a('s_cselect_b32 s%d, s%d, s%d' % (sT[4], sJ1, sT[4]))
        a('s_cselect_b32 s%d, 6, 1' % sT[3])
        a('s_cselect_b32 s%d, -1, s%d' % (sT[1], jS[u]))
        a('s_cselect_b32 s%d, 0, s%d' % (jS[u], jS[u]))
        a('s_cselect_b64 vcc, -1, 0')
        a('s_and_b32 s%d, s%d, 0xffff' % (SJ + 1, SJ + 1))
        a('s_mul_i32 s%d, s%d, 163840' % (SJ + 2, sT[2]))
        a('s_mul_i32 s%d, s%d, 1280' % (sT[3], sT[3]))
        a('v_cndmask_b32 v40, v39, v38, vcc')
        self.exec_('s%d' % sT[1], 's%d' % sT[1])
        self.unit_load(ML + 16 * u, 40, sT[4], 's%d' % sT[3], 'm%d' % u)
        self.exec_all()
        a('s_add_u32 s%d, s%d, %d' % (sJ1, sJ1, 32 * 7680))

    def producer(self):
        a = self.a
        ML, XR_, XF_, MA, SF, MG = 256, 76, 176, 60, 128, 216
        E = self.o['early']
        a('s_mul_i32 s%d, s%d, %d' % (sT[5], sXO, 16 * 1280))
        a('s_mul_i32 s%d, s%d, 320' % (sT[1], sW))
        a('s_add_u32 s%d, s%d, s%d' % (sT[5], sT[5], sT[1]))
        CP = self.o['cp'] == 'p'
        if CP: self.cp_setup()
        a.wait_lg()
        self.stamp('karg', 0)
        a('s_load_dword s%d, s[%d:%d], 0' % (sTAG, pWS, pWS + 1))
        if CP and self.o['xo'] == 0: self.cp_load()
        self.srd(SX, pX, 2048 * 1280)
        for s in range(5):
            a('buffer_load_dwordx4 %s, v43, s[%d:%d], s%d offen offset:%d %s' % (V(XR_ + 4 * s, 4), SX, SX + 3, sT[5], 64 * s, self.o['hpol']), 'xt')
        if CP and self.o['xo']: self.cp_load()
        J = self.o['role'] == 'p'
        E2 = max(E, self.o['e2'])
        if J:
            a('s_mov_b32 s%d, s%d' % (sN, sT[3]))
            self.srd(S1, pC, 1280)
            self.job_setup()
            a('buffer_load_dword v52, v52, s[%d:%d], 0 offen' % (S1, S1 + 3), 'c2')
            a('s_mov_b32 s%d, 0x20000' % (SJ + 3))
            for u in range(E): self.slot(u)
            self.staging()
        self.srd(SW, pWS, WSZ)
        self.xi_publish()
        self.stamp('issued', 1)
        self.setup()
        a('s_lshl2_add_u32 s%d, s%d, s%d' % (sTILE, sXO, sW))
        a('s_mul_i32 s%d, s%d, 5120' % (sTILE, sTILE))
        a('s_add_u32 s%d, s%d, 0x%x' % (sTILE, sTILE, WHB))
        a('v_mov_b32 v34, 0')
        a('v_mov_b32 v35, 0')
        a('s_lshl_b32 s%d, s%d, 7' % (sT[0], sW))
        a('s_add_u32 s%d, s%d, %d' % (sT[0], sT[0], HST))
        a('v_lshl_add_u32 v60, v2, 3, s%d' % sT[0])
        a('v_lshlrev_b32 v61, 3, v2')
        a('v_add_u32 v61, %d, v61' % HST)
        if CP and self.o['xo'] == 0: self.cp_store()
        a.wait_vm('xt')
        self.stamp('c', 2)
        if J:
            for u in range(E, E2): self.slot(u)
        for d in range(20):
            a('v_dot2c_f32_bf16 v34, s%d, v%d' % (sONE, XR_ + d))
            a('v_dot2c_f32_bf16 v35, v%d, v%d' % (XR_ + d, XR_ + d))
        self.rowsum([34, 35], 36)
        a('ds_write_b64 v60, v[34:35]')
        if CP and self.o['xo'] == 1: self.cp_store()
        self.barrier()
        for i in range(4): a('ds_read_b64 %s, v61 offset:%d' % (V(62 + 2 * i, 2), 128 * i))
        self.stamp('mpub', 3)
        for d in range(20):
            a('v_lshlrev_b32 v%d, 16, v%d' % (XF_ + 2 * d, XR_ + d))
            a('v_and_b32 v%d, s%d, v%d' % (XF_ + 1 + 2 * d, sHI, XR_ + d))
        a.wait_lg()
        a('v_pk_add_f32 v[62:63], v[62:63], v[64:65]')
        a('v_pk_add_f32 v[66:67], v[66:67], v[68:69]')
        a('v_pk_add_f32 v[34:35], v[62:63], v[66:67]')

        a('s_mov_b32 s%d, 0x%x' % (sT[7], f2u(1 / 640)))
        self.finstats(34, 35, 36)
        a('v_mul_f32 v34, -v34, v35')
        if CP and self.o['xo'] == 0: self.cp_flag()
        for s in range(5):
            r = XF_ + 8 * s
            for d in range(4):
                a('v_pk_fma_f32 %s, %s, v[34:35], v[34:35] op_sel:[0,1,0] op_sel_hi:[1,1,0]' % (V(r + 2 * d, 2), V(r + 2 * d, 2)))
            for d, (e0, e1) in enumerate(((0, 2), (4, 6), (1, 3), (5, 7))):
                a('v_cvt_pk_f16_f32 v%d, v%d, v%d' % (XR_ + 4 * s + d, r + e0, r + e1))
            a('buffer_store_dwordx4 %s, v%d, s[%d:%d], s%d offen offset:%d %s' % (V(XR_ + 4 * s, 4), 1 if s < 4 else 5, SW, SW + 3, sTILE, 1024 * (s & 3), self.o['xpol']), 'hst')
        self.stamp('hst', 4)
        if CP and self.o['xo'] == 2: self.cp_store()
        if CP and self.o['xo'] == 1: self.cp_flag()
        a('s_lshl_b32 s%d, s%d, 7' % (sT[0], sXO))
        a('s_add_u32 s%d, s%d, 0x%x' % (sT[0], sT[0], FX))
        if J:
            self.silu(3, 52, 128, 'c2')
            self.jobs(0, min(E2, self.o['pre']))
        a.wait_vm('hst')
        if self.o['jl']:
            assert min(E2, self.o['pre']) == 3
            a.wait_lg()
        a('s_barrier')
        self.flagstore(sT[0])
        self.stamp('pub', 5)
        if CP and self.o['xo'] == 2: self.cp_flag()
        if J:
            for u in range(E2, 3): self.slot(u)
            self.p1_gemm('pre', lambda k: self.jobs(3) if k else self.jobs(min(E2, self.o['pre']), 3))
        else: self.p1_gemm('pre')

    def jobs(self, u0=0, u1=None):
        a = self.a
        ML, MA, SF = 256, 204, 128
        F = [96, 112, 176]
        for u in range(u0, 3 if u1 is None else u1):
            a.wait_vm('m%d' % u)
            self.unit_tr(ML + 16 * u, F[u])
        if u1 is not None: return
        for u in range(3):
            a.wait_lg('jf%d' % F[u])
            if u == 2:
                Ls = a.newlabel('nomf')
                a('s_cmp_lg_u32 s%d, 3' % sNM)
                a('s_cbranch_scc1 %s' % Ls)
            for T in range(4): a(self.mfma(MA + 4 * T, F[u] + 4 * T, SF + 4 * u, first=(u == 0)))
            if u == 2: a.label(Ls)
            if not self.o['jl']: self.unit_store(F[u], jS[u], jD[u])
        self.mod_write(MA)
        if self.o['jl'] and self.o['jm']: return
        self.barrier()
        self.mod_publish(MA)
        self.stamp('jobs', 6)

    def jobs_late(self, real):
        a = self.a
        if real:
            if self.o['jm']:
                self.barrier()
                self.mod_publish(204)
            for u, f in enumerate([96, 112, 176]): self.unit_store(f, jS[u], jD[u])
        else:
            a.c('no job output in this role: masked-off stores keep the vmcnt distances of the shared loop equal in both roles')
            a('s_mov_b64 exec, 0')
            for t in (['mp'] if self.o['jm'] else []) + ['jst'] * 12:
                a('buffer_store_dword v1, v1, s[%d:%d], 0 offen' % (SW, SW + 3), t)
            self.exec_all()

    def jobflag(self):
        a = self.a
        a('s_lshl_b32 s%d, s%d, 2' % (sT[2], sN))
        a('s_add_u32 s%d, s%d, 0x%x' % (sT[2], sT[2], JF))
        a('v_mov_b32 v14, s%d' % sTAG)
        a('s_cmp_eq_u32 s%d, 1' % sW)
        a('s_cselect_b32 s%d, 1, 0' % sT[3])
        a('%s exec_lo, s%d, s%d' % ('s_andn2_b32' if self.o['role'] == 'c' else 's_and_b32', sT[3], sPROD))
        a('s_mov_b32 exec_hi, 0')
        a('buffer_store_dword v14, off, s[%d:%d], s%d sc1' % (SW, SW + 3, sT[2]))
        self.exec_all()

    def setup(self):
        a = self.a
        self.srd(SO, pOUT, 2048 * 1280)
        a('v_min_u32 v7, 39, v0')
        a('s_mul_i32 s%d, s%d, 40' % (sT[0], sW))
        a('v_add_lshl_u32 v7, v7, s%d, 4' % sT[0])
        a('v_add_u32 v5, 4096, v1')
        a('v_mov_b32 v8, v1')
        a('v_and_b32 v149, 0x70, v1')
        a('v_lshl_add_u32 v152, v3, 7, v149')
        for i in range(1, 4):
            a('v_add_u32 v%d, %d, v8' % (8 + i, RGN * i))
            a('v_add_u32 v%d, %d, v152' % (152 + i, RGN * i))
        a('v_add_u32 v12, s%d, v8' % sRB)
        a('v_add_u32 v156, s%d, v152' % sRB)
        a('s_lshr_b32 s%d, s%d, 1' % (sT[0], sW))
        a('s_mul_i32 s%d, s%d, %d' % (sT[0], sT[0], RGN - 12288))
        a('s_mul_i32 s%d, s%d, 6144' % (sT[1], sW))
        a('s_add_u32 s%d, s%d, s%d' % (sT[0], sT[0], sT[1]))
        a('s_add_u32 s%d, s%d, %d' % (sT[0], sT[0], HP))
        a('v_add_u32 v4, s%d, v1' % sT[0])
        a('s_cmp_eq_u32 s%d, 1' % sW)
        a('s_cselect_b32 s%d, 512, 0' % sT[0])
        a('v_or_b32 v157, s%d, v1' % sT[0])
        a('s_lshl_b32 s%d, s%d, 10' % (sT[0], sW))
        a('s_add_u32 s%d, s%d, %d' % (sT[0], sT[0], HP))
        a('v_add_u32 v157, s%d, v157' % sT[0])
        a('s_add_u32 s%d, s%d, 4' % (sT[1], sW))
        a('s_min_u32 s%d, s%d, 5' % (sT[1], sT[1]))
        a('s_lshl_b32 s%d, s%d, 10' % (sT[0], sT[1]))
        a('s_add_u32 s%d, s%d, %d' % (sT[0], sT[0], HP))
        a('v_add_u32 v158, s%d, v1' % sT[0])
        a('s_lshl_b32 s%d, s%d, 9' % (sT[0], sW))
        a('s_add_u32 s%d, s%d, %d' % (sT[0], sT[0], EX))
        a('v_lshl_add_u32 v159, v0, 3, s%d' % sT[0])
        a('s_lshl_b32 s%d, s%d, 9' % (sT[0], sT[1]))
        a('s_add_u32 s%d, s%d, %d' % (sT[0], sT[0], EX))
        a('v_lshl_add_u32 v160, v0, 3, s%d' % sT[0])
        a('s_mul_i32 s%d, s%d, 3072' % (sT[0], sW))
        a('s_add_u32 s%d, s%d, %d' % (sT[0], sT[0], EX))
        a('v_lshl_add_u32 v161, v0, 3, s%d' % sT[0])
        a('v_and_b32 v148, 1, v3')
        a('v_lshrrev_b32 v149, 1, v3')
        a('v_mad_u32_u24 v162, v148, 3, v149')
        a('v_lshlrev_b32 v150, 4, v2')
        a('v_lshl_add_u32 v162, v162, 8, v150')
        a('v_mul_u32_u24 v149, 20480, v149')
        a('v_lshl_add_u32 v163, v148, 3, v150')
        a('v_add_u32 v163, v163, v149')
        NEG = 0xff61b1e6
        a('s_or_b32 s%d, s%d, s%d' % (sT[0], sC, sW))
        a('s_cselect_b32 s%d, 0, 0x%x' % (sT[0], NEG))
        a('s_mov_b32 s%d, 0x80000001' % sT[1])
        a('s_mov_b32 s%d, 0x80000000' % sT[2])
        a('s_mov_b32 s%d, 0x07070303' % sT[3])
        a('v_mov_b32 v150, 0x%x' % NEG)
        a('v_lshlrev_b32 v148, 2, v3')
        a('v_sub_u32 v148, v2, v148')
        for e in range(4):
            a('v_subrev_u32 v149, %d, v148' % e)
            a('v_and_b32 v149, s%d, v149' % sT[1])
            a('v_cmp_ne_u32 vcc, 0, v149')
            a('v_cndmask_b32 v%d, 0, v150, vcc' % (16 + e))
            a('v_cmp_ne_u32 vcc, s%d, v149' % sT[2])
            a('v_cndmask_b32 v%d, 0, v150, vcc' % (20 + e))
            a('v_or_b32 v%d, s%d, v%d' % (24 + e, sT[0], 20 + e))
        for x, r in enumerate((20, 22, 16, 18)):
            a('v_perm_b32 v%d, v%d, v%d, s%d' % (28 + x, r + 1, r, sT[3]))
        a('s_lshl2_add_u32 s%d, s%d, s%d' % (sT[0], sC, sW))
        a('s_mul_i32 s%d, s%d, 40960' % (sT[0], sT[0]))
        for t in range(2):
            for i in range(4): a('s_add_u32 s%d, s%d, 0x%x' % (sP[4 * t + i], sT[0], WHB + 20480 * t + 5120 * i))
        a('s_mul_i32 s%d, s%d, 1280' % (sT[1], sJ))
        a('s_add_u32 s%d, s%d, s%d' % (sP[9], sT[0], sT[1]))
        a('s_add_u32 s%d, s%d, 0x%x' % (sP[9], sP[9], WO_))
        a('s_lshl_b32 s%d, s%d, 3' % (sT[0], sC))
        a('s_max_u32 s%d, s%d, 1' % (sT[1], sT[0]))
        a('s_sub_u32 s%d, s%d, 1' % (sT[1], sT[1]))
        a('s_lshl2_add_u32 s%d, s%d, s%d' % (sT[2], sT[1], sW))
        a('s_mul_i32 s%d, s%d, 5120' % (sT[2], sT[2]))
        a('s_add_u32 s%d, s%d, 0x%x' % (sP[8], sT[2], WHB))
        a('s_lshl1_add_u32 s%d, s%d, s%d' % (sT[0], sW, sT[0]))
        a('v_add_u32 v13, s%d, v0' % sT[0])
        a('v_mov_b32 v148, s%d' % sT[1])
        a('v_cmp_gt_u32 vcc, 2, v0')
        a('v_cndmask_b32 v13, v148, v13, vcc')
        a('v_lshlrev_b32 v13, 7, v13')
        self.w_addr()

    def p1_gemm(self, part='loop', mid=None):
        a = self.a
        o = self.o
        ACC, HACC, BB, HB, HA = 32, 96, 120, 176, 200
        HT = [2, 4, 3, 5, 6, 7]
        steps = [(s, i) for s in range(5) for i in range(4)]
        def bread(n, T):
            s, i = steps[n]
            a('ds_read_b128 %s, v%d offset:%d' % (R(BB + 4 * T, 4), (152 if T == 7 else 8) + i, 7680 * s + 1024 * T), 'B%d_%d' % (n, T))
        def hread(s, x):
            a('ds_read_b128 %s, v%d offset:%d' % (R(HB + 4 * x, 4), 156 if HT[x] == 7 else 12, 7680 * s + 1024 * HT[x]), 'HB%d' % s)
        areg = lambda x: 220 + 4 * x if x < 8 else 256 + 4 * (x - 8)
        def aload(x):
            s, i = steps[x >> 1]
            if 'noA1' in o['exp']: return
            self.ld(areg(x), 1024 * s, sP[4 * (x & 1) + i], 'A%d' % x, o['apol'])
        def mm(d, w, act, T, first):
            return (self.mfma(d, act, w, first) if T >= 5 else self.mfma(d, w, act, first)).replace('bf16', 'f16')
        MG, MV, HV = 52, 168, 236
        outr = lambda n: 220 + 8 * n if n < 4 else 220 + 8 * (n & 1) if n < 14 else {14: 236, 15: 244, 16: 104, 17: 96, 18: 104, 19: 96}[n]
        def mvread(d, va, off, tag):
            return [lambda h=h: a('ds_read_b128 %s, v%d offset:%d' % (V(d + 4 * h, 4), va, off + 16 * h), tag) for h in range(2)]
        def modul(r, m):
            return [lambda d=d: a('v_pk_fma_f16 v%d, v%d, v%d, v%d' % (r + d, r + d, m + d, m + 4 + d)) for d in range(4)]
        if part == 'pre':
            assert o['cp'] == 'c' and o['ord'].index('c') < o['ord'].index('m')
            a('s_mov_b32 s%d, 0' % sFAIL)
            a('s_mov_b64 s[%d:%d], 0xffff' % (sG0, sG0 + 1))
            a('s_mov_b32 s%d, 0xffff0000' % sG1)
            a('s_mov_b32 s%d, 0' % (sG1 + 1))
            self.cf_addr()
            a('v_add_u32 v50, s%d, v50' % sT[6])
            a('v_add_u32 v13, 0x%x, v13' % FX)
            a('v_cmp_gt_u32 vcc, 32, v0')
            a('v_cndmask_b32 v50, v50, v13, vcc')
            L0, D0 = a.newlabel('cfp'), a.newlabel('cfd')
            a('s_mov_b32 s%d, 0x8000' % sCNT)
            m1 = o['pm'] if mid else o['m1']
            if m1 == 2: self.mod_issue([0, 1], MG, 7, 'mod', 5)
            if mid: mid(0)
            a('buffer_load_dword v51, v50, s[%d:%d], 0 offen sc1' % (SW, SW + 3), 'fl')
            if m1 == 3: self.mod_issue([0, 1], MG, 7, 'mod', 5)
            if mid: mid(1)
            if m1 == 4: self.mod_issue([0, 1], MG, 7, 'mod', 5)
            a('s_mul_i32 s%d, s%d, 1408' % (sT[0], sW))
            a('s_add_u32 s%d, s%d, %d' % (sT[0], sT[0], SPARE))
            a('v_and_b32 v33, 16, v7')
            a('v_sub_u32 v34, v7, v33')
            a('v_lshrrev_b32 v33, 2, v33')
            a('v_add3_u32 v33, v33, v34, s%d' % sT[0])
            a('v_lshlrev_b32 v167, 5, v3')
            a('v_add_u32 v167, %d, v167' % SPARE)
            a('s_lshl_b32 s%d, s%d, 11' % (sT[0], sW))
            a('v_add_u32 v6, s%d, v167' % sT[0])
            a('s_mov_b32 s%d, 0' % sT[5])
            a.wait_vm('fl')
            a.label(L0)
            a('v_cmp_ne_u32 vcc, s%d, v51' % sTAG)
            if o['cf1']: a('s_or_b32 vcc_hi, vcc_hi, vcc_lo')
            a('s_cmp_eq_u32 vcc_hi, 0')
            a('s_cbranch_scc1 %s' % D0)
            a.items.append(Ins('buffer_load_dword v51, v50, s[%d:%d], 0 offen sc1' % (SW, SW + 3)))
            a('s_sub_u32 s%d, s%d, 1' % (sCNT, sCNT))
            a('s_cmp_lg_u32 s%d, 0' % sCNT)
            a('s_waitcnt vmcnt(0)')
            a('s_cbranch_scc1 %s' % L0)
            a.label(D0)
            self.stamp('cfok', 9)
            aq = list(range(40))
            if m1 == 1: self.mod_issue([0, 1], MG, 7, 'mod', 5)
            self.b1_issue(0, o['nb0'])
            if not mid and o['tb1']:
                a('v_lshlrev_b32 v35, 7, v0')
                for k in range(o['tb1']):
                    off = 1024 * o['tb0'] + 8192 * k
                    a('s_add_u32 s%d, s%d, %d' % (sT[7], sB1, off))
                    nl = min(64, (RGN - off) // 128)
                    if nl < 64: a('s_bfm_b64 exec, %d, 0' % nl)
                    a('buffer_load_dword v48, v35, s[%d:%d], s%d offen sc1' % (SW, SW + 3, sT[7]))
                self.exec_all()
            if not o['cf1']:
                Lc = a.newlabel('fxok')
                a('s_cmp_eq_u32 vcc_lo, 0')
                a('s_cbranch_scc1 %s' % Lc)
                save = list(a.vm)
                self.poll(13, sT[5], 32)
                a.vm = save
                a.label(Lc)
            self.stamp('fxok', 10)
            for _ in range(2): aload(aq.pop(0))
            self.ld(HA, 0, sP[8], 'HA0')
            self.b1_issue(o['nb0'], 8)
            if m1 == 0: self.mod_issue([0, 1], MG, 7, 'mod', 5)
            for _ in range(o['la0'] - 2): aload(aq.pop(0))
            if o['jl'] == 1 and mid: self.jobs_late(1)
            self.mod_check([0, 1], MG, 7, 'mod', 36, 5)
            self.stamp('modok', 11)
            self.plus1(MG + 20)
            self.unpack4(40, MG)
            self.unpack4(44, MG + 20)
            a('v_cvt_pk_f16_f32 v36, v44, v46')
            a('v_cvt_pk_f16_f32 v37, v45, v47')
            a('v_cvt_pk_f16_f32 v38, v40, v42')
            a('v_cvt_pk_f16_f32 v39, v41, v43')
            a('ds_write2_b32 v33, v36, v37 offset0:0 offset1:2')
            a('ds_write2_b32 v33, v38, v39 offset0:4 offset1:6')
            x = 8
            while x < o['nb2'] or len(aq) > 40 - o['la1']:
                if len(aq) > 40 - o['la1']: aload(aq.pop(0))
                if o['jl'] == 3 and x == o['jx']: self.jobs_late(1 if mid else 0)
                if x < o['nb2']: self.b1_one(x, x == 8); x += 1
            if o['jl'] == 2: self.jobs_late(1 if mid else 0)
            a.wait_vm(['b1_0', 'HA0'] + (['A%d' % x for x in range(o['la0'])] if o['jl'] == 1 else []))
            if o['jl'] == 1:
                assert o['nb2'] == 15
                while a.vm and a.vm[0] in ('jst', 'mp'): a.vm.pop(0)
                assert 'jst' not in a.vm
            a.wait_lg()
            return
        aq = list(range(o['la1'], 40))
        a('s_barrier')
        self.stamp('gemm0')
        for f in mvread(MV, 167, 0, 'mv0') + mvread(40, 6, 0, 'mv0'): f()
        for T in range(8): bread(0, T)
        if not o['jl']: self.jobflag()
        a.wait_lg('mv0')
        for f in modul(220, MV) + modul(224, MV) + modul(HA, 40): f()
        b1f = lambda x: (lambda: self.b1_one(x, x == o['nb2']))
        b1q = list(range(o['nb2'], 38))
        hrd = {1: (0, 0, 6), 3: (1, 0, 3), 4: (1, 3, 6), 6: (2, 0, 3), 7: (2, 3, 6), 9: (3, 0, 3), 10: (3, 3, 6), 12: (4, 0, 6)}
        hmm = {2: 0, 5: 1, 8: 2, 11: 3, 13: 4}
        HOFF = [0, 6144, 38400, 44544]
        for n in range(20):
            s, i = steps[n]
            if o['fine'] == 2 and n in (0, 1, 2, 4, 8, 12, 16): self.stamp('n%d' % n)
            if n in (3, 6, 9, 12):
                assert not b1q or 2 * b1q[0] // 15 > n // 3, (n, b1q)
                a.wait_vm('b1_%d' % (n // 3))
            if n in (3, 7): a('s_barrier')
            if n == 11:
                a('s_barrier'); self.level = 1
            if n == 15:
                a.wait_lg('hp'); a('s_barrier'); self.level = 2
            vm, ot = [], []
            k = o['ra0'] if b1q else o['ra1']
            for _ in range(k):
                if aq: vm.append(lambda x=aq.pop(0): aload(x))
            for q in range(int((str(o['rb1']) + str(o['rb1'])[-1] * 20)[n])):
                if b1q: vm.insert(min(len(vm), 2 * q), b1f(b1q.pop(0)))
            hl = {1: 1, 2: 2, 3: 3, 4: 4} if not o['hl'] else {1: 1, 4: 2, 7: 3, 9: 4}
            if n in hl: vm.append(lambda: self.ld(HA + 4 * hl[n], 1024 * hl[n], sP[8], 'HA%d' % hl[n]))
            if n in hrd:
                hs, x0, x1 = hrd[n]
                ot += [lambda x=x: hread(hs, x) for x in range(x0, x1)]
            hm = []
            if n in hmm:
                hs = hmm[n]
                hm = [mm(HACC + 4 * x, HB + 4 * x, HA + 4 * hs, HT[x], hs == 0) for x in range(6)]
            if n == 14:
                ot += [lambda x=x: a('ds_write_b128 v4, %s offset:%d' % (R(HACC + 4 * x, 4), 1024 * x), 'hp') for x in range(6)]
                pre = self.p2_pre()
            if n >= 14:
                vm += pre[:3]; pre = pre[3:]
            if n == 15:
                ot += [lambda y=y, p=p: a('ds_read_b128 %s, v%d offset:%d' % (V(HB + 16 * y + 4 * p, 4), 157 + y, HOFF[p]), 'hr') for y in range(2) for p in range(4)]
            if n in (16, 17):
                b = HB + 16 * (n - 16)
                if n == 16: a.wait_lg('hr')
                ot += [lambda e=e, p=p: a('v_add_f32 v%d, v%d, v%d' % (b + 8 * p + e, b + 8 * p + e, b + 8 * p + 4 + e)) for p in range(2) for e in range(4)]
                ot += [lambda e=e: a('v_add_f32 v%d, v%d, v%d' % (b + e, b + e, b + 8 + e)) for e in range(4)]
                ot += [lambda e=e: a('v_cvt_pk_bf16_f32 v%d, v%d, v%d' % (b + e, b + 2 * e, b + 2 * e + 1)) for e in range(2)]
                ot += [lambda: a('ds_write_b64 v%d, %s' % (159 + n - 16, V(b, 2)))]
            if o['jl'] and n == (7 if o['jl'] == 2 else 3):
                assert 'jst' not in a.vm
                vm.insert(0, self.jobflag)
            if n == o['jfi']: vm.append(lambda: self.jf_issue())
            if n == o['jfc']:
                self.jf_check()
                self.queue_after_jobs()
            if n == o['pw']:
                if o['pwm'] == 0:
                    vm.append(lambda: (a('v_lshlrev_b32 v252, 20, v0'), a('s_mov_b64 exec, 0x7ffff'),
                                       a('buffer_load_dword v253, v252, s[%d:%d], 0 offen offset:3968 sc1' % (SW, SW + 3)), a('s_mov_b64 exec, 7'),
                                       a('buffer_load_dword v254, v252, s[%d:%d], 0 offen' % (SO, SO + 3)), a('s_mov_b64 exec, -1')))
                else:
                    vm.append(lambda: (a('v_lshlrev_b32 v252, 23, v0'), a('s_lshl_b32 s%d, s%d, 16' % (sT[0], sTQ)), a('s_mov_b64 exec, 7'),
                                       a('buffer_load_dword v253, v252, s[%d:%d], s%d offen offset:3968 sc1' % (SW, SW + 3, sT[0])), a('s_mov_b64 exec, 1'),
                                       a('v_mov_b32 v252, s%d' % sT[0]),
                                       a('buffer_load_dword v254, v252, s[%d:%d], 0 offen' % (SO, SO + 3)), a('s_mov_b64 exec, -1')))
            if n == o['mx']:
                vm.append(lambda: (a('s_lshl2_add_u32 s%d, s2, s%d' % (sT[0], sW)), a('s_mul_i32 s%d, s%d, 2560' % (sT[0], sT[0])),
                                   a('v_lshlrev_b32 v255, 7, v0'), a('s_mov_b64 exec, 0xfffff'),
                                   a('buffer_load_dword v255, v255, s[%d:%d], s%d offen' % (SX, SX + 3, sT[0])), a('s_mov_b64 exec, -1')))
            if n == o['mw1']:
                vm.append(lambda: (a('s_lshl2_add_u32 s%d, s2, s%d' % (sT[0], sW)), a('s_mul_i32 s%d, s%d, 1920' % (sT[0], sT[0])),
                                   a('v_lshlrev_b32 v14, 7, v0'), a('s_mov_b64 exec, 0x7fff'),
                                   a('buffer_load_dword v14, v14, s[%d:%d], s%d offen %s' % (S1, S1 + 3, sT[0], o['mwp'])), a('s_mov_b64 exec, -1')))
            if n >= o['gp0']:
                vm += [self.pump] * max(0, o['g_pump'] - (len(vm) if n < 14 else 1))
            gaps = []
            for T in range(8): gaps += [(T, 0), (T, 1)] + ([(T, 2)] if hm and T >= 2 else [])
            ngap = len(gaps)
            slots = [[] for _ in gaps]
            cap = [2 - (k == 0 and (n < 19 or T == 0)) for T, k in gaps]
            for g in range(ngap):
                if g + 1 == ngap or gaps[g + 1] in ((4, 0), (2, 2)): cap[g] -= 1
            def put(L, g0, g1):
                G = list(range(g0, g1 + 1))
                lvl = 0
                while sum(max(0, cap[g] + lvl) for g in G) < len(L): lvl += 1
                seats = [g for g in G for _ in range(max(0, cap[g] + lvl - 1))] if lvl else []
                extra = [g for g in G if cap[g] + lvl > 0] if lvl else [g for g in G for _ in range(max(0, cap[g]))]
                k = len(L) - len(seats)
                if not lvl and k <= len(set(extra)):
                    best = max(cap[g] for g in G)
                    e2 = [g for g in G if cap[g] == best]
                    extra = e2 if len(e2) >= k else sorted(set(extra))
                seats = sorted(seats + [extra[(2 * q + 1) * len(extra) // (2 * k)] for q in range(k)])
                for g, f in zip(seats, L): slots[g].append(f); cap[g] -= 1
            h1 = hmm.get(n + 1) if n > 1 else None
            VL = []
            if n < 19:
                s1, i1 = steps[n + 1]
                r = outr(n + 1)
                for g, f in zip((1, 3), mvread(MV, 167, 2048 * i1 + 128 * s1, 'mv%d' % (n + 1))): slots[g].append(f); cap[g] -= 1
                x = 2 * n + 2
                VL.append(lambda: a.wait_vm('A%d' % (x + 1)))
                if x >= 8: VL += [lambda d=d: a('v_accvgpr_read_b32 v%d, a%d' % (r + d, areg(x) - 256 + d)) for d in range(8)]
                VL += [lambda f=f: (a.wait_lg('mv%d' % (n + 1)), f()) for f in modul(r, MV) + modul(r + 4, MV)]
                if 'noM' in o['exp']: VL = VL[:1]
            if h1:
                for g, f in zip((5, 7), mvread(HV, 6, 128 * h1, 'hv%d' % h1)): slots[g].append(f); cap[g] -= 1
                VL += [lambda f=f: (a.wait_vm('HA%d' % h1), a.wait_lg('hv%d' % h1), f()) for f in modul(HA + 4 * h1, HV)]
            if vm: put(vm, 0, ngap - 1)
            if ot: put(ot, 3 if n == 14 else 0, ngap - 1)
            if len(VL) > 13: put(VL, 0, ngap - 2)
            elif VL: put(VL, 7, ngap - 2)
            for T, k in gaps:
                if k == 0 and T in (0, 4): a.wait_lg('B%d_%d' % (n, T + 3))
                if k < 2:
                    a(mm(ACC + 32 * k + 4 * T, BB + 4 * T, outr(n) + 4 * k, T, n == 0))
                    if k == 0 and T > 0 and n + 1 < 20: bread(n + 1, T - 1)
                    if k == 0 and T == 0 and n > 0: bread(n, 7)
                else:
                    if T == 2: a.wait_lg('HB%d' % hs)
                    a(hm.pop(0))
                for f in slots.pop(0): f()
            assert not slots and not hm
        assert not aq and not b1q and not pre
        self.stamp('gemm1')
        a('v_lshlrev_b32 v167, 7, v0')
        for f in self.touches('s'): f()

    def p1_attn(self):
        a = self.a
        ACC, S_, P_, X_ = 32, 176, 64, 80
        K = lambda t: 102 + 6 * t
        Vv = lambda y, t: 116 + 6 * y + 2 * t
        Q = lambda t, h: 132 + 8 * t + 4 * h
        np_ = [self.o['at_pump']]
        def pump(k=1):
            k = min(k, np_[0]); np_[0] -= k; self.pump(k)
        def cvt(d, r):
            a('v_cvt_pk_bf16_f32 v%d, v%d, v%d' % (d, r, r + 1))
            a('v_cvt_pk_bf16_f32 v%d, v%d, v%d' % (d + 1, r + 2, r + 3))
        def kv(t):
            r = ACC + 32 * t
            cvt(K(t), r + 8); cvt(K(t) + 4, r + 12)
            cvt(K(t) + 2, r + 16); cvt(148 + 2 * t, r + 16)
            cvt(Vv(0, t), r + 20)
            for e in range(2): a('v_permlane32_swap_b32 v%d, v%d' % (148 + 2 * t + e, K(t) + 2 + e))
            cvt(Vv(1, t), r + 24); cvt(Vv(2, t), r + 28)
        def qq(t):
            r = ACC + 32 * t
            cvt(Q(t, 0), r); cvt(Q(t, 1) + 2, r + 4)
            for e in range(2):
                a('v_cndmask_b32 v%d, 0, v%d, s[%d:%d]' % (Q(t, 0) + 2 + e, 148 + 2 * t + e, sG0, sG0 + 1))
                a('v_cndmask_b32 v%d, 0, v%d, s[%d:%d]' % (Q(t, 1) + e, 148 + 2 * t + e, sG1, sG1 + 1))
        def smm(u, cur):
            t, h = u >> 1, u & 1
            m = 16 if cur else (24 if t == 0 else 20)
            a('v_mfma_f32_16x16x32_bf16 %s, %s, %s, %s' % (V(S_ + 8 * u + 4 * cur, 4), V(K(t - 1 + cur) + 2 * h, 4), V(Q(t, h), 4), V(m, 4)))
        kv(1)
        for x in range(3): a('ds_write_b64 v161, %s offset:%d' % (V(K(1) + 2 * x, 2), 3072 + 512 * x))
        for y in range(3): a('ds_write_b64 v161, %s offset:%d' % (V(Vv(y, 1), 2), 3072 + 1536 + 512 * y))
        for f in self.touches('a0'): f()
        pump(2)
        kv(0)
        self.barrier()
        self.level = 3
        for x in range(3): a('ds_read_b64 %s, v161 offset:%d' % (V(K(-1) + 2 * x, 2), 512 * x), 'ek')
        for y in range(3): a('ds_read_b64 %s, v161 offset:%d' % (V(Vv(y, -1), 2), 1536 + 512 * y), 'ev')
        pump(3)
        qq(1)
        for u in (2, 3): smm(u, 0); smm(u, 1)
        qq(0)
        pump(2)
        for u in (0, 1): smm(u, 1)
        a.wait_lg('ek')
        for u in (0, 1): smm(u, 0)
        self.stamp('S')
        cs = LOG2E / math.sqrt(20.0)
        a('s_mov_b32 s%d, 0x%x' % (sT[1], f2u(cs)))
        sv = lambda u, i: X_ + 2 * u + i
        M = X_ + 8
        for u in (2, 3, 0, 1):
            b = S_ + 8 * u
            for i in range(2): a('v_max3_f32 v%d, v%d, v%d, v%d' % (sv(u, i), b + 2 * i, b + 2 * i + 1, b + 4 + 2 * i))
            for i in range(2): a('v_max_f32 v%d, v%d, v%d' % (sv(u, i), sv(u, i), b + 5 + 2 * i))
            a('v_max_f32 v%d, v%d, v%d' % (M + u, sv(u, 0), sv(u, 1)))
            pump(1)
        def allred(op, mid):
            a('v_permlane32_swap_b32 v%d, v%d' % (M, M + 2))
            a('v_permlane32_swap_b32 v%d, v%d' % (M + 1, M + 3))
            pump(1)
            a('%s v%d, v%d, v%d' % (op, M, M, M + 2))
            a('%s v%d, v%d, v%d' % (op, M + 1, M + 1, M + 3))
            pump(1)
            a('v_permlane16_swap_b32 v%d, v%d' % (M, M + 1))
            a('%s v%d, v%d, v%d' % (op, M, M, M + 1))
            a(mid % (M + 1, M)); a(mid % (M + 2, M)); a(mid % (M + 3, M)); a(mid % (M, M))
            pump(1)
            a('v_permlane16_swap_b32 v%d, v%d' % (M + 2, M + 3))
            a('v_permlane16_swap_b32 v%d, v%d' % (M, M + 1))
            pump(1)
            a('v_permlane32_swap_b32 v%d, v%d' % (M, M + 2))
            a('v_permlane32_swap_b32 v%d, v%d' % (M + 1, M + 3))
        allred('v_max_f32', 'v_mul_f32 v%%d, s%d, v%%d' % sT[1])
        for u in range(4):
            for i in range(2): a('v_fma_f32 v%d, v%d, s%d, -v%d' % (sv(u, i), sv(u, i), sT[1], M + u))
        for u in range(4):
            for i in range(2): a('v_exp_f32 v%d, v%d' % (sv(u, i), sv(u, i)))
        for u in range(4): a('v_add_f32 v%d, v%d, v%d' % (M + u, sv(u, 0), sv(u, 1)))
        allred('v_add_f32', 'v_rcp_f32 v%d, v%d')
        a.wait_lg('ev')
        for u in range(4):
            t, h = u >> 1, u & 1
            for i in range(2): a('v_mul_f32 v%d, v%d, v%d' % (sv(u, i), sv(u, i), M + u))
            for i in range(2): a('v_cvt_pk_bf16_f32 v%d, v%d, v%d' % (sv(u, i), sv(u, i), sv(u, i)))
            for x in range(4): a('v_bfi_b32 v%d, v%d, 0, v%d' % (P_ + 4 * u + x, 28 + x, sv(u, x & 1)))
            if u > 0: self.pv(u - 1)
        self.pv(3)
        O = S_
        for t in range(2):
            cvt(O + 4 * t, ACC + 16 * t); cvt(O + 4 * t + 2, ACC + 16 * t + 8)
            cvt(O + 8 + 2 * t, ACC + 16 * t + 4); cvt(O + 12, ACC + 16 * t + 12)
            for e in range(2): a('v_permlane16_swap_b32 v%d, v%d' % (O + 4 * t + e, O + 4 * t + 2 + e))
            for e in range(2): a('v_cndmask_b32 v%d, v%d, v%d, s[%d:%d]' % (O + 8 + 2 * t + e, O + 8 + 2 * t + e, O + 12 + e, sG1, sG1 + 1))
        a('s_add_u32 s%d, s%d, 20480' % (sT[0], sP[9]))
        for e in range(2): a('v_permlane32_swap_b32 v%d, v%d' % (O + 8 + e, O + 10 + e))
        self.st2(['buffer_store_dwordx4 %s, v162, s[%d:%d], s%d offen' % (V(O, 4), SW, SW + 3, sP[9]),
                  'buffer_store_dwordx4 %s, v162, s[%d:%d], s%d offen' % (V(O + 4, 4), SW, SW + 3, sT[0]),
                  'buffer_store_dwordx2 %s, v163, s[%d:%d], s%d offen offset:512' % (V(O + 8, 2), SW, SW + 3, sP[9])], 'ost')
        self.stamp('attn')

    def pv(self, u):
        t, h = u >> 1, u & 1
        for x, y in enumerate((h, 2)):
            self.a('v_mfma_f32_16x16x32_bf16 %s, %s, %s, 0' % (V(32 + 8 * u + 4 * x, 4), V(114 + 6 * y + 2 * t, 4), V(64 + 4 * u, 4)))

    def finish(self):
        a = self.a
        D = a.newlabel('ep')
        a('s_or_b32 s%d, s2, s%d' % (sT[0], sW))
        a('s_cmp_lg_u32 s%d, 0' % sT[0])
        a('s_cbranch_scc1 %s' % D)
        a('v_mov_b32 v14, s%d' % sTAG)
        self.exec_(1, 0)
        a('buffer_store_dword v14, off, s[%d:%d], 0 sc1' % (SW, SW + 3))
        self.exec_all()
        a.label(D)
        if self.stamps:
            a.wait_vm()
            self.stamp('end')
            a('v_writelane_b32 v15, s%d, 63' % sFAIL)
            a('v_writelane_b32 v15, s%d, 62' % sSLOW)
            a('s_lshl_b32 s%d, s2, 2' % sT[0])
            a('s_add_u32 s%d, s%d, s%d' % (sT[0], sT[0], sW))
            a('s_lshl_b32 s%d, s%d, 8' % (sT[0], sT[0]))
            a('s_add_u32 s%d, s%d, 0x%x' % (sT[0], sT[0], DBG))
            a('v_lshlrev_b32 v14, 2, v0')
            if not self.o.get('nodbg'): a('buffer_store_dword v15, v14, s[%d:%d], s%d offen sc0 sc1' % (SW, SW + 3, sT[0]))
            amp = self.o.get('amp', 0)
            if amp:
                L, E = a.newlabel('amp'), a.newlabel('ampe')
                a('v_readlane_b32 s%d, v15, 0' % sT[2])
                a('v_readlane_b32 s%d, v15, %d' % (sT[3], amp))
                a('v_readlane_b32 s%d, v15, %d' % (sT[4], self.nst - 1))
                if amp == 40:
                    a('v_readlane_b32 s%d, v15, 40' % sT[2])
                    a('v_readlane_b32 s%d, v15, 0' % sT[3])
                if amp in (42, 43):
                    a('s_mov_b32 s%d, 0x%x' % (sT[5], DBG - 256))
                    a('buffer_load_dword v12, off, s[%d:%d], s%d sc0 sc1' % (SW, SW + 3, sT[5]))
                    a('s_waitcnt vmcnt(0)')
                    x, y = (sT[2], sT[3]) if amp == 42 else (sT[3], sT[2])
                    a('v_readlane_b32 s%d, v12, 40' % x)
                    a('v_readlane_b32 s%d, v15, 40' % y)
                    a('s_sub_u32 s%d, s%d, 1000' % (sT[2], sT[2]))
                if amp == 41:
                    R = a.newlabel('rr')
                    a('s_mov_b32 s%d, 8' % sCNT)
                    a.label(R)
                    a('s_mov_b32 s%d, 0x%x' % (sT[5], DBG))
                    a('buffer_load_dword v12, v14, s[%d:%d], s%d offen sc0 sc1' % (SW, SW + 3, sT[5]))
                    a('s_waitcnt vmcnt(0)')
                    a('s_sub_u32 s%d, s%d, 1' % (sCNT, sCNT))
                    a('s_cmp_lg_u32 s%d, 0' % sCNT)
                    a('s_cbranch_scc1 %s' % R)
                    a('v_readlane_b32 s%d, v12, 40' % sT[2])
                    a('v_readlane_b32 s%d, v15, 40' % sT[3])
                    a('s_sub_u32 s%d, s%d, 1000' % (sT[2], sT[2]))
                a('s_cmp_eq_u32 s%d, 0' % sT[3])
                a('s_cbranch_scc1 %s' % E)
                a('s_sub_u32 s%d, s%d, s%d' % (sT[3], sT[3], sT[2]))
                a('s_min_u32 s%d, s%d, 6000' % (sT[3], sT[3]))
                a('s_lshl_b32 s%d, s%d, 2' % (sT[3], sT[3]))
                a('s_mov_b32 s%d, 0x100000' % sCNT)
                a.label(L)
                a('s_memrealtime s[98:99]')
                a('s_waitcnt lgkmcnt(0)')
                a('s_sub_u32 s%d, s%d, 1' % (sCNT, sCNT))
                a('s_cmp_eq_u32 s%d, 0' % sCNT)
                a('s_cbranch_scc1 %s' % E)
                a('s_sub_u32 s%d, s98, s%d' % (sT[5], sT[4]))
                a('s_cmp_lt_u32 s%d, s%d' % (sT[5], sT[3]))
                a('s_cbranch_scc1 %s' % L)
                a.label(E)
            hd = self.o.get('hd', 0)
            if hd:
                a('s_load_dwordx2 s[%d:%d], s[0:1], 72' % (sT[0], sT[1]))
                a.wait_lg()
                self.srd(SJ, sT[0], 64)
                sh = 0 if hd in (1, 3) else 11
                a('v_subrev_u32 v13, %d, v0' % sh)
                a('v_max_i32 v13, 0, v13')
                a('v_lshlrev_b32 v13, 2, v13')
                if hd in (1, 2):
                    a('v_not_b32 v12, v15')
                    a('v_cmp_eq_u32 vcc, 0, v0')
                    a('v_cndmask_b32 v12, v15, v12, vcc')
                    op = 'umax'
                else:
                    a('v_readlane_b32 s%d, v15, 0' % sT[2])
                    a('v_subrev_u32 v12, s%d, v15' % sT[2])
                    a('v_cmp_eq_u32 vcc, 0, v15')
                    a('v_cndmask_b32 v12, v12, 0, vcc') if 0 else a('v_cndmask_b32 v12, v12, v15, vcc')
                    op = 'add'
                self.exec_('0xffff' if sh == 0 else '0x%x' % (1 | (0x7fff << 12)), 0)
                a('buffer_atomic_%s v12, v13, s[%d:%d], 0 offen' % (op, SJ, SJ + 3))
                self.exec_all()
        a.label('L_end')
        a('s_endpgm')
        for c in self.cold: c()
        a.label('CODE_END')
        a('s_endpgm')

from gen2 import add_phases
add_phases(Gen, globals())

def build(stamps=False, opt=None):
    g = Gen(stamps, opt)
    g.run()
    body = g.a.finish()
    hdr = '''; fused adaLN block: persistent single launch, 256 workgroups (one per CU)
; @launch grid=(256,1,1) block=(256,1,1) lds=163840
.amdgcn_target "amdgcn-amd-amdhsa--gfx950"
.text
.globl {n}_kernel
.p2align 8
.type {n}_kernel,@function
{n}_kernel:
'''.format(n=NAME)
    tail = '''
.section .rodata,"a"
.p2align 6
.amdhsa_kernel {n}_kernel
  .amdhsa_next_free_vgpr 512
  .amdhsa_next_free_sgpr 102
  .amdhsa_accum_offset 256
  .amdhsa_group_segment_fixed_size 0
  .amdhsa_kernarg_size 88
  .amdhsa_user_sgpr_count 2
  .amdhsa_user_sgpr_kernarg_segment_ptr 1
  .amdhsa_system_sgpr_workgroup_id_x 1
.end_amdhsa_kernel
'''.format(n=NAME)
    return hdr + body + tail, g

def parse(kvs):
    o = {}
    for kv in kvs:
        k, v = kv.split('=', 1)
        o[k] = int(v) if v.lstrip('-').isdigit() else v.replace('+', ' ')
    return o

if __name__ == '__main__':
    if len(sys.argv) > 2 and sys.argv[1] == 'var':
        o = parse(sys.argv[3:])
        txt, g = build(True, o)
        open('v_%s.s' % sys.argv[2], 'w').write(txt)
        open('v_%s.names' % sys.argv[2], 'w').write('\n'.join(g.names))
        txt, g = build(False, o)
        open('p_%s.s' % sys.argv[2], 'w').write(txt)
    else:
        out = 'cdna_kernels/%s.s' % NAME
        txt, g = build(False)
        open(out, 'w').write(txt)
        print('written', out, len(txt), 'bytes; nops', g.a.npad)
```
